```python
import torch

def _softmax(x, axis=-1):
    return torch.softmax(x, dim=axis)
def _gelu(x):
    return torch.nn.functional.gelu(x, approximate="tanh")
def _silu(x):
    return torch.nn.functional.silu(x)
def _sigmoid(x):
    return torch.sigmoid(x)
def _layernorm(x, axis=-1, eps=1e-5):
    m = x.mean(dim=axis, keepdim=True)
    v = x.var(dim=axis, keepdim=True, unbiased=False)
    return (x - m) / torch.sqrt(v + eps)
def _scatter_add(tgt, idx, src, axis=0):
    return tgt.clone().index_add_(axis, idx, src)
def _segment_sum(src, seg, n):
    out = torch.zeros((n,) + src.shape[1:], dtype=src.dtype)
    return out.index_add_(0, seg, src)
def _pad(x, pw):
    flat = tuple(v for pair in reversed(pw) for v in pair)
    return torch.nn.functional.pad(x, flat)

kernel_name = 'standalone__gqa_softmax__near_ridge'

def setup_inputs():

    _w = (lambda a: (lambda t: t.to(torch.bfloat16) if t.is_floating_point() else t)(torch.as_tensor(a)))
    B, Hq, Hkv, Sq, Sk, D = 8, 32, 32, 336, 2048, 128
    return {
        "q": _w((lambda *s: torch.randn(*s, dtype=torch.bfloat16) * 0.8)(B, Hq, Sq, D)),
        "k": _w((lambda *s: torch.randn(*s, dtype=torch.bfloat16) * 0.8)(B, Hkv, Sk, D)),
        "v": _w((lambda *s: torch.randn(*s, dtype=torch.bfloat16) * 0.05)(B, Hkv, Sk, D)),
    }

def reference(q, k, v):
    B, Hq, Sq, D = q.shape
    Hkv = k.shape[1]
    rep = Hq // Hkv
    k = (lambda x, n, axis: torch.repeat_interleave(x, n, dim=axis))(k, rep, axis=1)
    v = (lambda x, n, axis: torch.repeat_interleave(x, n, dim=axis))(v, rep, axis=1)
    scale = D ** -0.5
    scores = torch.einsum("bhqd,bhkd->bhqk", q, k) * scale
    p = _softmax(scores, axis=-1)
    return torch.einsum("bhqk,bhkd->bhqd", p, v)
```

```python
import sys, math, argparse

NAME = "standalone__gqa_softmax__near_ridge_kernel"
SQ, SK, D = 336, 2048, 128
NTILES = SK // 64
QBYTES = SQ * D * 2
KBYTES = SK * D * 2
LDS_K = 0
LDS_V = 65536
LDS_SP = 131072
LDS_TOTAL = 163840
CSCALE = math.log2(math.e) / math.sqrt(D)


def f32hex(x):
    import struct
    return "0x%08x" % struct.unpack("<I", struct.pack("<f", x))[0]


class Cfg:
    def __init__(self, **kw):
        self.ones_units = (0,)
        self.stamps = False
        self.nt = True
        self.order = (1, 0, 2, 3, 4)
        self.shared_pos = 2
        self.fallback = True
        self.force_fallback = False
        self.bar_shift = 4
        self.lo_thr = 2.0 ** -64
        self.hi_thr = 2.0 ** 64
        self.st_nt = True
        for k, v in kw.items():
            assert hasattr(self, k), k
            setattr(self, k, v)


sQ, sK, sV, sO, sW_ = 8, 12, 16, 20, 24
sWave = 28
sLoop = 29
sGoff = 30
sSlot = 31
sT0, sT1, sT2, sT3 = 32, 33, 34, 35
sArg = 36
sBad = 44
sTmp64 = 46
sSoff = 48
sStamp = 50
sP = 58
sC = 60
sThrLo, sThrHi = 62, 63
sMask = 64
sPass = 65

vKF = 0
vVF = 64
vS = 128
vP = 152
vOnes = 164
vKA = 168
vVA = 170
vDK = 174
vDV = 175
vL = 176
vT = 182
vQ = 192
NQV = 4

aO = 0
aL = 192


class Gen:
    def __init__(self, cfg):
        self.cfg = cfg
        self.L = []
        self.uid = 0
        ones = list(cfg.ones_units) + [5]
        self.ones = ones
        self.aLidx = {u: aL + 4 * i for i, u in enumerate(ones)}
        top = aL + 4 * len(ones)
        self.qloc = {}
        for u in range(6):
            if u < NQV:
                self.qloc[u] = ('v', vQ + 16 * u)
            else:
                self.qloc[u] = ('a', top + 16 * (u - NQV))
        assert top + 16 * (6 - NQV) <= 256

    def A(self, s):
        self.L.append(s)

    def label(self, s):
        self.L.append(s + ":")

    def q(self, u, j):
        f, b = self.qloc[u]
        return f"{f}[{b + 4 * j}:{b + 4 * j + 3}]"

    @staticmethod
    def vr(b, n=4):
        return f"v[{b}:{b + n - 1}]"

    @staticmethod
    def ar(b, n=4):
        return f"a[{b}:{b + n - 1}]"

    def qk_mfma(self, u, sbuf, kbuf, t, j):
        d = vS + 8 * sbuf + 4 * t
        a = vKF + 32 * kbuf + 16 * t + 4 * j
        c = "0" if j == 0 else self.vr(d)
        return f"v_mfma_f32_16x16x32_bf16 {self.vr(d)}, {self.vr(a)}, {self.q(u, j)}, {c}"

    def pv_mfma(self, u, pbuf, vbuf, dt):
        d = aO + 32 * u + 4 * dt
        a = vVF + 32 * vbuf + 4 * dt
        b = vP + 4 * pbuf
        return f"v_mfma_f32_16x16x32_bf16 {self.ar(d)}, {self.vr(a)}, {self.vr(b)}, {self.ar(d)}"

    def ones_mfma(self, u, pbuf):
        d = self.aLidx[u]
        b = vP + 4 * pbuf
        return f"v_mfma_f32_16x16x32_bf16 {self.ar(d)}, {self.vr(vOnes)}, {self.vr(b)}, {self.ar(d)}"

    def k_read(self, kbuf, L, slotpar, t, j):
        d = vKF + 32 * kbuf + 16 * t + 4 * j
        off = slotpar * 16384 + t * 4096 + (j // 2) * 2048 + (j % 2) * 512
        return f"ds_read_b128 {self.vr(d)}, v{vKA + L} offset:{off}"

    def v_read(self, vbuf, L, slotpar, t, dt):
        d = vVF + 32 * vbuf + 4 * dt + 2 * t
        off = slotpar * 16384 + t * 4096 + (dt // 2) * 512
        return f"ds_read_b64_tr_b16 {self.vr(d, 2)}, v{vVA + 2 * L + (dt % 2)} offset:{off}"

    def dma(self, which):
        nt = " nt" if self.cfg.nt else ""
        if which == 'K':
            return f"buffer_load_dwordx4 v{vDK}, s[{sK}:{sK + 3}], s{sSoff} offen{nt} lds"
        return f"buffer_load_dwordx4 v{vDV}, s[{sV}:{sV + 3}], s{sSoff} offen{nt} lds"

    def dma_tile_simple(self, which):
        base = LDS_K if which == 'K' else LDS_V
        for m in range(4):
            self.A(f"s_add_u32 m0, s{sSlot}, {base + m * 4096}")
            self.A(f"s_add_u32 s{sSoff}, s{sGoff}, {m * 4096}")
            self.A(self.dma(which))

    def advance_tile(self):
        return [f"s_add_u32 s{sGoff}, s{sGoff}, 16384",
                f"s_add_u32 s{sSlot}, s{sSlot}, 16384",
                f"s_and_b32 s{sSlot}, s{sSlot}, 0xffff"]

    def prologue(self):
        A = self.A
        cfg = self.cfg
        A("s_cmp_ge_u32 s2, 256")
        A("s_cbranch_scc1 L_end")
        A(f"s_load_dwordx8 s[{sArg}:{sArg + 7}], s[0:1], 0")
        if cfg.stamps:
            A(f"s_load_dwordx2 s[{sW_}:{sW_ + 1}], s[0:1], 40")
            A(f"s_memrealtime s[{sStamp}:{sStamp + 1}]")
            A(f"s_memtime s[{sStamp + 2}:{sStamp + 3}]")
        t0, t1, t2, t3, t4, t5 = vT, vT + 1, vT + 2, vT + 3, vT + 4, vT + 5
        lane = vT + 8
        A(f"v_and_b32 v{lane}, 63, v0")
        A(f"v_lshrrev_b32 v{t0}, 6, v0")
        A("s_nop 0")
        A(f"v_readfirstlane_b32 s{sWave}, v{t0}")
        A(f"v_lshrrev_b32 v{t0}, 5, v{lane}")
        A(f"v_bfe_u32 v{t1}, v{lane}, 2, 3")
        A(f"v_and_b32 v{t2}, 3, v{lane}")
        A(f"v_lshlrev_b32 v{t0}, 6, v{t0}")
        A(f"v_lshl_add_u32 v{t0}, v{t1}, 8, v{t0}")
        A(f"v_lshrrev_b32 v{t3}, 2, v{t1}")
        for rh in range(2):
            A(f"v_add_u32 v{t4}, {2 * rh}, v{t3}")
            A(f"v_sub_u32 v{t4}, 0, v{t4}")
            A(f"v_and_b32 v{t4}, 3, v{t4}")
            A(f"v_xor_b32 v{t4}, v{t4}, v{t2}")
            A(f"v_lshl_add_u32 v{t4}, v{t4}, 4, v{t0}")
            A(f"v_add_u32 v{vT + 6 + rh}, {rh * 2048}, v{t4}")
        A(f"s_and_b32 s{sP}, s{sWave}, 1")
        A(f"s_lshr_b32 s{sT0}, s{sWave}, 1")
        A(f"s_cmp_eq_u32 s{sP}, 0")
        A(f"s_cselect_b64 s[{sTmp64}:{sTmp64 + 1}], -1, 0")
        A(f"v_cndmask_b32 v{vDK}, v{vT + 7}, v{vT + 6}, s[{sTmp64}:{sTmp64 + 1}]")
        A(f"s_lshl_b32 s{sT1}, s{sT0}, 7")
        A(f"v_add_u32 v{vDK}, s{sT1}, v{vDK}")
        A(f"v_bfe_u32 v{t0}, v{lane}, 4, 1")
        A(f"v_bfe_u32 v{t1}, v{lane}, 2, 2")
        A(f"v_lshl_add_u32 v{t1}, v{t0}, 2, v{t1}")
        A(f"v_bfe_u32 v{t2}, v{lane}, 1, 1")
        A(f"v_xor_b32 v{t2}, v{t2}, v{t0}")
        A(f"v_and_b32 v{t3}, 1, v{lane}")
        A(f"v_lshl_add_u32 v{t2}, v{t2}, 1, v{t3}")
        A(f"v_lshrrev_b32 v{t3}, 5, v{lane}")
        A(f"v_lshl_add_u32 v{t2}, v{t3}, 2, v{t2}")
        A(f"v_lshlrev_b32 v{t2}, 4, v{t2}")
        A(f"v_lshl_add_u32 v{vDV}, v{t1}, 8, v{t2}")
        A(f"s_lshl_b32 s{sT1}, s{sT0}, 11")
        A(f"s_lshl_b32 s{sT2}, s{sP}, 7")
        A(f"s_add_u32 s{sT1}, s{sT1}, s{sT2}")
        A(f"v_add_u32 v{vDV}, s{sT1}, v{vDV}")
        A("s_waitcnt lgkmcnt(0)")
        A(f"s_mul_i32 s{sT1}, s2, {QBYTES}")
        A(f"s_lshl_b32 s{sT2}, s2, 19")
        for (srd, arg, off, size) in ((sQ, sArg, sT1, QBYTES), (sK, sArg + 2, sT2, KBYTES),
                                      (sV, sArg + 4, sT2, KBYTES), (sO, sArg + 6, sT1, QBYTES)):
            A(f"s_add_u32 s{srd}, s{arg}, s{off}")
            A(f"s_addc_u32 s{srd + 1}, s{arg + 1}, 0")
            A(f"s_and_b32 s{srd + 1}, s{srd + 1}, 0xffff")
            A(f"s_mov_b32 s{srd + 2}, {size}")
            A(f"s_mov_b32 s{srd + 3}, 0x20000")
        if cfg.stamps:
            A(f"s_and_b32 s{sW_ + 1}, s{sW_ + 1}, 0xffff")
            A(f"s_mov_b32 s{sW_ + 2}, 0x100000")
            A(f"s_mov_b32 s{sW_ + 3}, 0x20000")
        A(f"s_lshl_b32 s{sSlot}, s{sWave}, 10")
        A(f"s_mov_b32 s{sGoff}, 0")
        self.dma_tile_simple('K')
        nt = " nt" if cfg.nt else ""
        stage = {0: LDS_SP, 1: LDS_SP + 4096, 2: LDS_K + 32768, 3: LDS_K + 32768 + 4096,
                 4: LDS_V + 32768, 5: LDS_V + 32768 + 4096}
        self.stage = stage
        A(f"s_lshl_b32 s{sT1}, s{sWave}, 13")
        A(f"s_mul_i32 s{sT2}, s{sWave}, {80 * 256}")
        for u in range(6):
            for jp in range(2):
                for rh in range(2):
                    A(f"s_add_u32 m0, s{sT1}, {stage[u] + jp * 2048 + rh * 1024}")
                    if u < 5:
                        A(f"s_add_u32 s{sSoff}, s{sT2}, {u * 4096 + jp * 128}")
                    else:
                        A(f"s_mov_b32 s{sSoff}, {320 * 256 + jp * 128}")
                    A(f"buffer_load_dwordx4 v{vT + 6 + rh}, s[{sQ}:{sQ + 3}], s{sSoff} offen{nt} lds")
        self.dma_tile_simple('V')
        for x in self.advance_tile():
            A(x)
        self.dma_tile_simple('K')
        self.dma_tile_simple('V')
        for x in self.advance_tile():
            A(x)
        A(f"v_and_b32 v{t0}, 15, v{lane}")
        A(f"v_lshrrev_b32 v{t1}, 4, v{lane}")
        A(f"v_lshrrev_b32 v{t2}, 2, v{t0}")
        A(f"v_sub_u32 v{t2}, 0, v{t2}")
        A(f"v_and_b32 v{t2}, 3, v{t2}")
        A(f"v_xor_b32 v{t2}, v{t2}, v{t1}")
        A(f"v_lshlrev_b32 v{t2}, 4, v{t2}")
        A(f"v_and_b32 v{t3}, 7, v{t0}")
        A(f"v_lshl_add_u32 v{t2}, v{t3}, 6, v{t2}")
        A(f"v_lshrrev_b32 v{t3}, 3, v{t0}")
        A(f"v_lshl_add_u32 v{t2}, v{t3}, 10, v{t2}")
        kaddr = vT + 9
        A(f"v_mov_b32 v{kaddr}, v{t2}")
        A(f"s_lshl_b32 s{sT1}, s{sP}, 13")
        A(f"s_xor_b32 s{sT2}, s{sT1}, 8192")
        A(f"v_add_u32 v{vKA}, s{sT1}, v{t2}")
        A(f"v_add_u32 v{vKA + 1}, s{sT2}, v{t2}")
        A(f"v_lshrrev_b32 v{t2}, 1, v{t1}")
        A(f"v_lshlrev_b32 v{t2}, 11, v{t2}")
        A(f"v_and_b32 v{t3}, 1, v{t1}")
        A(f"v_lshl_add_u32 v{t2}, v{t3}, 8, v{t2}")
        A(f"v_lshrrev_b32 v{t4}, 2, v{t0}")
        A(f"v_lshl_add_u32 v{t2}, v{t4}, 6, v{t2}")
        A(f"v_and_b32 v{t4}, 3, v{t0}")
        A(f"v_lshl_add_u32 v{t2}, v{t4}, 3, v{t2}")
        A(f"v_add_u32 v{t2}, {LDS_V}, v{t2}")
        for pi in range(2):
            A(f"v_xor_b32 v{t4}, {pi}, v{t3}")
            A(f"v_lshl_add_u32 v{t4}, v{t4}, 5, v{t2}")
            A(f"v_add_u32 v{vVA + pi}, s{sT1}, v{t4}")
            A(f"v_add_u32 v{vVA + 2 + pi}, s{sT2}, v{t4}")
        A(f"s_mov_b32 s{sC}, {f32hex(CSCALE)}")
        A(f"s_mov_b32 s{sC + 1}, {f32hex(CSCALE)}")
        A(f"s_mov_b32 s{sMask}, 0xffff0000")
        A(f"s_mov_b32 s{sThrLo}, {f32hex(cfg.lo_thr)}")
        A(f"s_mov_b32 s{sThrHi}, {f32hex(cfg.hi_thr)}")
        for i in range(4):
            A(f"v_mov_b32 v{vOnes + i}, 0x3f803f80")
        self.zero_acc()
        for i in range(12):
            A(f"v_mov_b32 v{vP + i}, 0")
        for i in range(32):
            A(f"v_mov_b32 v{vVF + 32 + i}, 0")
        A(f"s_lshl_b32 s{sT1}, s{sWave}, 13")
        A(f"v_add_u32 v{kaddr}, s{sT1}, v{kaddr}")
        for u in range(6):
            remaining = 4 * (5 - u) + 12
            A(f"s_waitcnt vmcnt({remaining})")
            tq = vKF + 16 * (u % 2)
            base = stage[u]
            A(f"v_add_u32 v{t0}, {base}, v{kaddr}")
            for j in range(4):
                A(f"ds_read_b128 {self.vr(tq + 4 * j)}, v{t0} offset:{(j // 2) * 2048 + (j % 2) * 512}")
            A("s_waitcnt lgkmcnt(0)")
            f, b = self.qloc[u]
            for r in range(16):
                w = tq + r
                A(f"v_lshlrev_b32 v{t2}, 16, v{w}")
                A(f"v_and_b32 v{t3}, s{sMask}, v{w}")
                A(f"v_mul_f32 v{t2}, s{sC}, v{t2}")
                A(f"v_mul_f32 v{t3}, s{sC}, v{t3}")
                if f == 'v':
                    A(f"v_cvt_pk_bf16_f32 v{b + r}, v{t2}, v{t3}")
                else:
                    A(f"v_cvt_pk_bf16_f32 v{t4}, v{t2}, v{t3}")
                    A(f"v_accvgpr_write_b32 a{b + r}, v{t4}")
        A("s_waitcnt vmcnt(8) lgkmcnt(0)")
        A("s_barrier")
        self.dma_tile_simple('K')
        self.dma_tile_simple('V')
        for x in self.advance_tile():
            A(x)
        self.dma_tile_simple('K')
        for t in range(2):
            for j in range(4):
                A(self.k_read(0, 0, 0, t, j))
        for dt in range(8):
            for t in range(2):
                A(self.v_read(0, 0, 0, t, dt))
        A("s_waitcnt lgkmcnt(0)")

    def zero_acc(self):
        for i in range(aL + 4 * len(self.ones)):
            self.A(f"v_accvgpr_write_b32 a{i}, 0")
        for i in range(6):
            self.A(f"v_mov_b32 v{vL + i}, 0")

    def ub_list(self, cls):
        cfg = self.cfg
        out = []
        shared_beta = 0 if cls == 0 else 2
        for beta in range(4):
            units = list(cfg.order)
            if beta == shared_beta:
                units.insert(cfg.shared_pos, 5)
            for u in units:
                out.append((beta, u))
        return out

    def build_loop(self, cls):
        cfg = self.cfg
        ubs = self.ub_list(cls)
        N = len(ubs)
        assert N % 3 == 0
        gaps = []
        slot_first = []
        for n in range(N):
            nb, nu = ubs[(n + 1) % N]
            cb, cu = ubs[n]
            pb, pu = ubs[(n - 1) % N]
            mf = []
            for t in range(2):
                for j in range(4):
                    mf.append(self.qk_mfma(nu, (n + 1) % 3, nb % 2, t, j))
            for dt in range(8):
                mf.append(self.pv_mfma(pu, (n - 1) % 3, pb % 2, dt))
            if pu in self.ones:
                mf.append(self.ones_mfma(pu, (n - 1) % 3))
            slot_first.append(len(gaps))
            sb = vS + 8 * (n % 3)
            pbuf = vP + 4 * (n % 3)
            adds = cu not in self.ones
            for i, m in enumerate(mf):
                g = dict(mfma=m, shadow=[], mem=[], valu=[], slot=n, pos=i, pre=[])
                if i < 16:
                    k = i // 2
                    if i % 2 == 0:
                        g['valu'].append(('E', f"v_exp_f32 v{sb + k}, v{sb + k}"))
                    else:
                        if k % 2 == 1:
                            g['valu'].append(('C', f"v_cvt_pk_bf16_f32 v{pbuf + k // 2}, v{sb + k - 1}, v{sb + k}"))
                        if adds:
                            g['valu'].append(('A', f"v_add_f32 v{vL + cu}, v{vL + cu}, v{sb + k}"))
                gaps.append(g)
        slot_first.append(len(gaps))
        G = len(gaps)

        def used(g):
            c = 0
            for k, _ in g['valu']:
                c += 2 if k == 'E' else 1
            for k, _ in g['mem']:
                c += 2 if k == 'D' else 1
            return c

        def place(items, lo, hi, cost):
            free = []
            for gi in range(lo, hi):
                f = 2 - used(gaps[gi])
                if cost == 2:
                    if f >= 2:
                        free.append(gi)
                else:
                    free.extend([gi] * max(f, 0))
            n = len(items)
            if len(free) >= n:
                sel = [free[(i * len(free)) // n] for i in range(n)]
            else:
                sel = list(free)
                cand = [gi for gi in range(lo, hi) if not any(k == 'E' for k, _ in gaps[gi]['valu'])]
                cnt = {gi: used(gaps[gi]) + sel.count(gi) * cost for gi in cand}
                while len(sel) < n:
                    gi = min(cand, key=lambda x: (cnt[x], abs(x - (lo + hi) // 2)))
                    sel.append(gi)
                    cnt[gi] += cost
                sel.sort()
            for it, gi in zip(items, sel):
                gaps[gi]['mem'].append(it)
            return sel

        bfirst = {}
        blast = {}
        for n, (b, u) in enumerate(ubs):
            bfirst.setdefault(b, n)
            blast[b] = n
        sh = cfg.bar_shift
        barpos = {}
        for bb, sign in ((1, -1 if cls == 0 else 1), (3, 1 if cls == 0 else -1)):
            barpos[bb] = slot_first[bfirst[bb]] + sign * sh
        for bb in (1, 3):
            gi = barpos[bb] - 1
            gaps[gi]['shadow'].append(('W', "s_waitcnt vmcnt(16) lgkmcnt(0)"))
            gaps[gi]['shadow'].append(('B', "s_barrier"))

        def dma_group(which, lo, hi):
            base = LDS_K if which == 'K' else LDS_V
            items = [('D', self.dma(which)) for m in range(4)]
            sel = place(items, lo, hi, 2)
            assert all(sel[i] + 3 <= sel[i + 1] for i in range(3)), sel
            prev = None
            for m, gi in enumerate(sel):
                gaps[gi - 1]['shadow'].append(('S', f"s_add_u32 m0, s{sSlot}, {base + m * 4096}"))
                gaps[gi - 2]['shadow'].append(('S', f"s_add_u32 s{sSoff}, s{sGoff}, {m * 4096}"))
            return sel

        for bb in (1, 3):
            nxt = (bb + 1) % 4
            lo = max(barpos[bb] + 3, slot_first[bfirst[bb]] + 3)
            selk = dma_group('K', lo, slot_first[blast[bb] + 1])
            lo2 = slot_first[bfirst[nxt]] + 3
            hi2 = slot_first[blast[nxt] + 1] - (sh + 2)
            selv = dma_group('V', lo2, hi2)
            gi = selv[-1] + 1
            adv = self.advance_tile()
            for i, x in enumerate(adv):
                gaps[gi + i]['shadow'].append(('S', x))

        need_wait = {}
        for beta in range(4):
            nb = (beta + 1) % 4
            L = nb % 2
            slotpar = (nb // 2) if nb != 0 else 0
            lo = slot_first[bfirst[beta]]
            hi = slot_first[blast[beta] + 1]
            crosses = (beta % 2 == 1)
            if crosses:
                lo = max(lo, barpos[beta])
                hiK = slot_first[blast[beta]] - 4
                hiV = hi
            else:
                endb = min(hi, barpos[nb])
                hiK = slot_first[blast[beta]] - 4
                hiV = endb - 8
            if beta == 3:
                tog = [('X', f"v_xor_b32 v{r}, 0x8000, v{r}") for r in (vKA, vVA, vVA + 1)]
                for i, it in enumerate(tog):
                    gaps[lo - 0 + 0]['pre'].append(it)
                tog2 = [('X', f"v_xor_b32 v{r}, 0x8000, v{r}") for r in (vKA + 1, vVA + 2, vVA + 3)]
                for it in tog2:
                    gaps[lo]['pre'].append(it)
                lo += 1
            kitems = [('R', self.k_read(nb % 2, L, slotpar, t, j), ('K', nb)) for t in range(2) for j in range(4)]
            kitems = [(k, txt) for k, txt, tag in kitems]
            place(kitems, lo, hiK, 1)
            loV = max(lo, slot_first[bfirst[beta] + 1])
            vitems = [('T', self.v_read(nb % 2, L, slotpar, t, dt)) for dt in range(8) for t in range(2)]
            place(vitems, loV, hiV, 1)
            need_wait[slot_first[blast[beta]]] = ('K', nb % 2)
            sl = (bfirst[nb] + 1) % N
            need_wait[slot_first[sl] + 8] = ('V', nb % 2)

        seq = []
        for gi, g in enumerate(gaps):
            if gi in need_wait:
                seq.append(('LW', need_wait[gi]))
            seq.append(('M', g['mfma']))
            for it in g['shadow']:
                seq.append(it)
            for it in g['pre']:
                seq.append(it)
            for it in g['mem']:
                seq.append(it)
            for it in g['valu']:
                seq.append(it)
        out = []
        for it in seq:
            if it[0] == 'LW':
                idx = max(i for i, x in enumerate(out) if x[0] == 'M') if any(x[0] == 'M' for x in out) else None
                if idx is None:
                    out.append(it)
                else:
                    out.insert(idx + 1, it)
            else:
                out.append(it)
        seq = out
        kreg = lambda b: range(vKF + 32 * b, vKF + 32 * b + 32)
        vreg = lambda b: range(vVF + 32 * b, vVF + 32 * b + 32)
        issued = 0
        last_write = {}
        res = {}
        for it_no in range(2):
            for i, (k, x) in enumerate(seq):
                if k in ('R', 'T'):
                    issued += 1
                    d = int(x.split('v[')[1].split(':')[0])
                    if vKF <= d < vKF + 64:
                        last_write[('K', (d - vKF) // 32)] = issued
                    else:
                        last_write[('V', (d - vVF) // 32)] = issued
                elif k == 'W':
                    pass
                elif k == 'LW' and it_no == 1:
                    n_out = issued - last_write[x]
                    res[i] = min(n_out, 15)
        final = []
        for i, (k, x) in enumerate(seq):
            if k == 'LW':
                final.append(('W', f"s_waitcnt lgkmcnt({res[i]})"))
            else:
                final.append((k, x))
        over = sum(max(0, used(g) + len(g['pre']) - 2) for g in gaps)
        self.stats = dict(gaps=G, overflow=over)
        return final

    def main_loop(self, cls):
        A = self.A
        seq = self.build_loop(cls)
        ubs = self.ub_list(cls)
        b0, u0 = ubs[0]
        for t in range(2):
            for j in range(4):
                A(self.qk_mfma(u0, 0, 0, t, j))
        A("s_nop 7")
        A(f"s_mov_b32 s{sLoop}, 16")
        if self.cfg.stamps:
            A(f"s_memtime s[{sStamp + 4}:{sStamp + 5}]")
            A("s_waitcnt lgkmcnt(0)")
        A(".p2align 6")
        self.label(f"L_loop{cls}")
        for k, x in seq:
            A(x)
        A(f"s_sub_u32 s{sLoop}, s{sLoop}, 1")
        A(f"s_cmp_lg_u32 s{sLoop}, 0")
        A(f"s_cbranch_scc1 L_loop{cls}")
        if self.cfg.stamps:
            A(f"s_memtime s[{sStamp + 6}:{sStamp + 7}]")
        N = len(ubs)
        pb, pu = ubs[N - 1]
        for dt in range(8):
            A(self.pv_mfma(pu, (N - 1) % 3, pb % 2, dt))
        if pu in self.ones:
            A(self.ones_mfma(pu, (N - 1) % 3))

    def rowsum_reduce(self, reg, tmp):
        A = self.A
        A(f"v_mov_b32 v{tmp}, v{reg}")
        A("s_nop 1")
        A(f"v_permlane16_swap_b32 v{reg}, v{tmp}")
        A("s_nop 1")
        A(f"v_add_f32 v{reg}, v{reg}, v{tmp}")
        A(f"v_mov_b32 v{tmp}, v{reg}")
        A("s_nop 1")
        A(f"v_permlane32_swap_b32 v{reg}, v{tmp}")
        A("s_nop 1")
        A(f"v_add_f32 v{reg}, v{reg}, v{tmp}")

    def rowmax_reduce(self, reg, tmp):
        A = self.A
        A(f"v_mov_b32 v{tmp}, v{reg}")
        A("s_nop 1")
        A(f"v_permlane16_swap_b32 v{reg}, v{tmp}")
        A("s_nop 1")
        A(f"v_max_f32 v{reg}, v{reg}, v{tmp}")
        A(f"v_mov_b32 v{tmp}, v{reg}")
        A("s_nop 1")
        A(f"v_permlane32_swap_b32 v{reg}, v{tmp}")
        A("s_nop 1")
        A(f"v_max_f32 v{reg}, v{reg}, v{tmp}")

    def store_setup(self):
        A = self.A
        lane, t0, t1, t2 = vT + 8, vT, vT + 1, vT + 2
        A(f"v_and_b32 v{t0}, 15, v{lane}")
        A(f"v_lshrrev_b32 v{t1}, 4, v{lane}")
        A(f"s_lshl_b32 s{sT1}, s{sWave}, 13")
        A(f"s_add_u32 s{sT1}, s{sT1}, {LDS_SP}")
        A(f"v_and_b32 v{t2}, 1, v{t1}")
        A(f"v_lshlrev_b32 v{t2}, 3, v{t2}")
        A(f"v_lshl_add_u32 v{t2}, v{t0}, 8, v{t2}")
        A(f"v_add_u32 v{t2}, s{sT1}, v{t2}")
        A(f"v_lshrrev_b32 v{t1}, 1, v{t1}")
        for dt in range(8):
            A(f"v_add_u32 v{dt}, {2 * dt}, v{t1}")
            A(f"v_xor_b32 v{dt}, v{dt}, v{t0}")
            A(f"v_lshl_add_u32 v{dt}, v{dt}, 4, v{t2}")
        A(f"v_lshrrev_b32 v{t1}, 4, v{lane}")
        for i in range(4):
            A(f"v_add_u32 v{8 + i}, {4 * i}, v{t1}")
            A(f"v_xor_b32 v{t2}, v{8 + i}, v{t0}")
            A(f"v_lshlrev_b32 v{t2}, 4, v{t2}")
            A(f"v_lshl_add_u32 v{8 + i}, v{8 + i}, 8, v{t2}")
            A(f"v_add_u32 v{8 + i}, s{sT1}, v{8 + i}")
        A(f"v_lshlrev_b32 v12, 4, v{lane}")

    def store_unit(self, u, rinv, rowoff_sreg):
        A = self.A
        tb = 16
        for dt in range(8):
            for r in range(4):
                A(f"v_accvgpr_read_b32 v{tb + r}, a{aO + 32 * u + 4 * dt + r}")
            for r in range(4):
                A(f"v_mul_f32 v{tb + r}, v{tb + r}, v{rinv}")
            p = tb + 8 + 2 * dt
            A(f"v_cvt_pk_bf16_f32 v{p}, v{tb}, v{tb + 1}")
            A(f"v_cvt_pk_bf16_f32 v{p + 1}, v{tb + 2}, v{tb + 3}")
            A(f"ds_write_b64 v{dt}, {self.vr(p, 2)}")
        A("s_waitcnt lgkmcnt(0)")
        rb = 48
        for i in range(4):
            A(f"ds_read_b128 {self.vr(rb + 4 * i)}, v{8 + i}")
        nt = " nt" if self.cfg.st_nt else ""
        for i in range(4):
            A(f"s_waitcnt lgkmcnt({3 - i})")
            A(f"buffer_store_dwordx4 {self.vr(rb + 4 * i)}, v12, s[{sO}:{sO + 3}], s{rowoff_sreg} offen offset:{i * 1024}{nt}")

    def check_l(self, reg):
        A = self.A
        A(f"v_cmp_nge_f32 vcc, v{reg}, v{vT + 6}")
        A("s_nop 1")
        A(f"s_or_b64 s[{sBad}:{sBad + 1}], s[{sBad}:{sBad + 1}], vcc")
        A(f"v_cmp_nle_f32 vcc, v{reg}, v{vT + 7}")
        A("s_nop 1")
        A(f"s_or_b64 s[{sBad}:{sBad + 1}], s[{sBad}:{sBad + 1}], vcc")

    def epilogue(self):
        A = self.A
        cfg = self.cfg
        lane = vT + 8
        self.label("L_epi")
        A("s_nop 7")
        A("s_waitcnt vmcnt(0) lgkmcnt(0)")
        A(f"v_mbcnt_lo_u32_b32 v{lane}, -1, 0")
        A(f"v_mbcnt_hi_u32_b32 v{lane}, -1, v{lane}")
        A(f"s_lshl_b32 s{sT1}, s{sWave}, 10")
        A(f"v_lshlrev_b32 v{vT}, 4, v{lane}")
        A(f"v_add_u32 v{vT}, s{sT1}, v{vT}")
        for i in range(8):
            for r in range(4):
                A(f"v_accvgpr_read_b32 v{64 + 4 * i + r}, a{aO + 32 * 5 + 4 * i + r}")
        A(f"v_accvgpr_read_b32 v{96}, a{self.aLidx[5]}")
        for i in range(8):
            A(f"ds_write_b128 v{vT}, {self.vr(64 + 4 * i)} offset:{i * 4096}")
        A(f"v_mov_b32 v{vT + 6}, s{sThrLo}")
        A(f"v_mov_b32 v{vT + 7}, s{sThrHi}")
        A(f"s_mov_b64 s[{sBad}:{sBad + 1}], 0")
        for u in range(5):
            if u in self.ones:
                A(f"v_accvgpr_read_b32 v{vL + u}, a{self.aLidx[u]}")
            else:
                self.rowsum_reduce(vL + u, vT + 1)
            A("s_nop 0")
            self.check_l(vL + u)
        if cfg.force_fallback:
            A(f"s_mov_b64 s[{sBad}:{sBad + 1}], -1")
        A(f"s_cmp_lg_u64 s[{sBad}:{sBad + 1}], 0")
        A(f"s_cselect_b32 s{sT2}, 1, 0")
        A(f"v_mov_b32 v97, s{sT2}")
        A(f"ds_write_b64 v{vT}, v[96:97] offset:32768")
        self.store_setup()
        for u in range(5):
            A(f"v_rcp_f32 v{vT + 2}, v{vL + u}")
            A(f"s_mul_i32 s{sT3}, s{sWave}, {80 * 256}")
            A(f"s_add_u32 s{sT3}, s{sT3}, {u * 4096}")
            self.store_unit(u, vT + 2, sT3)
        A("s_waitcnt lgkmcnt(0)")
        A("s_barrier")
        A(f"v_lshlrev_b32 v{vT}, 4, v{lane}")
        for ww in range(4):
            A(f"ds_read_b64 {self.vr(98 + 2 * ww, 2)}, v{vT} offset:{32768 + ww * 1024}")
        A(f"s_lshl_b32 s{sT1}, s{sWave}, 13")
        A(f"v_add_u32 v{vT + 1}, s{sT1}, v{vT}")
        for ww in range(4):
            for i in range(2):
                A(f"ds_read_b128 {self.vr(64 + 8 * ww + 4 * i)}, v{vT + 1} offset:{i * 4096 + ww * 1024}")
        A("s_waitcnt lgkmcnt(0)")
        A(f"v_add_f32 v98, v98, v100")
        A(f"v_add_f32 v102, v102, v104")
        A(f"v_or_b32 v99, v99, v101")
        A(f"v_or_b32 v103, v103, v105")
        A(f"v_add_f32 v98, v98, v102")
        A(f"v_or_b32 v99, v99, v103")
        A(f"s_mov_b64 s[{sBad}:{sBad + 1}], 0")
        A("s_nop 0")
        self.check_l(98)
        A(f"v_cmp_ne_u32 vcc, 0, v99")
        A("s_nop 1")
        A(f"s_or_b64 s[{sBad}:{sBad + 1}], s[{sBad}:{sBad + 1}], vcc")
        A(f"s_cmp_lg_u64 s[{sBad}:{sBad + 1}], 0")
        if cfg.fallback:
            A("s_cbranch_scc1 L_fallback")
        for r in range(8):
            A(f"v_add_f32 v{64 + r}, v{64 + r}, v{72 + r}")
            A(f"v_add_f32 v{80 + r}, v{80 + r}, v{88 + r}")
        A(f"v_rcp_f32 v{vT + 2}, v98")
        for r in range(8):
            A(f"v_add_f32 v{64 + r}, v{64 + r}, v{80 + r}")
        for r in range(8):
            A(f"v_mul_f32 v{64 + r}, v{64 + r}, v{vT + 2}")
        for r in range(4):
            A(f"v_cvt_pk_bf16_f32 v{72 + r}, v{64 + 2 * r}, v{65 + 2 * r}")
        A("s_nop 1")
        A(f"v_permlane16_swap_b32 v72, v74")
        A(f"v_permlane16_swap_b32 v73, v75")
        A(f"v_and_b32 v{vT}, 15, v{lane}")
        A(f"v_lshrrev_b32 v{vT + 1}, 4, v{lane}")
        A(f"v_lshlrev_b32 v{vT}, 8, v{vT}")
        A(f"v_and_b32 v{vT + 3}, 1, v{vT + 1}")
        A(f"v_lshl_add_u32 v{vT}, v{vT + 3}, 5, v{vT}")
        A(f"v_lshrrev_b32 v{vT + 3}, 1, v{vT + 1}")
        A(f"v_lshl_add_u32 v{vT}, v{vT + 3}, 4, v{vT}")
        A(f"s_lshl_b32 s{sT1}, s{sWave}, 6")
        A(f"s_add_u32 s{sT1}, s{sT1}, {320 * 256}")
        nt = " nt" if cfg.st_nt else ""
        A(f"buffer_store_dwordx4 v[72:75], v{vT}, s[{sO}:{sO + 3}], s{sT1} offen{nt}")
        self.finish()

    def finish(self):
        A = self.A
        if self.cfg.stamps:
            A("s_waitcnt vmcnt(0)")
            A(f"s_memrealtime s[{sArg}:{sArg + 1}]")
            A(f"s_memtime s[{sArg + 2}:{sArg + 3}]")
            A("s_waitcnt lgkmcnt(0)")
            A(f"s_sub_u32 s{sArg + 2}, s{sArg + 2}, s{sStamp + 2}")
            A(f"s_sub_u32 s{sArg + 4}, s{sStamp + 4}, s{sStamp + 2}")
            A(f"s_sub_u32 s{sArg + 5}, s{sStamp + 6}, s{sStamp + 4}")
            A(f"v_mov_b32 v64, s{sStamp}")
            A(f"v_mov_b32 v65, s{sArg}")
            A(f"v_mov_b32 v66, s{sArg + 2}")
            A(f"v_mov_b32 v67, s{sArg + 4}")
            A(f"v_mov_b32 v68, s{sArg + 5}")
            A(f"v_mov_b32 v69, s{sWave}")
            A(f"v_mov_b32 v70, 0")
            A(f"v_mov_b32 v71, 0")
            A(f"s_lshl_b32 s{sT1}, s2, 5")
            A(f"s_lshl_b32 s{sT2}, s{sWave}, 13")
            A(f"s_add_u32 s{sT1}, s{sT1}, s{sT2}")
            A(f"v_mov_b32 v72, s{sT1}")
            A(f"v_mbcnt_lo_u32_b32 v73, -1, 0")
            A(f"v_mbcnt_hi_u32_b32 v73, -1, v73")
            A(f"v_cmp_eq_u32 vcc, 0, v73")
            A(f"s_and_saveexec_b64 s[{sTmp64}:{sTmp64 + 1}], vcc")
            A(f"buffer_store_dwordx4 v[64:67], v72, s[{sW_}:{sW_ + 3}], 0 offen")
            A(f"buffer_store_dwordx4 v[68:71], v72, s[{sW_}:{sW_ + 3}], 0 offen offset:16")
        A("s_branch L_end")

    def fallback(self):
        A = self.A
        lane = vT + 8
        vM = 152
        vM = 140
        self.label("L_fallback")
        A("s_waitcnt vmcnt(0) lgkmcnt(0)")
        A("s_barrier")
        for u in range(6):
            A(f"v_mov_b32 v{vM + u}, 0xff800000")
        self.zero_acc()
        for ps in range(2):
            A(f"s_lshl_b32 s{sSlot}, s{sWave}, 10")
            A(f"s_mov_b32 s{sGoff}, 0")
            A(f"s_mov_b32 s{sLoop}, {NTILES}")
            self.label(f"L_fb{ps}")
            A("s_barrier")
            self.dma_tile_simple('K')
            if ps == 1:
                self.dma_tile_simple('V')
            A(f"s_add_u32 s{sGoff}, s{sGoff}, 16384")
            A("s_waitcnt vmcnt(0)")
            A("s_barrier")
            for L in range(2):
                for t in range(2):
                    for j in range(4):
                        A(self.k_read(0, L, 0, t, j))
                if ps == 1:
                    for dt in range(8):
                        for t in range(2):
                            A(self.v_read(0, L, 0, t, dt))
                A("s_waitcnt lgkmcnt(0)")
                for u in range(6):
                    for t in range(2):
                        for j in range(4):
                            A(self.qk_mfma(u, 0, 0, t, j))
                    A("s_nop 7")
                    A("s_nop 3")
                    if ps == 0:
                        for k in range(8):
                            A(f"v_max_f32 v{vM + u}, v{vM + u}, v{vS + k}")
                    else:
                        for k in range(8):
                            A(f"v_sub_f32 v{vS + k}, v{vS + k}, v{vM + u}")
                        for k in range(8):
                            A(f"v_exp_f32 v{vS + k}, v{vS + k}")
                        A("s_nop 0")
                        for k in range(8):
                            A(f"v_add_f32 v{vL + u}, v{vL + u}, v{vS + k}")
                        for k in range(4):
                            A(f"v_cvt_pk_bf16_f32 v{vP + k}, v{vS + 2 * k}, v{vS + 2 * k + 1}")
                        A("s_nop 1")
                        for dt in range(8):
                            A(self.pv_mfma(u, 0, 0, dt))
                    A("s_nop 3")
            A("s_waitcnt lgkmcnt(0)")
            A(f"s_sub_u32 s{sLoop}, s{sLoop}, 1")
            A(f"s_cmp_lg_u32 s{sLoop}, 0")
            A(f"s_cbranch_scc1 L_fb{ps}")
            if ps == 0:
                for u in range(6):
                    self.rowmax_reduce(vM + u, vT + 1)
        A("s_nop 7")
        A("s_nop 7")
        A("s_barrier")
        A(f"v_mbcnt_lo_u32_b32 v{lane}, -1, 0")
        A(f"v_mbcnt_hi_u32_b32 v{lane}, -1, v{lane}")
        for u in range(6):
            self.rowsum_reduce(vL + u, vT + 1)
        self.store_setup()
        for u in range(6):
            if u == 5:
                A(f"s_cmp_lg_u32 s{sWave}, 0")
                A("s_cbranch_scc1 L_fb_done")
            A(f"v_rcp_f32 v{vT + 2}, v{vL + u}")
            if u < 5:
                A(f"s_mul_i32 s{sT3}, s{sWave}, {80 * 256}")
                A(f"s_add_u32 s{sT3}, s{sT3}, {u * 4096}")
            else:
                A(f"s_mov_b32 s{sT3}, {320 * 256}")
            self.store_unit(u, vT + 2, sT3)
        self.label("L_fb_done")
        self.finish()

    def generate(self):
        A = self.A
        self.prologue()
        A(f"s_cmp_ge_u32 s{sWave}, 2")
        A("s_cbranch_scc1 L_cls1")
        self.main_loop(0)
        st0 = dict(self.stats)
        A("s_branch L_epi")
        self.label("L_cls1")
        self.main_loop(1)
        st1 = dict(self.stats)
        self.epilogue()
        if self.cfg.fallback:
            self.fallback()
        self.label("L_end")
        A("s_endpgm")
        hdr = open("standalone__gqa_softmax__near_ridge.s.ref").read().split("; Override")[0]
        txt = hdr
        txt += "; Override launch geometry by editing the next line.\n"
        txt += f"; @launch grid=(256,1,1) block=(256,1,1) lds={LDS_TOTAL}\n"
        txt += '.amdgcn_target "amdgcn-amd-amdhsa--gfx950"\n.text\n'
        txt += f".globl {NAME}\n.p2align 8\n.type {NAME},@function\n{NAME}:\n"
        for x in self.L:
            txt += (x if x.endswith(":") else "    " + x) + "\n"
        txt += '.section .rodata,"a"\n.p2align 6\n'
        txt += f""".amdhsa_kernel {NAME}
  .amdhsa_next_free_vgpr 512
  .amdhsa_next_free_sgpr 96
  .amdhsa_accum_offset 256
  .amdhsa_group_segment_fixed_size 0
  .amdhsa_kernarg_size 48
  .amdhsa_user_sgpr_count 2
  .amdhsa_user_sgpr_kernarg_segment_ptr 1
  .amdhsa_system_sgpr_workgroup_id_x 1
.end_amdhsa_kernel
"""
        return txt, st0, st1


if __name__ == "__main__":
    ap = argparse.ArgumentParser()
    ap.add_argument("-o", default="k.s")
    ap.add_argument("--stamps", action="store_true")
    ap.add_argument("--ones", default="0")
    ap.add_argument("--force-fallback", action="store_true")
    ap.add_argument("--set", action="append", default=[])
    a = ap.parse_args()
    kw = dict(stamps=a.stamps, force_fallback=a.force_fallback,
              ones_units=tuple(int(x) for x in a.ones.split(",") if x != ""))
    for s in a.set:
        k, v = s.split("=")
        kw[k] = eval(v)
    g = Gen(Cfg(**kw))
    txt, st0, st1 = g.generate()
    open(a.o, "w").write(txt)
    print("generated", a.o, st0, st1, "lines", txt.count("\n"), file=sys.stderr)
```

```python
import sys, math, argparse

NAME = "standalone__gqa_softmax__near_ridge_kernel"
SQ, SK, D = 336, 2048, 128
NTILES = SK // 64
QBYTES = SQ * D * 2
KBYTES = SK * D * 2
LDS_K = 0
LDS_V = 65536
LDS_SP = 131072
LDS_TOTAL = 163840
CSCALE = math.log2(math.e) / math.sqrt(D)


def f32hex(x):
    import struct
    return "0x%08x" % struct.unpack("<I", struct.pack("<f", x))[0]


class Cfg:
    def __init__(self, **kw):
        self.ones_units = (0,)
        self.stamps = False
        self.nt = True
        self.order = (1, 0, 2, 3, 4)
        self.shared_pos = 2
        self.fallback = True
        self.force_fallback = False
        self.bar_shift = 4
        self.lo_thr = 2.0 ** -20
        self.hi_thr = 2.0 ** 100
        self.st_nt = True
        self.delta = 5
        self.iter_stamps = False
        self.exp_noepi = False
        self.exp_noq = False
        for k, v in kw.items():
            assert hasattr(self, k), k
            setattr(self, k, v)


sQ, sK, sV, sO, sW_ = 8, 12, 16, 20, 24
sWave = 28
sLoop = 29
sGoff = 30
sSlot = 31
sT0, sT1, sT2, sT3 = 32, 33, 34, 35
sArg = 36
sBad = 44
sTmp64 = 46
sSoff = 48
sStamp = 50
sP = 58
sC = 60
sThrLo, sThrHi = 62, 63
sMask = 64
sPass = 65
sPS = 66

vKF = 0
vVF = 64
vS = 128
vP = 152
vOnes = 164
vKA = 168
vVA = 170
vDK = 174
vDV = 175
vL = 176
vT = 182
vZero = 4
vChk = 8
vQ = 192
NQV = 4

aO = 0
aL = 192


class Gen:
    def __init__(self, cfg):
        self.cfg = cfg
        self.L = []
        self.uid = 0
        self.stamp_names = []
        ones = list(cfg.ones_units) + [5]
        self.ones = ones
        self.aLidx = {u: aL + 4 * i for i, u in enumerate(ones)}
        top = aL + 4 * len(ones)
        self.qloc = {}
        for u in range(6):
            if u < NQV:
                self.qloc[u] = ('v', vQ + 16 * u)
            else:
                self.qloc[u] = ('a', top + 16 * (u - NQV))
        assert top + 16 * (6 - NQV) <= 256

    def A(self, s):
        self.L.append(s)

    def label(self, s):
        self.L.append(s + ":")

    def q(self, u, j):
        f, b = self.qloc[u]
        return f"{f}[{b + 4 * j}:{b + 4 * j + 3}]"

    @staticmethod
    def vr(b, n=4):
        return f"v[{b}:{b + n - 1}]"

    @staticmethod
    def ar(b, n=4):
        return f"a[{b}:{b + n - 1}]"

    def stamp(self, name):
        if not self.cfg.stamps:
            return
        if self.cfg.iter_stamps and name in ("iss8", "setup", "iss24", "q0_arr", "piece_arr"):
            return
        i = len(self.stamp_names)
        assert i < 17
        self.stamp_names.append(name)
        self.A(f"s_memtime s[{sPS + 2 * i}:{sPS + 2 * i + 1}]")

    def qk_mfma(self, u, sbuf, kbuf, t, j):
        d = vS + 8 * sbuf + 4 * t
        a = vKF + 32 * kbuf + 16 * t + 4 * j
        c = "0" if j == 0 else self.vr(d)
        return f"v_mfma_f32_16x16x32_bf16 {self.vr(d)}, {self.vr(a)}, {self.q(u, j)}, {c}"

    def pv_mfma(self, u, pbuf, vbuf, dt):
        d = aO + 32 * u + 4 * dt
        a = vVF + 32 * vbuf + 4 * dt
        b = vP + 4 * pbuf
        return f"v_mfma_f32_16x16x32_bf16 {self.ar(d)}, {self.vr(a)}, {self.vr(b)}, {self.ar(d)}"

    def ones_mfma(self, u, pbuf):
        d = self.aLidx[u]
        b = vP + 4 * pbuf
        return f"v_mfma_f32_16x16x32_bf16 {self.ar(d)}, {self.vr(vOnes)}, {self.vr(b)}, {self.ar(d)}"

    def k_read(self, kbuf, L, slotpar, t, j):
        d = vKF + 32 * kbuf + 16 * t + 4 * j
        off = slotpar * 16384 + t * 4096 + (j // 2) * 2048 + (j % 2) * 512
        return f"ds_read_b128 {self.vr(d)}, v{vKA + L} offset:{off}"

    def v_read(self, vbuf, L, slotpar, t, dt):
        d = vVF + 32 * vbuf + 4 * dt + 2 * t
        off = slotpar * 16384 + t * 4096 + (dt // 2) * 512
        return f"ds_read_b64_tr_b16 {self.vr(d, 2)}, v{vVA + 2 * L + (dt % 2)} offset:{off}"

    def dma(self, which):
        nt = " nt" if self.cfg.nt else ""
        if which == 'K':
            return f"buffer_load_dwordx4 v{vDK}, s[{sK}:{sK + 3}], s{sSoff} offen{nt} lds"
        return f"buffer_load_dwordx4 v{vDV}, s[{sV}:{sV + 3}], s{sSoff} offen{nt} lds"

    def dma_tile_simple(self, which):
        base = LDS_K if which == 'K' else LDS_V
        for m in range(4):
            self.A(f"s_add_u32 m0, s{sSlot}, {base + m * 4096}")
            self.A(f"s_add_u32 s{sSoff}, s{sGoff}, {m * 4096}")
            self.A(self.dma(which))

    def advance_tile(self):
        return [f"s_add_u32 s{sGoff}, s{sGoff}, 16384",
                f"s_add_u32 s{sSlot}, s{sSlot}, 16384",
                f"s_and_b32 s{sSlot}, s{sSlot}, 0xffff"]

    def q_process(self, u, tq):
        A = self.A
        f, b = self.qloc[u]
        tmp = vS
        for r0 in range(0, 16, 4):
            for r in range(4):
                A(f"v_lshlrev_b32 v{tmp + 2 * r}, 16, v{tq + r0 + r}")
                A(f"v_and_b32 v{tmp + 2 * r + 1}, s{sMask}, v{tq + r0 + r}")
            for r in range(4):
                A(f"v_pk_mul_f32 v[{tmp + 2 * r}:{tmp + 2 * r + 1}], v[{tmp + 2 * r}:{tmp + 2 * r + 1}], s[{sC}:{sC + 1}]")
            for r in range(4):
                if f == 'v':
                    A(f"v_cvt_pk_bf16_f32 v{b + r0 + r}, v{tmp + 2 * r}, v{tmp + 2 * r + 1}")
                else:
                    A(f"v_cvt_pk_bf16_f32 v{tmp + 8 + r}, v{tmp + 2 * r}, v{tmp + 2 * r + 1}")
            if f == 'a':
                for r in range(4):
                    A(f"v_accvgpr_write_b32 a{b + r0 + r}, v{tmp + 8 + r}")

    def prologue(self):
        A = self.A
        cfg = self.cfg
        nt = " nt" if cfg.nt else ""
        A("s_cmp_ge_u32 s2, 256")
        A("s_cbranch_scc1 L_end")
        A(f"s_load_dwordx8 s[{sArg}:{sArg + 7}], s[0:1], 0")
        if cfg.stamps:
            A(f"s_load_dwordx2 s[{sW_}:{sW_ + 1}], s[0:1], 40")
            A(f"s_memrealtime s[{sStamp}:{sStamp + 1}]")
            A(f"s_memtime s[{sStamp + 2}:{sStamp + 3}]")
        t0, t1, t2, t3, t4, t5 = vT, vT + 1, vT + 2, vT + 3, vT + 4, vT + 5
        lane = vT + 8
        for i in range(4):
            A(f"v_mov_b32 v{vP + i}, 0")
        nacc = aL + 4 * len(self.ones)
        zlist = [f"v_mfma_f32_32x32x16_bf16 a[{16 * i}:{16 * i + 15}], v[{vP}:{vP + 3}], v[{vP}:{vP + 3}], 0"
                 for i in range((nacc + 15) // 16)]
        assert 16 * len(zlist) <= self.qloc[4][1] + 12 or True
        pre = []
        P = pre.append
        P(f"v_and_b32 v{lane}, 63, v0")
        P(f"v_lshrrev_b32 v{t0}, 6, v0")
        P(f"v_lshrrev_b32 v{t1}, 5, v{lane}")
        P(f"v_readfirstlane_b32 s{sWave}, v{t0}")
        P(f"v_lshlrev_b32 v{t0}, 6, v{t1}")
        P(f"v_bfe_u32 v{t1}, v{lane}, 2, 3")
        P(f"v_and_b32 v{t2}, 3, v{lane}")
        P(f"v_lshl_add_u32 v{t0}, v{t1}, 8, v{t0}")
        P(f"v_lshrrev_b32 v{t3}, 2, v{t1}")
        for rh in range(2):
            P(f"v_add_u32 v{t4}, {2 * rh}, v{t3}")
            P(f"v_sub_u32 v{t4}, 0, v{t4}")
            P(f"v_and_b32 v{t4}, 3, v{t4}")
            P(f"v_xor_b32 v{t4}, v{t4}, v{t2}")
            P(f"v_lshl_add_u32 v{t4}, v{t4}, 4, v{t0}")
            P(f"v_add_u32 v{vT + 6 + rh}, {rh * 2048}, v{t4}")
        P(f"s_and_b32 s{sP}, s{sWave}, 1")
        P(f"s_lshr_b32 s{sT0}, s{sWave}, 1")
        P(f"s_cmp_eq_u32 s{sP}, 0")
        P(f"s_cselect_b64 s[{sTmp64}:{sTmp64 + 1}], -1, 0")
        P(f"v_cndmask_b32 v{vDK}, v{vT + 7}, v{vT + 6}, s[{sTmp64}:{sTmp64 + 1}]")
        P(f"s_lshl_b32 s{sT1}, s{sT0}, 7")
        P(f"v_add_u32 v{vDK}, s{sT1}, v{vDK}")
        P(f"s_lshl_b32 s{sSlot}, s{sWave}, 10")
        P(f"s_mov_b32 s{sGoff}, 0")
        P(f"s_mul_i32 s{sT1}, s2, {QBYTES}")
        P(f"s_lshl_b32 s{sT2}, s2, 19")
        zi = 0
        for i, x in enumerate(pre):
            A(x)
            if i % 3 == 2 and zi < len(zlist):
                A(zlist[zi]); zi += 1
        while zi < len(zlist):
            A(zlist[zi]); zi += 1

        def srd(reg, arg, off, size):
            A(f"s_add_u32 s{reg}, s{arg}, s{off}")
            A(f"s_addc_u32 s{reg + 1}, s{arg + 1}, 0")
            A(f"s_and_b32 s{reg + 1}, s{reg + 1}, 0xffff")
            A(f"s_mov_b32 s{reg + 2}, {size}")
            A(f"s_mov_b32 s{reg + 3}, 0x20000")
        A("s_waitcnt lgkmcnt(0)")
        self.stamp("karg")
        srd(sK, sArg + 2, sT2, KBYTES)
        self.dma_tile_simple('K')
        if cfg.exp_noq:
            A(f"s_mov_b32 s{sTmp64}, 0")
            srd(sQ, sArg, sTmp64, QBYTES)
        else:
            srd(sQ, sArg, sT1, QBYTES)
        sW13, sW12, sRow = sT0, sT3, sPass
        A(f"s_lshl_b32 s{sW13}, s{sWave}, 13")
        A(f"s_lshl_b32 s{sW12}, s{sWave}, 12")
        A(f"s_mul_i32 s{sRow}, s{sWave}, {80 * 256}")
        stage = {0: (sW13, LDS_SP), 1: (sW13, LDS_SP + 4096), 2: (sW12, LDS_K + 49152), 3: (sW12, LDS_V + 49152),
                 4: (sW13, LDS_SP + 4096)}

        def q_dma(u):
            sreg, base = stage[u]
            if cfg.exp_noq:
                for jp in range(2):
                    for rh in range(2):
                        A(f"s_add_u32 m0, s{sreg}, {base + jp * 2048 + rh * 1024}")
                        A(f"s_mov_b32 s{sSoff}, {jp * 128}")
                        A(f"buffer_load_dwordx4 v{vT + 6 + rh}, s[{sQ}:{sQ + 3}], s{sSoff} offen lds")
                return
            for jp in range(2):
                for rh in range(2):
                    A(f"s_add_u32 m0, s{sreg}, {base + jp * 2048 + rh * 1024}")
                    A(f"s_add_u32 s{sSoff}, s{sRow}, {u * 4096 + jp * 128}")
                    A(f"buffer_load_dwordx4 v{vT + 6 + rh}, s[{sQ}:{sQ + 3}], s{sSoff} offen{nt} lds")
        def kv_group(which, tile):
            base = LDS_K if which == 'K' else LDS_V
            for m in range(4):
                A(f"s_add_u32 m0, s{sSlot}, {base + (tile % 4) * 16384 + m * 4096}")
                A(f"s_mov_b32 s{sSoff}, {tile * 16384 + m * 4096}")
                A(self.dma(which))
        q_dma(0)
        self.stamp("iss8")
        srd(sV, sArg + 4, sT2, KBYTES)
        srd(sO, sArg + 6, sT1, QBYTES)
        if cfg.stamps:
            A(f"s_and_b32 s{sW_ + 1}, s{sW_ + 1}, 0xffff")
            A(f"s_mov_b32 s{sW_ + 2}, 0x100000")
            A(f"s_mov_b32 s{sW_ + 3}, 0x20000")
        A(f"v_bfe_u32 v{t0}, v{lane}, 4, 1")
        A(f"v_bfe_u32 v{t1}, v{lane}, 2, 2")
        A(f"v_lshl_add_u32 v{t1}, v{t0}, 2, v{t1}")
        A(f"v_bfe_u32 v{t2}, v{lane}, 1, 1")
        A(f"v_xor_b32 v{t2}, v{t2}, v{t0}")
        A(f"v_and_b32 v{t3}, 1, v{lane}")
        A(f"v_lshl_add_u32 v{t2}, v{t2}, 1, v{t3}")
        A(f"v_lshrrev_b32 v{t3}, 5, v{lane}")
        A(f"v_lshl_add_u32 v{t2}, v{t3}, 2, v{t2}")
        A(f"v_lshlrev_b32 v{t2}, 4, v{t2}")
        A(f"v_lshl_add_u32 v{vDV}, v{t1}, 8, v{t2}")
        A(f"s_lshr_b32 s{sTmp64}, s{sWave}, 1")
        A(f"s_lshl_b32 s{sTmp64}, s{sTmp64}, 11")
        A(f"s_lshl_b32 s{sTmp64 + 1}, s{sP}, 7")
        A(f"s_add_u32 s{sTmp64}, s{sTmp64}, s{sTmp64 + 1}")
        A(f"v_add_u32 v{vDV}, s{sTmp64}, v{vDV}")
        kaddr = vT + 9
        k5addr = vT + 5
        A(f"v_and_b32 v{t0}, 15, v{lane}")
        A(f"v_lshrrev_b32 v{t1}, 4, v{lane}")
        A(f"v_lshrrev_b32 v{t2}, 2, v{t0}")
        A(f"v_sub_u32 v{t2}, 0, v{t2}")
        A(f"v_and_b32 v{t2}, 3, v{t2}")
        A(f"v_xor_b32 v{t2}, v{t2}, v{t1}")
        A(f"v_lshlrev_b32 v{t2}, 4, v{t2}")
        A(f"v_and_b32 v{t3}, 7, v{t0}")
        A(f"v_lshl_add_u32 v{t2}, v{t3}, 6, v{t2}")
        A(f"v_lshrrev_b32 v{t3}, 3, v{t0}")
        A(f"v_lshl_add_u32 v{kaddr}, v{t3}, 10, v{t2}")
        A(f"v_lshl_add_u32 v{k5addr}, v{t3}, 13, v{t2}")
        A(f"v_add_u32 v{k5addr}, {LDS_SP}, v{k5addr}")
        sA, sB = sTmp64, sTmp64 + 1
        A(f"s_lshl_b32 s{sA}, s{sP}, 13")
        A(f"s_xor_b32 s{sB}, s{sA}, 8192")
        A(f"v_add_u32 v{vKA}, s{sA}, v{kaddr}")
        A(f"v_add_u32 v{vKA + 1}, s{sB}, v{kaddr}")
        A(f"v_lshrrev_b32 v{t2}, 1, v{t1}")
        A(f"v_lshlrev_b32 v{t2}, 11, v{t2}")
        A(f"v_and_b32 v{t3}, 1, v{t1}")
        A(f"v_lshl_add_u32 v{t2}, v{t3}, 8, v{t2}")
        A(f"v_lshrrev_b32 v{t4}, 2, v{t0}")
        A(f"v_lshl_add_u32 v{t2}, v{t4}, 6, v{t2}")
        A(f"v_and_b32 v{t4}, 3, v{t0}")
        A(f"v_lshl_add_u32 v{t2}, v{t4}, 3, v{t2}")
        A(f"v_add_u32 v{t2}, {LDS_V}, v{t2}")
        for pi in range(2):
            A(f"v_xor_b32 v{t4}, {pi}, v{t3}")
            A(f"v_lshl_add_u32 v{t4}, v{t4}, 5, v{t2}")
            A(f"v_add_u32 v{vVA + pi}, s{sA}, v{t4}")
            A(f"v_add_u32 v{vVA + 2 + pi}, s{sB}, v{t4}")
        A(f"s_mov_b32 s{sC}, {f32hex(CSCALE)}")
        A(f"s_mov_b32 s{sC + 1}, {f32hex(CSCALE)}")
        A(f"s_mov_b32 s{sMask}, 0xffff0000")
        A(f"s_mov_b32 s{sThrLo}, {f32hex(cfg.lo_thr)}")
        A(f"s_mov_b32 s{sThrHi}, {f32hex(cfg.hi_thr)}")
        for i in range(4):
            A(f"v_mov_b32 v{vOnes + i}, 0x3f803f80")
        for i in range(6):
            A(f"v_mov_b32 v{vL + i}, 0")
        for i in range(4, 12):
            A(f"v_mov_b32 v{vP + i}, 0")
        for i in range(32):
            A(f"v_mov_b32 v{vVF + 32 + i}, 0")
        qa = {}
        aregs = [vS + 16, vS + 17, vS + 18, vS + 19]
        for u in range(4):
            sreg, base = stage[u]
            A(f"v_add_u32 v{aregs[u]}, s{sreg}, v{kaddr}")
            A(f"v_add_u32 v{aregs[u]}, {base}, v{aregs[u]}")
            qa[u] = aregs[u]
        qa[4] = aregs[1]
        plin = vS + 20
        A(f"v_lshlrev_b32 v{plin}, 4, v{lane}")
        A(f"v_add_u32 v{plin}, s{sW13}, v{plin}")
        A(f"v_add_u32 v{plin}, {LDS_SP}, v{plin}")
        self.stamp("setup")
        kv_group('V', 0)
        q_dma(1)
        q_dma(2)
        q_dma(3)
        self.stamp("iss24")

        def q_read(u, tq):
            for j in range(4):
                A(f"ds_read_b128 {self.vr(tq + 4 * j)}, v{qa[u]} offset:{(j // 2) * 2048 + (j % 2) * 512}")
        tq = [vKF + 32, vKF + 48]
        A("s_waitcnt vmcnt(16)")
        self.stamp("q0_arr")
        q_read(0, tq[0])
        A("s_waitcnt lgkmcnt(0)")
        A(f"s_add_u32 m0, s{sW13}, {LDS_SP}")
        A(f"s_lshr_b32 s{sSoff}, s{sWave}, 1")
        A(f"s_lshl_b32 s{sSoff}, s{sSoff}, 7")
        A(f"s_add_u32 s{sSoff}, s{sSoff}, {320 * 256}")
        A(f"s_cmp_eq_u32 s{sP}, 0")
        A(f"s_cselect_b64 s[{sBad}:{sBad + 1}], -1, 0")
        A(f"v_cndmask_b32 v{t0}, v{vT + 7}, v{vT + 6}, s[{sBad}:{sBad + 1}]")
        A(f"buffer_load_dwordx4 v{t0}, s[{sQ}:{sQ + 3}], s{sSoff} offen{nt} lds")
        self.q_process(0, tq[0])
        A("s_waitcnt vmcnt(9)")
        q_read(1, tq[1])
        A("s_waitcnt lgkmcnt(0)")
        q_dma(4)
        self.q_process(1, tq[1])
        A("s_waitcnt vmcnt(9)")
        q_read(2, tq[0])
        A("s_waitcnt lgkmcnt(0)")
        self.q_process(2, tq[0])
        kv_group('K', 1)
        A("s_waitcnt vmcnt(9)")
        q_read(3, tq[1])
        A("s_waitcnt lgkmcnt(0)")
        self.q_process(3, tq[1])
        kv_group('V', 1)
        A("s_waitcnt vmcnt(12)")
        self.stamp("piece_arr")
        w = tq[1]
        A(f"ds_read_b128 {self.vr(w)}, v{plin}")
        A("s_waitcnt lgkmcnt(0)")
        for r in range(4):
            A(f"v_lshlrev_b32 v{vS + 2 * r}, 16, v{w + r}")
            A(f"v_and_b32 v{vS + 2 * r + 1}, s{sMask}, v{w + r}")
        for r in range(4):
            A(f"v_pk_mul_f32 v[{vS + 2 * r}:{vS + 2 * r + 1}], v[{vS + 2 * r}:{vS + 2 * r + 1}], s[{sC}:{sC + 1}]")
        for r in range(4):
            A(f"v_cvt_pk_bf16_f32 v{w + r}, v{vS + 2 * r}, v{vS + 2 * r + 1}")
        A(f"ds_write_b128 v{plin}, {self.vr(w)}")
        A("s_waitcnt lgkmcnt(0)")
        A("s_barrier")
        self.stamp("bar")
        for t in range(2):
            for j in range(4):
                A(self.k_read(0, 0, 0, t, j))
        for j in range(4):
            A(f"ds_read_b128 {self.q(5, j)}, v{k5addr} offset:{(j // 2) * 16384 + (j % 2) * 512}")
        for dt in range(8):
            for t in range(2):
                A(self.v_read(0, 0, 0, t, dt))
        A("s_waitcnt vmcnt(8)")
        self.stamp("q4_arr")
        q_read(4, tq[0])
        A("s_waitcnt lgkmcnt(0)")
        self.q_process(4, tq[0])
        self.stamp("q_done")
        if cfg.delta == 5:
            kv_group('K', 2)
            A(f"s_mov_b32 s{sGoff}, {2 * 16384}")
            A(f"s_add_u32 s{sSlot}, s{sSlot}, {2 * 16384}")
        else:
            A("s_barrier")
            kv_group('K', 2)
            kv_group('V', 2)
            kv_group('K', 3)
            A(f"s_mov_b32 s{sGoff}, {3 * 16384}")
            A(f"s_add_u32 s{sSlot}, s{sSlot}, {3 * 16384}")

    def zero_acc(self):
        for i in range(aL + 4 * len(self.ones)):
            self.A(f"v_accvgpr_write_b32 a{i}, 0")
        for i in range(6):
            self.A(f"v_mov_b32 v{vL + i}, 0")

    def ub_list(self, cls):
        cfg = self.cfg
        out = []
        shared_beta = 0 if cls == 0 else 2
        for beta in range(4):
            units = list(cfg.order)
            if beta == shared_beta:
                units.insert(cfg.shared_pos, 5)
            for u in units:
                out.append((beta, u))
        return out

    def build_loop(self, cls):
        cfg = self.cfg
        ubs = self.ub_list(cls)
        N = len(ubs)
        assert N % 3 == 0
        gaps = []
        slot_first = []
        for n in range(N):
            nb, nu = ubs[(n + 1) % N]
            cb, cu = ubs[n]
            pb, pu = ubs[(n - 1) % N]
            mf = []
            for t in range(2):
                for j in range(4):
                    mf.append(self.qk_mfma(nu, (n + 1) % 3, nb % 2, t, j))
            for dt in range(8):
                mf.append(self.pv_mfma(pu, (n - 1) % 3, pb % 2, dt))
            if pu in self.ones:
                mf.append(self.ones_mfma(pu, (n - 1) % 3))
            slot_first.append(len(gaps))
            sb = vS + 8 * (n % 3)
            pbuf = vP + 4 * (n % 3)
            adds = cu not in self.ones
            for i, m in enumerate(mf):
                g = dict(mfma=m, shadow=[], mem=[], valu=[], slot=n, pos=i, pre=[])
                if i < 16:
                    k = i // 2
                    if i % 2 == 0:
                        g['valu'].append(('E', f"v_exp_f32 v{sb + k}, v{sb + k}"))
                    else:
                        if k % 2 == 1:
                            g['valu'].append(('C', f"v_cvt_pk_bf16_f32 v{pbuf + k // 2}, v{sb + k - 1}, v{sb + k}"))
                        if adds:
                            g['valu'].append(('A', f"v_add_f32 v{vL + cu}, v{vL + cu}, v{sb + k}"))
                gaps.append(g)
        slot_first.append(len(gaps))
        G = len(gaps)

        def used(g):
            c = 0
            for k, _ in g['valu']:
                c += 2 if k == 'E' else 1
            for k, _ in g['mem']:
                c += 2 if k == 'D' else 1
            return c

        def place(items, lo, hi, cost):
            free = []
            for gi in range(lo, hi):
                f = 2 - used(gaps[gi])
                if cost == 2:
                    if f >= 2:
                        free.append(gi)
                else:
                    free.extend([gi] * max(f, 0))
            n = len(items)
            if len(free) >= n:
                sel = [free[(i * len(free)) // n] for i in range(n)]
            else:
                sel = list(free)
                cand = [gi for gi in range(lo, hi) if not any(k == 'E' for k, _ in gaps[gi]['valu'])]
                cnt = {gi: used(gaps[gi]) + sel.count(gi) * cost for gi in cand}
                while len(sel) < n:
                    gi = min(cand, key=lambda x: (cnt[x], abs(x - (lo + hi) // 2)))
                    sel.append(gi)
                    cnt[gi] += cost
                sel.sort()
            for it, gi in zip(items, sel):
                gaps[gi]['mem'].append(it)
            return sel

        bfirst = {}
        blast = {}
        for n, (b, u) in enumerate(ubs):
            bfirst.setdefault(b, n)
            blast[b] = n
        sh = cfg.bar_shift
        barpos = {}
        for bb, sign in ((1, -1 if cls == 0 else 1), (3, 1 if cls == 0 else -1)):
            barpos[bb] = slot_first[bfirst[bb]] + sign * sh
        for bb in (1, 3):
            gi = barpos[bb] - 1
            gaps[gi]['shadow'].append(('W', f"s_waitcnt vmcnt({4 * (cfg.delta - 3)}) lgkmcnt(0)"))
            gaps[gi]['shadow'].append(('B', "s_barrier"))

        def dma_group(which, lo, hi):
            base = LDS_K if which == 'K' else LDS_V
            items = [('D', self.dma(which)) for m in range(4)]
            sel = place(items, lo, hi, 2)
            assert all(sel[i] + 3 <= sel[i + 1] for i in range(3)), sel
            prev = None
            for m, gi in enumerate(sel):
                gaps[gi - 1]['shadow'].append(('S', f"s_add_u32 m0, s{sSlot}, {base + m * 4096}"))
                gaps[gi - 2]['shadow'].append(('S', f"s_add_u32 s{sSoff}, s{sGoff}, {m * 4096}"))
            return sel

        for bb in (1, 3):
            nxt = (bb + 1) % 4
            lo = max(barpos[bb] + 3, slot_first[bfirst[bb]] + 3)
            selk = dma_group('K', lo, slot_first[blast[bb] + 1])
            lo2 = slot_first[bfirst[nxt]] + 3
            hi2 = slot_first[blast[nxt] + 1] - (sh + 2)
            selv = dma_group('V', lo2, hi2)
            gi = selv[-1] + 1
            adv = self.advance_tile()
            for i, x in enumerate(adv):
                gaps[gi + i]['shadow'].append(('S', x))

        need_wait = {}
        for beta in range(4):
            nb = (beta + 1) % 4
            L = nb % 2
            slotpar = (nb // 2) if nb != 0 else 0
            lo = slot_first[bfirst[beta]]
            hi = slot_first[blast[beta] + 1]
            crosses = (beta % 2 == 1)
            if crosses:
                lo = max(lo, barpos[beta])
                hiK = slot_first[blast[beta]] - 4
                hiV = hi
            else:
                endb = min(hi, barpos[nb])
                hiK = slot_first[blast[beta]] - 4
                hiV = endb - 8
            if beta == 3:
                tog = [('X', f"v_xor_b32 v{r}, 0x8000, v{r}") for r in (vKA, vVA, vVA + 1)]
                for i, it in enumerate(tog):
                    gaps[lo - 0 + 0]['pre'].append(it)
                tog2 = [('X', f"v_xor_b32 v{r}, 0x8000, v{r}") for r in (vKA + 1, vVA + 2, vVA + 3)]
                for it in tog2:
                    gaps[lo]['pre'].append(it)
                lo += 1
            kitems = [('R', self.k_read(nb % 2, L, slotpar, t, j), ('K', nb)) for t in range(2) for j in range(4)]
            kitems = [(k, txt) for k, txt, tag in kitems]
            place(kitems, lo, hiK, 1)
            loV = max(lo, slot_first[bfirst[beta] + 1])
            vitems = [('T', self.v_read(nb % 2, L, slotpar, t, dt)) for dt in range(8) for t in range(2)]
            place(vitems, loV, hiV, 1)
            need_wait[slot_first[blast[beta]]] = ('K', nb % 2)
            sl = (bfirst[nb] + 1) % N
            need_wait[slot_first[sl] + 8] = ('V', nb % 2)

        seq = []
        for gi, g in enumerate(gaps):
            if gi in need_wait:
                seq.append(('LW', need_wait[gi]))
            seq.append(('M', g['mfma']))
            for it in g['shadow']:
                seq.append(it)
            for it in g['pre']:
                seq.append(it)
            for it in g['mem']:
                seq.append(it)
            for it in g['valu']:
                seq.append(it)
        out = []
        for it in seq:
            if it[0] == 'LW':
                idx = max(i for i, x in enumerate(out) if x[0] == 'M') if any(x[0] == 'M' for x in out) else None
                if idx is None:
                    out.append(it)
                else:
                    out.insert(idx + 1, it)
            else:
                out.append(it)
        seq = out
        kreg = lambda b: range(vKF + 32 * b, vKF + 32 * b + 32)
        vreg = lambda b: range(vVF + 32 * b, vVF + 32 * b + 32)
        issued = 0
        last_write = {}
        res = {}
        for it_no in range(2):
            for i, (k, x) in enumerate(seq):
                if k in ('R', 'T'):
                    issued += 1
                    d = int(x.split('v[')[1].split(':')[0])
                    if vKF <= d < vKF + 64:
                        last_write[('K', (d - vKF) // 32)] = issued
                    else:
                        last_write[('V', (d - vVF) // 32)] = issued
                elif k == 'W':
                    pass
                elif k == 'LW' and it_no == 1:
                    n_out = issued - last_write[x]
                    res[i] = min(n_out, 15)
        final = []
        for i, (k, x) in enumerate(seq):
            if k == 'LW':
                final.append(('W', f"s_waitcnt lgkmcnt({res[i]})"))
            else:
                final.append((k, x))
        over = sum(max(0, used(g) + len(g['pre']) - 2) for g in gaps)
        self.stats = dict(gaps=G, overflow=over)
        return final

    def main_loop(self, cls):
        A = self.A
        seq = self.build_loop(cls)
        ubs = self.ub_list(cls)
        b0, u0 = ubs[0]
        for t in range(2):
            for j in range(4):
                A(self.qk_mfma(u0, 0, 0, t, j))
        A("s_nop 7")
        A(f"s_mov_b32 s{sLoop}, 16")
        if self.cfg.stamps:
            A(f"s_memtime s[{sStamp + 4}:{sStamp + 5}]")
            A("s_waitcnt lgkmcnt(0)")
        A(".p2align 6")
        self.label(f"L_loop{cls}")
        for k, x in seq:
            A(x)
        A(f"s_sub_u32 s{sLoop}, s{sLoop}, 1")
        if self.cfg.stamps and self.cfg.iter_stamps:
            for k, it in enumerate((15, 14, 13, 12, 8)):
                if cls == 0:
                    self.stamp_names.append(f"it{16 - it}")
                i = self.stamp_names.index(f"it{16 - it}")
                A(f"s_cmp_eq_u32 s{sLoop}, {it}")
                A(f"s_cbranch_scc0 L_is{cls}_{k}")
                A(f"s_memtime s[{sPS + 2 * i}:{sPS + 2 * i + 1}]")
                A("s_waitcnt lgkmcnt(0)")
                self.label(f"L_is{cls}_{k}")
        A(f"s_cmp_lg_u32 s{sLoop}, 0")
        A(f"s_cbranch_scc1 L_loop{cls}")
        if self.cfg.stamps:
            A(f"s_memtime s[{sStamp + 6}:{sStamp + 7}]")
        N = len(ubs)
        pb, pu = ubs[N - 1]
        for dt in range(8):
            A(self.pv_mfma(pu, (N - 1) % 3, pb % 2, dt))
        if pu in self.ones:
            A(self.ones_mfma(pu, (N - 1) % 3))

    def rowsum_reduce(self, reg, tmp):
        A = self.A
        A(f"v_mov_b32 v{tmp}, v{reg}")
        A("s_nop 1")
        A(f"v_permlane16_swap_b32 v{reg}, v{tmp}")
        A("s_nop 1")
        A(f"v_add_f32 v{reg}, v{reg}, v{tmp}")
        A(f"v_mov_b32 v{tmp}, v{reg}")
        A("s_nop 1")
        A(f"v_permlane32_swap_b32 v{reg}, v{tmp}")
        A("s_nop 1")
        A(f"v_add_f32 v{reg}, v{reg}, v{tmp}")

    def rowmax_reduce(self, reg, tmp):
        A = self.A
        A(f"v_mov_b32 v{tmp}, v{reg}")
        A("s_nop 1")
        A(f"v_permlane16_swap_b32 v{reg}, v{tmp}")
        A("s_nop 1")
        A(f"v_max_f32 v{reg}, v{reg}, v{tmp}")
        A(f"v_mov_b32 v{tmp}, v{reg}")
        A("s_nop 1")
        A(f"v_permlane32_swap_b32 v{reg}, v{tmp}")
        A("s_nop 1")
        A(f"v_max_f32 v{reg}, v{reg}, v{tmp}")

    def store_setup(self):
        A = self.A
        lane, t0, t1, t2 = vT + 8, vT, vT + 1, vT + 2
        A(f"v_and_b32 v{t0}, 15, v{lane}")
        A(f"v_lshrrev_b32 v{t1}, 4, v{lane}")
        A(f"s_lshl_b32 s{sT1}, s{sWave}, 13")
        A(f"s_add_u32 s{sT1}, s{sT1}, {LDS_SP}")
        A(f"v_and_b32 v{t2}, 1, v{t1}")
        A(f"v_lshlrev_b32 v{t2}, 3, v{t2}")
        A(f"v_lshl_add_u32 v{t2}, v{t0}, 8, v{t2}")
        A(f"v_add_u32 v{t2}, s{sT1}, v{t2}")
        A(f"v_lshrrev_b32 v{t1}, 1, v{t1}")
        for dt in range(8):
            A(f"v_add_u32 v{dt}, {2 * dt}, v{t1}")
            A(f"v_xor_b32 v{dt}, v{dt}, v{t0}")
            A(f"v_lshl_add_u32 v{dt}, v{dt}, 4, v{t2}")
        A(f"v_lshrrev_b32 v{t1}, 4, v{lane}")
        for i in range(4):
            A(f"v_add_u32 v{8 + i}, {4 * i}, v{t1}")
            A(f"v_xor_b32 v{t2}, v{8 + i}, v{t0}")
            A(f"v_lshlrev_b32 v{t2}, 4, v{t2}")
            A(f"v_lshl_add_u32 v{8 + i}, v{8 + i}, 8, v{t2}")
            A(f"v_add_u32 v{8 + i}, s{sT1}, v{8 + i}")
        A(f"v_lshlrev_b32 v12, 4, v{lane}")

    def store_unit(self, u, rinv, rowoff_sreg):
        A = self.A
        tb = 16
        for dt in range(8):
            for r in range(4):
                A(f"v_accvgpr_read_b32 v{tb + r}, a{aO + 32 * u + 4 * dt + r}")
            for r in range(4):
                A(f"v_mul_f32 v{tb + r}, v{tb + r}, v{rinv}")
            p = tb + 8 + 2 * dt
            A(f"v_cvt_pk_bf16_f32 v{p}, v{tb}, v{tb + 1}")
            A(f"v_cvt_pk_bf16_f32 v{p + 1}, v{tb + 2}, v{tb + 3}")
            A(f"ds_write_b64 v{dt}, {self.vr(p, 2)}")
        A("s_waitcnt lgkmcnt(0)")
        rb = 48
        for i in range(4):
            A(f"ds_read_b128 {self.vr(rb + 4 * i)}, v{8 + i}")
        nt = " nt" if self.cfg.st_nt else ""
        for i in range(4):
            A(f"s_waitcnt lgkmcnt({3 - i})")
            A(f"buffer_store_dwordx4 {self.vr(rb + 4 * i)}, v12, s[{sO}:{sO + 3}], s{rowoff_sreg} offen offset:{i * 1024}{nt}")

    def check_l(self, reg):
        A = self.A
        A(f"v_cmp_nge_f32 vcc, v{reg}, v{vT + 6}")
        A("s_nop 1")
        A(f"s_or_b64 s[{sBad}:{sBad + 1}], s[{sBad}:{sBad + 1}], vcc")
        A(f"v_cmp_nle_f32 vcc, v{reg}, v{vT + 7}")
        A("s_nop 1")
        A(f"s_or_b64 s[{sBad}:{sBad + 1}], s[{sBad}:{sBad + 1}], vcc")

    def epilogue(self):
        A = self.A
        cfg = self.cfg
        assert cfg.delta == 5
        lane = vT + 8
        nt = " nt" if cfg.st_nt else ""
        K3 = LDS_K + 49152
        vG, vW, vR = 12, 13, 14
        vRI = 128
        F, PK, RB = 16, 32, (48, 104)
        self.label("L_epi")
        self.stamp("epi0")
        if cfg.exp_noepi:
            A("s_waitcnt vmcnt(0)")
            self.finish()
        A(f"v_mbcnt_lo_u32_b32 v{lane}, -1, 0")
        A(f"v_mbcnt_hi_u32_b32 v{lane}, -1, v{lane}")
        A(f"s_lshl_b32 s{sT1}, s{sWave}, 10")
        A(f"v_lshlrev_b32 v{vG}, 4, v{lane}")
        A(f"v_add_u32 v{vT + 9}, s{sT1}, v{vG}")
        A(f"v_add_u32 v{vT}, {LDS_SP}, v{vT + 9}")
        A("s_waitcnt vmcnt(0)")
        for i in range(8):
            A(f"ds_write_b128 v{vT}, a[{aO + 160 + 4 * i}:{aO + 160 + 4 * i + 3}] offset:{i * 4096}")
        A(f"v_accvgpr_read_b32 v96, a{self.aLidx[5]}")
        red = [u for u in range(5) if u not in self.ones]
        for u in range(5):
            if u in self.ones:
                A(f"v_accvgpr_read_b32 v{vL + u}, a{self.aLidx[u]}")
        A(f"ds_write_b32 v{vT + 9}, v96 offset:{K3}")
        for swp in ("v_permlane16_swap_b32", "v_permlane32_swap_b32"):
            for k, u in enumerate(red):
                A(f"v_mov_b32 v{F + k}, v{vL + u}")
            if len(red) < 3:
                A("s_nop 1")
            else:
                A("s_nop 0")
            for k, u in enumerate(red):
                A(f"{swp} v{vL + u}, v{F + k}")
            A("s_nop 0")
            for k, u in enumerate(red):
                A(f"v_add_f32 v{vL + u}, v{vL + u}, v{F + k}")
        for u in range(5):
            A(f"v_rcp_f32 v{vRI + 2 * u}, v{vL + u}")
        A(f"v_and_b32 v{vT + 1}, 15, v{lane}")
        A(f"v_lshrrev_b32 v{vT + 2}, 4, v{lane}")
        A(f"s_lshl_b32 s{sT2}, s{sWave}, 13")
        A(f"s_add_u32 s{sT2}, s{sT2}, {LDS_V + 32768}")
        A(f"v_mul_u32_u24 v{vW}, 272, v{vT + 1}")
        A(f"v_lshl_add_u32 v{vW}, v{vT + 2}, 3, v{vW}")
        A(f"v_add_u32 v{vW}, s{sT2}, v{vW}")
        A(f"v_mul_u32_u24 v{vR}, 272, v{vT + 2}")
        A(f"v_lshl_add_u32 v{vR}, v{vT + 1}, 4, v{vR}")
        A(f"v_add_u32 v{vR}, s{sT2}, v{vR}")
        for u in range(5):
            A(f"v_mov_b32 v{vRI + 2 * u + 1}, v{vRI + 2 * u}")
        A(f"s_mul_i32 s{sT3}, s{sWave}, {80 * 256}")

        def Vh(u, h):
            for i in (2 * h, 2 * h + 1):
                t = F + 8 * (i % 2)
                for r in range(8):
                    A(f"v_accvgpr_read_b32 v{t + r}, a{aO + 32 * u + 8 * i + r}")
                for r in range(4):
                    A(f"v_pk_mul_f32 v[{t + 2 * r}:{t + 2 * r + 1}], v[{t + 2 * r}:{t + 2 * r + 1}], v[{vRI + 2 * u}:{vRI + 2 * u + 1}]")
                p = PK + 4 * i
                for r in range(4):
                    A(f"v_cvt_pk_bf16_f32 v{p + r}, v{t + 2 * r}, v{t + 2 * r + 1}")
                A(f"ds_write_b64 v{vW}, v[{p}:{p + 1}] offset:{(2 * i) * 32}")
                A(f"ds_write_b64 v{vW}, v[{p + 2}:{p + 3}] offset:{(2 * i + 1) * 32}")

        def R(u):
            for i in range(4):
                b = RB[u % 2] + 4 * i
                A(f"ds_read_b128 v[{b}:{b + 3}], v{vR} offset:{i * 1088}")

        def S(u):
            for i in range(4):
                b = RB[u % 2] + 4 * i
                A(f"buffer_store_dwordx4 v[{b}:{b + 3}], v{vG}, s[{sO}:{sO + 3}], s{sT3} offen offset:{i * 1024}{nt}")
            for i in range(4):
                b = RB[u % 2] + 4 * i
                A(f"v_mfma_f32_16x16x32_bf16 v[{vChk}:{vChk + 3}], v[{vZero}:{vZero + 3}], v[{b}:{b + 3}], v[{vChk}:{vChk + 3}]")
            A(f"s_add_u32 s{sT3}, s{sT3}, 4096")
        Vh(0, 0)
        A(f"v_mov_b32 v{vT + 6}, s{sThrLo}")
        A(f"v_mov_b32 v{vT + 7}, s{sThrHi}")
        A(f"s_mov_b64 s[{sBad}:{sBad + 1}], 0")
        for i in range(4):
            A(f"v_mov_b32 v{vZero + i}, 0")
            A(f"v_mov_b32 v{vChk + i}, 0")
        Vh(0, 1)
        R(0)
        Vh(1, 0)
        A("s_waitcnt lgkmcnt(4)")
        A("s_barrier")
        self.stamp("epi_bar1")
        S(0)
        for ww in range(4):
            A(f"ds_read_b32 v{98 + ww}, v{vG} offset:{K3 + ww * 1024}")
        A(f"s_lshl_b32 s{sT1}, s{sWave}, 13")
        A(f"s_add_u32 s{sT1}, s{sT1}, {LDS_SP}")
        A(f"v_add_u32 v{vT + 1}, s{sT1}, v{vG}")
        for ww in range(4):
            for i in range(2):
                A(f"ds_read_b128 {self.vr(64 + 8 * ww + 4 * i)}, v{vT + 1} offset:{i * 4096 + ww * 1024}")
        Vh(1, 1)
        R(1)
        Vh(2, 0)
        A("s_waitcnt lgkmcnt(4)")
        S(1)
        A(f"v_add_f32 v98, v98, v99")
        A(f"v_add_f32 v100, v100, v101")
        for r in range(8):
            A(f"v_add_f32 v{64 + r}, v{64 + r}, v{72 + r}")
            A(f"v_add_f32 v{80 + r}, v{80 + r}, v{88 + r}")
        A(f"v_add_f32 v98, v98, v100")
        for r in range(8):
            A(f"v_add_f32 v{64 + r}, v{64 + r}, v{80 + r}")
        A(f"v_rcp_f32 v15, v98")
        self.check_l(98)
        for r in range(8):
            A(f"v_mul_f32 v{64 + r}, v{64 + r}, v15")
        A(f"v_cvt_pk_bf16_f32 v72, v64, v65")
        A(f"v_cvt_pk_bf16_f32 v74, v68, v69")
        A(f"v_cvt_pk_bf16_f32 v73, v66, v67")
        A(f"v_cvt_pk_bf16_f32 v75, v70, v71")
        A(f"v_and_b32 v{vT + 1}, 15, v{lane}")
        A(f"v_lshrrev_b32 v{vT + 2}, 4, v{lane}")
        A(f"v_permlane16_swap_b32 v72, v74")
        A(f"v_permlane16_swap_b32 v73, v75")
        A(f"v_lshlrev_b32 v{vT + 1}, 8, v{vT + 1}")
        A(f"v_and_b32 v{vT + 3}, 1, v{vT + 2}")
        A(f"v_lshl_add_u32 v{vT + 1}, v{vT + 3}, 5, v{vT + 1}")
        A(f"v_lshrrev_b32 v{vT + 3}, 1, v{vT + 2}")
        A(f"v_lshl_add_u32 v{vT + 1}, v{vT + 3}, 4, v{vT + 1}")
        A(f"s_lshl_b32 s{sT1}, s{sWave}, 6")
        A(f"s_add_u32 s{sT1}, s{sT1}, {320 * 256}")
        A(f"v_mfma_f32_16x16x32_bf16 v[{vChk}:{vChk + 3}], v[{vZero}:{vZero + 3}], v[72:75], v[{vChk}:{vChk + 3}]")
        A(f"buffer_store_dwordx4 v[72:75], v{vT + 1}, s[{sO}:{sO + 3}], s{sT1} offen{nt}")
        Vh(2, 1)
        R(2)
        Vh(3, 0)
        A("s_waitcnt lgkmcnt(4)")
        S(2)
        Vh(3, 1)
        R(3)
        Vh(4, 0)
        A("s_waitcnt lgkmcnt(4)")
        S(3)
        Vh(4, 1)
        R(4)
        for u in range(5):
            self.check_l(vL + u)
        A("s_waitcnt lgkmcnt(0)")
        S(4)
        self.stamp("epi_st")
        A("s_nop 7")
        A(f"v_cmp_u_f32 vcc, v{vChk}, v{vChk}")
        A("s_nop 1")
        A(f"s_or_b64 s[{sBad}:{sBad + 1}], s[{sBad}:{sBad + 1}], vcc")
        if cfg.force_fallback:
            A(f"s_mov_b64 s[{sBad}:{sBad + 1}], -1")
        if cfg.fallback:
            A(f"s_cmp_lg_u64 s[{sBad}:{sBad + 1}], 0")
            A(f"s_cselect_b32 s{sT2}, 1, 0")
            A(f"v_mov_b32 v97, s{sT2}")
            A(f"ds_write_b32 v{vT + 9}, v97 offset:{K3 + 4096}")
            A("s_waitcnt lgkmcnt(0)")
            A("s_barrier")
            for ww in range(4):
                A(f"ds_read_b32 v{98 + ww}, v{vG} offset:{K3 + 4096 + ww * 1024}")
            A("s_waitcnt lgkmcnt(0)")
            A(f"v_or_b32 v98, v98, v99")
            A(f"v_or3_b32 v98, v98, v100, v101")
            A(f"v_cmp_ne_u32 vcc, 0, v98")
            A("s_nop 1")
            A("s_cmp_lg_u64 vcc, 0")
            A("s_cbranch_scc1 L_fallback")
        self.finish()

    def finish(self):
        A = self.A
        if self.cfg.stamps:
            A("s_waitcnt vmcnt(0)")
            A(f"s_memrealtime s[{sArg}:{sArg + 1}]")
            A(f"s_memtime s[{sArg + 2}:{sArg + 3}]")
            A("s_waitcnt lgkmcnt(0)")
            A(f"s_sub_u32 s{sArg + 2}, s{sArg + 2}, s{sStamp + 2}")
            A(f"s_sub_u32 s{sArg + 4}, s{sStamp + 4}, s{sStamp + 2}")
            A(f"s_sub_u32 s{sArg + 5}, s{sStamp + 6}, s{sStamp + 4}")
            A(f"v_mov_b32 v64, s{sStamp}")
            A(f"v_mov_b32 v65, s{sArg}")
            A(f"v_mov_b32 v66, s{sArg + 2}")
            A(f"v_mov_b32 v67, s{sArg + 4}")
            A(f"v_mov_b32 v68, s{sArg + 5}")
            A(f"v_mov_b32 v69, s{sWave}")
            A(f"v_mov_b32 v70, 0")
            A(f"v_mov_b32 v71, 0")
            for i in range(len(self.stamp_names)):
                A(f"s_sub_u32 s{sPS + 2 * i}, s{sPS + 2 * i}, s{sStamp + 2}")
                A(f"v_mov_b32 v{76 + i}, s{sPS + 2 * i}")
            for i in range(len(self.stamp_names), 24):
                A(f"v_mov_b32 v{76 + i}, 0")
            A(f"s_lshl_b32 s{sT1}, s2, 7")
            A(f"s_lshl_b32 s{sT2}, s{sWave}, 15")
            A(f"s_add_u32 s{sT1}, s{sT1}, s{sT2}")
            A(f"v_mov_b32 v72, s{sT1}")
            A(f"v_mbcnt_lo_u32_b32 v73, -1, 0")
            A(f"v_mbcnt_hi_u32_b32 v73, -1, v73")
            A(f"v_cmp_eq_u32 vcc, 0, v73")
            A(f"s_and_saveexec_b64 s[{sTmp64}:{sTmp64 + 1}], vcc")
            A(f"buffer_store_dwordx4 v[64:67], v72, s[{sW_}:{sW_ + 3}], 0 offen")
            A(f"buffer_store_dwordx4 v[68:71], v72, s[{sW_}:{sW_ + 3}], 0 offen offset:16")
            for i in range(6):
                A(f"buffer_store_dwordx4 v[{76 + 4 * i}:{79 + 4 * i}], v72, s[{sW_}:{sW_ + 3}], 0 offen offset:{32 + 16 * i}")
        A("s_branch L_end")

    def fallback(self):
        A = self.A
        lane = vT + 8
        vM = 152
        vM = 140
        self.label("L_fallback")
        A("s_waitcnt vmcnt(0) lgkmcnt(0)")
        A("s_barrier")
        for u in range(6):
            A(f"v_mov_b32 v{vM + u}, 0xff800000")
        self.zero_acc()
        for ps in range(2):
            A(f"s_lshl_b32 s{sSlot}, s{sWave}, 10")
            A(f"s_mov_b32 s{sGoff}, 0")
            A(f"s_mov_b32 s{sLoop}, {NTILES}")
            self.label(f"L_fb{ps}")
            A("s_barrier")
            self.dma_tile_simple('K')
            if ps == 1:
                self.dma_tile_simple('V')
            A(f"s_add_u32 s{sGoff}, s{sGoff}, 16384")
            A("s_waitcnt vmcnt(0)")
            A("s_barrier")
            for L in range(2):
                for t in range(2):
                    for j in range(4):
                        A(self.k_read(0, L, 0, t, j))
                if ps == 1:
                    for dt in range(8):
                        for t in range(2):
                            A(self.v_read(0, L, 0, t, dt))
                A("s_waitcnt lgkmcnt(0)")
                for u in range(6):
                    for t in range(2):
                        for j in range(4):
                            A(self.qk_mfma(u, 0, 0, t, j))
                    A("s_nop 7")
                    A("s_nop 3")
                    if ps == 0:
                        for k in range(8):
                            A(f"v_max_f32 v{vM + u}, v{vM + u}, v{vS + k}")
                    else:
                        for k in range(8):
                            A(f"v_sub_f32 v{vS + k}, v{vS + k}, v{vM + u}")
                        for k in range(8):
                            A(f"v_exp_f32 v{vS + k}, v{vS + k}")
                        A("s_nop 0")
                        for k in range(8):
                            A(f"v_add_f32 v{vL + u}, v{vL + u}, v{vS + k}")
                        for k in range(4):
                            A(f"v_cvt_pk_bf16_f32 v{vP + k}, v{vS + 2 * k}, v{vS + 2 * k + 1}")
                        A("s_nop 1")
                        for dt in range(8):
                            A(self.pv_mfma(u, 0, 0, dt))
                    A("s_nop 3")
            A("s_waitcnt lgkmcnt(0)")
            A(f"s_sub_u32 s{sLoop}, s{sLoop}, 1")
            A(f"s_cmp_lg_u32 s{sLoop}, 0")
            A(f"s_cbranch_scc1 L_fb{ps}")
            if ps == 0:
                for u in range(6):
                    self.rowmax_reduce(vM + u, vT + 1)
        A("s_nop 7")
        A("s_nop 7")
        A("s_barrier")
        A(f"v_mbcnt_lo_u32_b32 v{lane}, -1, 0")
        A(f"v_mbcnt_hi_u32_b32 v{lane}, -1, v{lane}")
        for u in range(6):
            self.rowsum_reduce(vL + u, vT + 1)
        self.store_setup()
        for u in range(6):
            if u == 5:
                A(f"s_cmp_lg_u32 s{sWave}, 0")
                A("s_cbranch_scc1 L_fb_done")
            A(f"v_rcp_f32 v{vT + 2}, v{vL + u}")
            if u < 5:
                A(f"s_mul_i32 s{sT3}, s{sWave}, {80 * 256}")
                A(f"s_add_u32 s{sT3}, s{sT3}, {u * 4096}")
            else:
                A(f"s_mov_b32 s{sT3}, {320 * 256}")
            self.store_unit(u, vT + 2, sT3)
        self.label("L_fb_done")
        self.finish()

    def generate(self):
        A = self.A
        self.prologue()
        A(f"s_cmp_ge_u32 s{sWave}, 2")
        A("s_cbranch_scc1 L_cls1")
        self.main_loop(0)
        st0 = dict(self.stats)
        A("s_branch L_epi")
        self.label("L_cls1")
        self.main_loop(1)
        st1 = dict(self.stats)
        self.epilogue()
        if self.cfg.fallback:
            self.fallback()
        self.label("L_end")
        A("s_endpgm")
        hdr = open("standalone__gqa_softmax__near_ridge.s.ref").read().split("; Override")[0]
        txt = hdr
        txt += "; Override launch geometry by editing the next line.\n"
        txt += f"; @launch grid=(256,1,1) block=(256,1,1) lds={LDS_TOTAL}\n"
        txt += '.amdgcn_target "amdgcn-amd-amdhsa--gfx950"\n.text\n'
        txt += f".globl {NAME}\n.p2align 8\n.type {NAME},@function\n{NAME}:\n"
        for x in self.L:
            txt += (x if x.endswith(":") else "    " + x) + "\n"
        txt += '.section .rodata,"a"\n.p2align 6\n'
        txt += f""".amdhsa_kernel {NAME}
  .amdhsa_next_free_vgpr 512
  .amdhsa_next_free_sgpr 102
  .amdhsa_accum_offset 256
  .amdhsa_group_segment_fixed_size 0
  .amdhsa_kernarg_size 48
  .amdhsa_user_sgpr_count 2
  .amdhsa_user_sgpr_kernarg_segment_ptr 1
  .amdhsa_system_sgpr_workgroup_id_x 1
.end_amdhsa_kernel
"""
        return txt, st0, st1


if __name__ == "__main__":
    ap = argparse.ArgumentParser()
    ap.add_argument("-o", default="k.s")
    ap.add_argument("--stamps", action="store_true")
    ap.add_argument("--ones", default="0")
    ap.add_argument("--force-fallback", action="store_true")
    ap.add_argument("--set", action="append", default=[])
    a = ap.parse_args()
    kw = dict(stamps=a.stamps, force_fallback=a.force_fallback,
              ones_units=tuple(int(x) for x in a.ones.split(",") if x != ""))
    for s in a.set:
        k, v = s.split("=")
        kw[k] = eval(v)
    g = Gen(Cfg(**kw))
    txt, st0, st1 = g.generate()
    open(a.o, "w").write(txt)
    print("generated", a.o, st0, st1, "lines", txt.count("\n"), "stamps", g.stamp_names, file=sys.stderr)
```

```python
import sys, math, argparse

NAME = "standalone__gqa_softmax__near_ridge_kernel"
SQ, SK, D = 336, 2048, 128
NTILES = SK // 64
QBYTES = SQ * D * 2
KBYTES = SK * D * 2
LDS_K = 0
LDS_V = 65536
LDS_SP = 131072
LDS_TOTAL = 163840
CSCALE = math.log2(math.e) / math.sqrt(D)


def f32hex(x):
    import struct
    return "0x%08x" % struct.unpack("<I", struct.pack("<f", x))[0]


def slot_of(tile):
    return (tile + 3) % 4


class Cfg:
    def __init__(self, **kw):
        self.ones_units = (0,)
        self.stamps = False
        self.nt = True
        self.order = (1, 0, 2, 3, 4)
        self.shared_pos = 2
        self.fallback = True
        self.force_fallback = False
        self.bar_shift = 4
        self.lo_thr = 2.0 ** -20
        self.hi_thr = 2.0 ** 100
        self.st_nt = True
        self.delta = 5
        self.qorder = (0, 1, 2, 3, 4)
        self.iter_stamps = False
        self.tail_stamps = False
        self.exp_noepi = False
        self.exp_noq = False
        for k, v in kw.items():
            assert hasattr(self, k), k
            setattr(self, k, v)


sQ, sK, sV, sO, sW_ = 8, 12, 16, 20, 24
sWave = 28
sLoop = 29
sGoff = 30
sSlot = 31
sT0, sT1, sT2, sT3 = 32, 33, 34, 35
sArg = 36
sBad = 44
sTmp64 = 46
sSoff = 48
sStamp = 50
sP = 58
sC = 60
sThrLo, sThrHi = 62, 63
sMask = 64
sPass = 65
sPS = 66

vKF = 0
vVF = 64
vS = 128
vP = 152
vOnes = 164
vKA = 168
vVA = 170
vDK = 174
vDV = 175
vL = 176
vT = 182
vZero = 4
vChk = 8
vQ = 192
NQV = 4

aO = 0
aL = 192
aStash = 248


class Gen:
    def __init__(self, cfg):
        self.cfg = cfg
        self.L = []
        self.uid = 0
        self.stamp_names = []
        ones = list(cfg.ones_units) + [5]
        self.ones = ones
        self.aLidx = {u: aL + 4 * i for i, u in enumerate(ones)}
        top = aL + 4 * len(ones)
        self.qloc = {0: ('a', top), 5: ('a', top + 16)}
        for u in range(1, 5):
            self.qloc[u] = ('v', vQ + 16 * (u - 1))
        assert top + 32 <= aStash
        self.vm = []

    def A(self, s):
        self.L.append(s)

    def label(self, s):
        self.L.append(s + ":")

    def q(self, u, j):
        f, b = self.qloc[u]
        return f"{f}[{b + 4 * j}:{b + 4 * j + 3}]"

    @staticmethod
    def vr(b, n=4):
        return f"v[{b}:{b + n - 1}]"

    @staticmethod
    def ar(b, n=4):
        return f"a[{b}:{b + n - 1}]"

    def stamp(self, name):
        if not self.cfg.stamps:
            return
        if self.cfg.tail_stamps != name.startswith("T_") and not name.startswith("t"):
            return
        i = len(self.stamp_names)
        assert i < 17
        self.stamp_names.append(name)
        self.A(f"s_memtime s[{sPS + 2 * i}:{sPS + 2 * i + 1}]")

    def qk_mfma(self, u, sbuf, kbuf, t, j):
        d = vS + 8 * sbuf + 4 * t
        a = vKF + 32 * kbuf + 16 * t + 4 * j
        c = "0" if j == 0 else self.vr(d)
        return f"v_mfma_f32_16x16x32_bf16 {self.vr(d)}, {self.vr(a)}, {self.q(u, j)}, {c}"

    def pv_mfma(self, u, pbuf, vbuf, dt):
        d = aO + 32 * u + 4 * dt
        a = vVF + 32 * vbuf + 4 * dt
        b = vP + 4 * pbuf
        return f"v_mfma_f32_16x16x32_bf16 {self.ar(d)}, {self.vr(a)}, {self.vr(b)}, {self.ar(d)}"

    def ones_mfma(self, u, pbuf):
        d = self.aLidx[u]
        b = vP + 4 * pbuf
        return f"v_mfma_f32_16x16x32_bf16 {self.ar(d)}, {self.vr(vOnes)}, {self.vr(b)}, {self.ar(d)}"

    def k_read(self, kbuf, L, slotpar, t, j):
        d = vKF + 32 * kbuf + 16 * t + 4 * j
        off = slotpar * 16384 + t * 4096 + (j // 2) * 2048 + (j % 2) * 512
        return f"ds_read_b128 {self.vr(d)}, v{vKA + L} offset:{off}"

    def v_read(self, vbuf, L, slotpar, t, dt):
        d = vVF + 32 * vbuf + 4 * dt + 2 * t
        off = slotpar * 16384 + t * 4096 + (dt // 2) * 512
        return f"ds_read_b64_tr_b16 {self.vr(d, 2)}, v{vVA + 2 * L + (dt % 2)} offset:{off}"

    def dma(self, which):
        nt = " nt" if self.cfg.nt else ""
        if which == 'K':
            return f"buffer_load_dwordx4 v{vDK}, s[{sK}:{sK + 3}], s{sSoff} offen{nt} lds"
        return f"buffer_load_dwordx4 v{vDV}, s[{sV}:{sV + 3}], s{sSoff} offen{nt} lds"

    def dma_tile_simple(self, which):
        base = LDS_K if which == 'K' else LDS_V
        for m in range(4):
            self.A(f"s_add_u32 m0, s{sSlot}, {base + m * 4096}")
            self.A(f"s_add_u32 s{sSoff}, s{sGoff}, {m * 4096}")
            self.A(self.dma(which))

    def advance_tile(self):
        return [f"s_add_u32 s{sGoff}, s{sGoff}, 16384",
                f"s_add_u32 s{sSlot}, s{sSlot}, 16384",
                f"s_and_b32 s{sSlot}, s{sSlot}, 0xffff"]

    def sm_items(self, u, sbuf, pbuf):
        sb = vS + 8 * sbuf
        pb = vP + 4 * pbuf
        E = [f"v_exp_f32 v{sb + k}, v{sb + k}" for k in range(8)]
        C = {k: f"v_cvt_pk_bf16_f32 v{pb + k // 2}, v{sb + k - 1}, v{sb + k}" for k in (1, 3, 5, 7)}
        Ad = {k: f"v_add_f32 v{vL + u}, v{vL + u}, v{sb + k}" for k in range(8)} if u not in self.ones else {}
        return E, C, Ad

    def emit_slot(self, qk=None, pv=None, sm=None, mem=()):
        A = self.A
        mf = []
        if qk:
            u, sbuf, kbuf = qk
            mf += [self.qk_mfma(u, sbuf, kbuf, t, j) for t in range(2) for j in range(4)]
        if pv:
            u, pbuf, vbuf = pv
            mf += [self.pv_mfma(u, pbuf, vbuf, dt) for dt in range(8)]
            if u in self.ones:
                mf.append(self.ones_mfma(u, pbuf))
        fill = [[] for _ in range(len(mf) + 1)]
        if sm:
            E, C, Ad = self.sm_items(*sm)
            if len(mf) >= 16:
                for k in range(8):
                    fill[2 * k].append(E[k])
                    if k in C:
                        fill[2 * k + 1].append(C[k])
                    if k in Ad:
                        fill[2 * k + 1].append(Ad[k])
            else:
                assert len(mf) >= 8
                for k in range(8):
                    fill[k].append(E[k])
                    nx = k + 1 if k + 1 < 8 else len(mf)
                    if k in C:
                        fill[nx].append(C[k])
                    if k in Ad:
                        fill[nx].append(Ad[k])
                if len(mf) == 8:
                    fill[8].insert(0, "s_nop 0")
        mem = list(mem)
        n = len(mf)
        memat = [[] for _ in range(n + 1)]
        for i, m in enumerate(mem):
            memat[min(n - 1, (i * n) // max(len(mem), 1))].append(m)
        for i, m in enumerate(mf):
            A(m)
            for x in memat[i]:
                A(x)
            for x in fill[i]:
                A(x)
        for x in fill[n]:
            A(x)

    def vm_issue(self, tag):
        self.vm.append(tag)

    def vm_wait(self, tag, extra=""):
        last = max(i for i, t in enumerate(self.vm) if t == tag)
        n = len(self.vm) - 1 - last
        self.A(f"s_waitcnt vmcnt({n}){extra}")

    def q_scale(self, src, dst, n, toacc=False):
        A = self.A
        tmp = vS
        for r0 in range(0, n, 4):
            for r in range(4):
                A(f"v_lshlrev_b32 v{tmp + 2 * r}, 16, v{src + r0 + r}")
                A(f"v_and_b32 v{tmp + 2 * r + 1}, s{sMask}, v{src + r0 + r}")
            for r in range(4):
                A(f"v_pk_mul_f32 v[{tmp + 2 * r}:{tmp + 2 * r + 1}], v[{tmp + 2 * r}:{tmp + 2 * r + 1}], s[{sC}:{sC + 1}]")
            for r in range(4):
                d = src if toacc else dst
                A(f"v_cvt_pk_bf16_f32 v{d + r0 + r}, v{tmp + 2 * r}, v{tmp + 2 * r + 1}")
            if toacc:
                for r in range(4):
                    A(f"v_accvgpr_write_b32 a{dst + r0 + r}, v{src + r0 + r}")

    def prologue(self):
        A = self.A
        cfg = self.cfg
        nt = " nt" if cfg.nt else ""
        A("s_cmp_ge_u32 s2, 256")
        A("s_cbranch_scc1 L_end")
        A(f"s_load_dwordx8 s[{sArg}:{sArg + 7}], s[0:1], 0")
        if cfg.stamps:
            A(f"s_load_dwordx2 s[{sW_}:{sW_ + 1}], s[0:1], 40")
            A(f"s_memrealtime s[{sStamp}:{sStamp + 1}]")
            A(f"s_memtime s[{sStamp + 2}:{sStamp + 3}]")
        t0, t1, t2, t3, t4 = vT, vT + 1, vT + 2, vT + 3, vT + 4
        lane = vT + 8
        for i in range(4):
            A(f"v_mov_b32 v{vP + i}, 0")
        nacc = aL + 4 * len(self.ones)
        zlist = [f"v_mfma_f32_32x32x16_bf16 a[{16 * i}:{16 * i + 15}], v[{vP}:{vP + 3}], v[{vP}:{vP + 3}], 0"
                 for i in range((nacc + 15) // 16)]
        pre = []
        P = pre.append
        P(f"v_and_b32 v{lane}, 63, v0")
        P(f"v_lshrrev_b32 v{t0}, 6, v0")
        P(f"v_lshrrev_b32 v{t1}, 5, v{lane}")
        P(f"v_readfirstlane_b32 s{sWave}, v{t0}")
        P(f"v_lshlrev_b32 v{t0}, 6, v{t1}")
        P(f"v_bfe_u32 v{t1}, v{lane}, 2, 3")
        P(f"v_and_b32 v{t2}, 3, v{lane}")
        P(f"v_lshl_add_u32 v{t0}, v{t1}, 8, v{t0}")
        P(f"v_lshrrev_b32 v{t3}, 2, v{t1}")
        for rh in range(2):
            P(f"v_add_u32 v{t4}, {2 * rh}, v{t3}")
            P(f"v_sub_u32 v{t4}, 0, v{t4}")
            P(f"v_and_b32 v{t4}, 3, v{t4}")
            P(f"v_xor_b32 v{t4}, v{t4}, v{t2}")
            P(f"v_lshl_add_u32 v{t4}, v{t4}, 4, v{t0}")
            P(f"v_add_u32 v{vT + 6 + rh}, {rh * 2048}, v{t4}")
        P(f"s_and_b32 s{sP}, s{sWave}, 1")
        P(f"s_lshr_b32 s{sT0}, s{sWave}, 1")
        P(f"s_cmp_eq_u32 s{sP}, 0")
        P(f"s_cselect_b64 s[{sTmp64}:{sTmp64 + 1}], -1, 0")
        P(f"v_cndmask_b32 v{t3}, v{vT + 7}, v{vT + 6}, s[{sTmp64}:{sTmp64 + 1}]")
        P(f"s_lshl_b32 s{sT1}, s{sT0}, 7")
        P(f"v_add_u32 v{vDK}, s{sT1}, v{t3}")
        P(f"s_lshl_b32 s{sSlot}, s{sWave}, 10")
        P(f"s_mul_i32 s{sT1}, s2, {QBYTES}")
        P(f"s_lshl_b32 s{sT2}, s2, 19")
        zi = 0
        for i, x in enumerate(pre):
            A(x)
            if i % 3 == 2 and zi < len(zlist):
                A(zlist[zi]); zi += 1
        while zi < len(zlist):
            A(zlist[zi]); zi += 1

        def srd(reg, arg, off, size):
            A(f"s_add_u32 s{reg}, s{arg}, s{off}")
            A(f"s_addc_u32 s{reg + 1}, s{arg + 1}, 0")
            A(f"s_and_b32 s{reg + 1}, s{reg + 1}, 0xffff")
            A(f"s_mov_b32 s{reg + 2}, {size}")
            A(f"s_mov_b32 s{reg + 3}, 0x20000")

        def kv_group(which, tile):
            base = LDS_K if which == 'K' else LDS_V
            for m in range(4):
                A(f"s_add_u32 m0, s{sSlot}, {base + slot_of(tile) * 16384 + m * 4096}")
                A(f"s_mov_b32 s{sSoff}, {tile * 16384 + m * 4096}")
                A(self.dma(which))
                self.vm_issue(f"{which}{tile}")
        sW13, sW12, sRow = sT0, sT3, sPass
        B2 = LDS_K + slot_of(3) * 16384
        PC = LDS_V + slot_of(3) * 16384
        qorder = cfg.qorder
        stage = {qorder[0]: (sW13, LDS_SP), qorder[1]: (sW13, LDS_SP + 4096), qorder[2]: (sW12, B2),
                 qorder[3]: (sW13, LDS_SP), qorder[4]: (sW13, LDS_SP + 4096)}

        def q_dma(u):
            sreg, base = stage[u]
            for jp in range(2):
                for rh in range(2):
                    A(f"s_add_u32 m0, s{sreg}, {base + jp * 2048 + rh * 1024}")
                    A(f"s_add_u32 s{sSoff}, s{sRow}, {u * 4096 + jp * 128}")
                    A(f"buffer_load_dwordx4 v{vT + 6 + rh}, s[{sQ}:{sQ + 3}], s{sSoff} offen{nt} lds")
                    self.vm_issue(f"Q{u}")
        A("s_waitcnt lgkmcnt(0)")
        self.stamp("karg")
        srd(sK, sArg + 2, sT2, KBYTES)
        kv_group('K', 0)
        srd(sQ, sArg, sT1, QBYTES)
        A(f"s_lshl_b32 s{sW13}, s{sWave}, 13")
        A(f"s_lshl_b32 s{sW12}, s{sWave}, 12")
        A(f"s_mul_i32 s{sRow}, s{sWave}, {80 * 256}")
        q_dma(qorder[0])
        A(f"s_add_u32 m0, s{sSlot}, {PC}")
        A(f"s_lshr_b32 s{sSoff}, s{sWave}, 1")
        A(f"s_lshl_b32 s{sSoff}, s{sSoff}, 7")
        A(f"s_add_u32 s{sSoff}, s{sSoff}, {320 * 256}")
        A(f"buffer_load_dwordx4 v{t3}, s[{sQ}:{sQ + 3}], s{sSoff} offen{nt} lds")
        self.vm_issue("QP")
        self.stamp("iss9")
        srd(sV, sArg + 4, sT2, KBYTES)
        A(f"v_bfe_u32 v{t0}, v{lane}, 4, 1")
        A(f"v_bfe_u32 v{t1}, v{lane}, 2, 2")
        A(f"v_lshl_add_u32 v{t1}, v{t0}, 2, v{t1}")
        A(f"v_bfe_u32 v{t2}, v{lane}, 1, 1")
        A(f"v_xor_b32 v{t2}, v{t2}, v{t0}")
        A(f"v_and_b32 v{t3}, 1, v{lane}")
        A(f"v_lshl_add_u32 v{t2}, v{t2}, 1, v{t3}")
        A(f"v_lshrrev_b32 v{t3}, 5, v{lane}")
        A(f"v_lshl_add_u32 v{t2}, v{t3}, 2, v{t2}")
        A(f"v_lshlrev_b32 v{t2}, 4, v{t2}")
        A(f"v_lshl_add_u32 v{vDV}, v{t1}, 8, v{t2}")
        A(f"s_lshr_b32 s{sTmp64}, s{sWave}, 1")
        A(f"s_lshl_b32 s{sTmp64}, s{sTmp64}, 11")
        A(f"s_lshl_b32 s{sTmp64 + 1}, s{sP}, 7")
        A(f"s_add_u32 s{sTmp64}, s{sTmp64}, s{sTmp64 + 1}")
        A(f"v_add_u32 v{vDV}, s{sTmp64}, v{vDV}")
        kv_group('V', 0)
        q_dma(qorder[1])
        self.stamp("iss17")
        srd(sO, sArg + 6, sT1, QBYTES)
        if cfg.stamps:
            A(f"s_and_b32 s{sW_ + 1}, s{sW_ + 1}, 0xffff")
            A(f"s_mov_b32 s{sW_ + 2}, 0x100000")
            A(f"s_mov_b32 s{sW_ + 3}, 0x20000")
        qa01, k5addr, plin, qa2 = vT + 4, vT + 5, vT + 8, vT + 9
        kaddr = vP + 4
        A(f"v_and_b32 v{t0}, 15, v{lane}")
        A(f"v_lshrrev_b32 v{t1}, 4, v{lane}")
        A(f"v_lshrrev_b32 v{t2}, 2, v{t0}")
        A(f"v_sub_u32 v{t2}, 0, v{t2}")
        A(f"v_and_b32 v{t2}, 3, v{t2}")
        A(f"v_xor_b32 v{t2}, v{t2}, v{t1}")
        A(f"v_lshlrev_b32 v{t2}, 4, v{t2}")
        A(f"v_and_b32 v{t3}, 7, v{t0}")
        A(f"v_lshl_add_u32 v{t2}, v{t3}, 6, v{t2}")
        A(f"v_lshrrev_b32 v{t3}, 3, v{t0}")
        A(f"v_lshl_add_u32 v{kaddr}, v{t3}, 10, v{t2}")
        sA, sB = sTmp64, sTmp64 + 1
        A(f"s_lshl_b32 s{sA}, s{sP}, 13")
        A(f"s_xor_b32 s{sB}, s{sA}, 8192")
        A(f"v_add_u32 v{vKA}, s{sA}, v{kaddr}")
        A(f"v_add_u32 v{vKA + 1}, s{sB}, v{kaddr}")
        A(f"v_add_u32 v{k5addr}, {PC}, v{kaddr}")
        A(f"v_add_u32 v{qa01}, s{sW13}, v{kaddr}")
        A(f"v_add_u32 v{qa01}, {LDS_SP}, v{qa01}")
        A(f"v_add_u32 v{qa2}, s{sW12}, v{kaddr}")
        A(f"v_add_u32 v{qa2}, {B2}, v{qa2}")
        A(f"v_lshrrev_b32 v{t2}, 1, v{t1}")
        A(f"v_lshlrev_b32 v{t2}, 11, v{t2}")
        A(f"v_and_b32 v{t3}, 1, v{t1}")
        A(f"v_lshl_add_u32 v{t2}, v{t3}, 8, v{t2}")
        A(f"v_lshrrev_b32 v{kaddr}, 2, v{t0}")
        A(f"v_lshl_add_u32 v{t2}, v{kaddr}, 6, v{t2}")
        A(f"v_and_b32 v{kaddr}, 3, v{t0}")
        A(f"v_lshl_add_u32 v{t2}, v{kaddr}, 3, v{t2}")
        A(f"v_add_u32 v{t2}, {LDS_V}, v{t2}")
        for pi in range(2):
            A(f"v_xor_b32 v{kaddr}, {pi}, v{t3}")
            A(f"v_lshl_add_u32 v{kaddr}, v{kaddr}, 5, v{t2}")
            A(f"v_add_u32 v{vVA + pi}, s{sA}, v{kaddr}")
            A(f"v_add_u32 v{vVA + 2 + pi}, s{sB}, v{kaddr}")
        A(f"v_lshlrev_b32 v{plin}, 4, v{lane}")
        A(f"v_add_u32 v{plin}, s{sSlot}, v{plin}")
        A(f"v_add_u32 v{plin}, {PC}, v{plin}")
        A(f"s_mov_b32 s{sC}, {f32hex(CSCALE)}")
        A(f"s_mov_b32 s{sC + 1}, {f32hex(CSCALE)}")
        A(f"s_mov_b32 s{sMask}, 0xffff0000")
        A(f"s_mov_b32 s{sThrLo}, {f32hex(cfg.lo_thr)}")
        A(f"s_mov_b32 s{sThrHi}, {f32hex(cfg.hi_thr)}")
        for i in range(4):
            A(f"v_mov_b32 v{vOnes + i}, 0x3f803f80")
        for i in range(6):
            A(f"v_mov_b32 v{vL + i}, 0")
        for i in range(8):
            A(f"v_accvgpr_write_b32 a{aStash + i}, v{vKA + i}")
        self.stamp("setup")
        q_dma(qorder[2])
        S0 = slot_of(0)

        def kr(L, t, j):
            d = vKF + 32 * L + 16 * t + 4 * j
            return f"ds_read_b128 {self.vr(d)}, v{vKA + L} offset:{S0 * 16384 + t * 4096 + (j // 2) * 2048 + (j % 2) * 512}"

        def vrd(L, t, dt):
            d = vVF + 32 * L + 4 * dt + 2 * t
            return f"ds_read_b64_tr_b16 {self.vr(d, 2)}, v{vVA + 2 * L + (dt % 2)} offset:{S0 * 16384 + t * 4096 + (dt // 2) * 512}"
        self.vm_wait("K0")
        A("s_barrier")
        self.stamp("k0_bar")
        for L in range(2):
            for t in range(2):
                for j in range(4):
                    A(kr(L, t, j))

        def q_fetch(u, tq):
            sreg, base = stage[u]
            if base >= LDS_SP:
                reg, off = qa01, base - LDS_SP
            else:
                reg, off = qa2, 0
            for j in range(4):
                A(f"ds_read_b128 {self.vr(tq + 4 * j)}, v{reg} offset:{off + (j // 2) * 2048 + (j % 2) * 512}")
            A("s_waitcnt lgkmcnt(0)")

        def q_ready(u, after_read):
            f, b = self.qloc[u]
            tq = b if f == 'v' else self.qloc[qorder[4]][1]
            self.vm_wait(f"Q{u}")
            q_fetch(u, tq)
            after_read()
            self.q_scale(tq, b, 16, toacc=(f == 'a'))
            if f == 'a':
                A("s_nop 1")
        assert self.qloc[qorder[4]][0] == 'v' and all(self.qloc[u][0] == 'v' for u in qorder[1:])
        a, b_, c, d_, e = qorder
        q_ready(a, lambda: q_dma(d_))
        self.stamp("qa_done")
        self.emit_slot(qk=(a, 1, 0))
        self.emit_slot(qk=(a, 2, 1), sm=(a, 1, 1))
        E, C, Ad = self.sm_items(a, 2, 2)
        for k in range(8):
            A(E[k])
            if k >= 1 and (k - 1) in C:
                A(C[k - 1])
            if k >= 1 and (k - 1) in Ad:
                A(Ad[k - 1])
        A("s_nop 0")
        A(C[7])
        if 7 in Ad:
            A(Ad[7])
        self.vm_wait("QP")
        A(f"ds_read_b128 {self.vr(vP)}, v{plin}")
        A("s_waitcnt lgkmcnt(0)")
        self.q_scale(vP, vP, 4)
        A(f"ds_write_b128 v{plin}, {self.vr(vP)}")
        self.vm_wait("V0", " lgkmcnt(0)")
        A("s_barrier")
        self.stamp("v0_bar")
        for L in range(2):
            for dt in range(8):
                for t in range(2):
                    A(vrd(L, t, dt))
            if L == 0:
                for j in range(4):
                    A(f"ds_read_b128 {self.q(5, j)}, v{k5addr} offset:{(j // 2) * 2048 + (j % 2) * 512}")
        A("s_waitcnt lgkmcnt(15)")
        self.emit_slot(pv=(a, 1, 0))
        A("s_waitcnt lgkmcnt(0)")
        self.emit_slot(pv=(a, 2, 1))
        A(f"s_cmp_ge_u32 s{sWave}, 2")
        A("s_cbranch_scc1 L_noshared0")
        self.emit_slot(qk=(5, 1, 0))
        E, C, Ad = self.sm_items(5, 1, 1)
        A("s_nop 7")
        for k in range(8):
            A(E[k])
            if k >= 1 and (k - 1) in C:
                A(C[k - 1])
        A("s_nop 0")
        A(C[7])
        A("s_nop 1")
        self.emit_slot(pv=(5, 1, 0))
        self.label("L_noshared0")
        self.stamp("a_done")

        def burst(u, last=False):
            self.emit_slot(qk=(u, 1, 0))
            self.emit_slot(qk=(u, 2, 1), sm=(u, 1, 1))
            A("s_nop 1")
            self.emit_slot(pv=(u, 1, 0), sm=(u, 2, 2))
            if not last:
                A("s_nop 1")
                self.emit_slot(pv=(u, 2, 1))
        q_ready(b_, lambda: q_dma(e))
        burst(b_)
        q_ready(c, lambda: kv_group('K', 1))
        burst(c)
        self.stamp("c_done")
        q_ready(d_, lambda: kv_group('V', 1))
        burst(d_)
        q_ready(e, lambda: kv_group('K', 2))
        burst(e, last=True)
        self.stamp("e_done")
        kv_group('V', 2)
        self.vm_wait("V1", " lgkmcnt(0)")
        A("s_barrier")
        self.stamp("bar0")
        for t in range(2):
            for j in range(4):
                A(self.k_read(0, 0, 0, t, j))
        for dt in range(8):
            for t in range(2):
                A(self.v_read(0, 0, 0, t, dt))
        kv_group('K', 3)
        A(f"s_mov_b32 s{sGoff}, {3 * 16384}")
        A(f"s_add_u32 s{sSlot}, s{sSlot}, {slot_of(3) * 16384}")
        A("s_waitcnt lgkmcnt(15)")

    def zero_acc(self):
        for i in range(aL + 4 * len(self.ones)):
            self.A(f"v_accvgpr_write_b32 a{i}, 0")
        for i in range(6):
            self.A(f"v_mov_b32 v{vL + i}, 0")

    def ub_list(self, cls):
        cfg = self.cfg
        out = []
        shared_beta = 2 if cls == 0 else 0
        for beta in range(4):
            units = list(cfg.order)
            if beta == shared_beta:
                units.insert(cfg.shared_pos, 5)
            for u in units:
                out.append((beta, u))
        return out

    def build_loop(self, cls):
        cfg = self.cfg
        ubs = self.ub_list(cls)
        N = len(ubs)
        assert N % 3 == 0
        gaps = []
        slot_first = []
        for n in range(N):
            nb, nu = ubs[(n + 1) % N]
            cb, cu = ubs[n]
            pb, pu = ubs[(n - 1) % N]
            mf = []
            for t in range(2):
                for j in range(4):
                    mf.append(self.qk_mfma(nu, (n + 1) % 3, nb % 2, t, j))
            for dt in range(8):
                mf.append(self.pv_mfma(pu, (n - 1) % 3, pb % 2, dt))
            if pu in self.ones:
                mf.append(self.ones_mfma(pu, (n - 1) % 3))
            slot_first.append(len(gaps))
            sb = vS + 8 * (n % 3)
            pbuf = vP + 4 * (n % 3)
            adds = cu not in self.ones
            for i, m in enumerate(mf):
                g = dict(mfma=m, shadow=[], mem=[], valu=[], slot=n, pos=i, pre=[])
                if i < 16:
                    k = i // 2
                    if i % 2 == 0:
                        g['valu'].append(('E', f"v_exp_f32 v{sb + k}, v{sb + k}"))
                    else:
                        if k % 2 == 1:
                            g['valu'].append(('C', f"v_cvt_pk_bf16_f32 v{pbuf + k // 2}, v{sb + k - 1}, v{sb + k}"))
                        if adds:
                            g['valu'].append(('A', f"v_add_f32 v{vL + cu}, v{vL + cu}, v{sb + k}"))
                gaps.append(g)
        slot_first.append(len(gaps))
        G = len(gaps)

        def used(g):
            c = 0
            for k, _ in g['valu']:
                c += 2 if k == 'E' else 1
            for k, _ in g['mem']:
                c += 2 if k == 'D' else 1
            return c

        def place(items, lo, hi, cost):
            free = []
            for gi in range(lo, hi):
                f = 2 - used(gaps[gi])
                if cost == 2:
                    if f >= 2:
                        free.append(gi)
                else:
                    free.extend([gi] * max(f, 0))
            n = len(items)
            if len(free) >= n:
                sel = [free[(i * len(free)) // n] for i in range(n)]
            else:
                sel = list(free)
                cand = [gi for gi in range(lo, hi) if not any(k == 'E' for k, _ in gaps[gi]['valu'])]
                cnt = {gi: used(gaps[gi]) + sel.count(gi) * cost for gi in cand}
                while len(sel) < n:
                    gi = min(cand, key=lambda x: (cnt[x], abs(x - (lo + hi) // 2)))
                    sel.append(gi)
                    cnt[gi] += cost
                sel.sort()
            for it, gi in zip(items, sel):
                gaps[gi]['mem'].append(it)
            return sel

        bfirst = {}
        blast = {}
        for n, (b, u) in enumerate(ubs):
            bfirst.setdefault(b, n)
            blast[b] = n
        sh = cfg.bar_shift
        barpos = {}
        first = (cls == 1)
        for bb, sign in ((1, -1 if first else 1), (3, 1 if first else -1)):
            barpos[bb] = slot_first[bfirst[bb]] + sign * sh
        for bb in (1, 3):
            gi = barpos[bb] - 1
            gaps[gi]['shadow'].append(('W', f"s_waitcnt vmcnt({4 * (cfg.delta - 3)}) lgkmcnt(0)"))
            gaps[gi]['shadow'].append(('B', "s_barrier"))

        def dma_group(which, lo, hi):
            base = LDS_K if which == 'K' else LDS_V
            items = [('D', self.dma(which)) for m in range(4)]
            sel = place(items, lo, hi, 2)
            assert all(sel[i] + 3 <= sel[i + 1] for i in range(3)), sel
            prev = None
            for m, gi in enumerate(sel):
                gaps[gi - 1]['shadow'].append(('S', f"s_add_u32 m0, s{sSlot}, {base + m * 4096}"))
                gaps[gi - 2]['shadow'].append(('S', f"s_add_u32 s{sSoff}, s{sGoff}, {m * 4096}"))
            return sel

        for bb in (1, 3):
            nxt = (bb + 1) % 4
            lo = max(barpos[bb] + 3, slot_first[bfirst[bb]] + 3)
            selk = dma_group('K', lo, slot_first[blast[bb] + 1])
            lo2 = slot_first[bfirst[nxt]] + 3
            hi2 = slot_first[blast[nxt] + 1] - (sh + 2)
            selv = dma_group('V', lo2, hi2)
            gi = selv[-1] + 1
            adv = self.advance_tile()
            for i, x in enumerate(adv):
                gaps[gi + i]['shadow'].append(('S', x))

        need_wait = {}
        for beta in range(4):
            nb = (beta + 1) % 4
            L = nb % 2
            slotpar = (nb // 2) if nb != 0 else 0
            lo = slot_first[bfirst[beta]]
            hi = slot_first[blast[beta] + 1]
            crosses = (beta % 2 == 1)
            if crosses:
                lo = max(lo, barpos[beta])
                hiK = slot_first[blast[beta]] - 4
                hiV = hi
            else:
                endb = min(hi, barpos[nb])
                hiK = slot_first[blast[beta]] - 4
                hiV = endb - 8
            if beta == 3:
                tog = [('X', f"v_xor_b32 v{r}, 0x8000, v{r}") for r in (vKA, vVA, vVA + 1)]
                for i, it in enumerate(tog):
                    gaps[lo - 0 + 0]['pre'].append(it)
                tog2 = [('X', f"v_xor_b32 v{r}, 0x8000, v{r}") for r in (vKA + 1, vVA + 2, vVA + 3)]
                for it in tog2:
                    gaps[lo]['pre'].append(it)
                lo += 1
            kitems = [('R', self.k_read(nb % 2, L, slotpar, t, j), ('K', nb)) for t in range(2) for j in range(4)]
            kitems = [(k, txt) for k, txt, tag in kitems]
            place(kitems, lo, hiK, 1)
            loV = max(lo, slot_first[bfirst[beta] + 1])
            vitems = [('T', self.v_read(nb % 2, L, slotpar, t, dt)) for dt in range(8) for t in range(2)]
            place(vitems, loV, hiV, 1)
            need_wait[slot_first[blast[beta]]] = ('K', nb % 2)
            sl = (bfirst[nb] + 1) % N
            need_wait[slot_first[sl] + 8] = ('V', nb % 2)

        seq = []
        for gi, g in enumerate(gaps):
            if gi in need_wait:
                seq.append(('LW', need_wait[gi]))
            seq.append(('M', g['mfma']))
            for it in g['shadow']:
                seq.append(it)
            for it in g['pre']:
                seq.append(it)
            for it in g['mem']:
                seq.append(it)
            for it in g['valu']:
                seq.append(it)
        out = []
        for it in seq:
            if it[0] == 'LW':
                idx = max(i for i, x in enumerate(out) if x[0] == 'M') if any(x[0] == 'M' for x in out) else None
                if idx is None:
                    out.append(it)
                else:
                    out.insert(idx + 1, it)
            else:
                out.append(it)
        seq = out
        kreg = lambda b: range(vKF + 32 * b, vKF + 32 * b + 32)
        vreg = lambda b: range(vVF + 32 * b, vVF + 32 * b + 32)
        issued = 0
        last_write = {}
        res = {}
        for it_no in range(2):
            for i, (k, x) in enumerate(seq):
                if k in ('R', 'T'):
                    issued += 1
                    d = int(x.split('v[')[1].split(':')[0])
                    if vKF <= d < vKF + 64:
                        last_write[('K', (d - vKF) // 32)] = issued
                    else:
                        last_write[('V', (d - vVF) // 32)] = issued
                elif k == 'W':
                    pass
                elif k == 'LW' and it_no == 1:
                    n_out = issued - last_write[x]
                    res[i] = min(n_out, 15)
        final = []
        for i, (k, x) in enumerate(seq):
            if k == 'LW':
                final.append(('W', f"s_waitcnt lgkmcnt({res[i]})"))
            else:
                final.append((k, x))
        rd = [x for k, x in final if k in ('R', 'T')]
        lastd = int(rd[-1].split('v[')[1].split(':')[0])
        assert vVF <= lastd < vVF + 32, rd[-1]
        over = sum(max(0, used(g) + len(g['pre']) - 2) for g in gaps)
        self.stats = dict(gaps=G, overflow=over)
        return final

    def main_loop(self, cls):
        A = self.A
        seq = self.build_loop(cls)
        ubs = self.ub_list(cls)
        b0, u0 = ubs[0]
        for t in range(2):
            for j in range(4):
                A(self.qk_mfma(u0, 0, 0, t, j))
        A("s_nop 7")
        A(f"s_mov_b32 s{sLoop}, 15")
        if self.cfg.stamps:
            A(f"s_memtime s[{sStamp + 4}:{sStamp + 5}]")
        A("s_waitcnt lgkmcnt(0)") if self.cfg.stamps else None
        A(".p2align 6")
        self.label(f"L_loop{cls}")
        for k, x in seq:
            A(x)
        A(f"s_sub_u32 s{sLoop}, s{sLoop}, 1")
        A(f"s_cmp_lg_u32 s{sLoop}, 0")
        A(f"s_cbranch_scc1 L_loop{cls}")
        if self.cfg.stamps:
            A(f"s_memtime s[{sStamp + 6}:{sStamp + 7}]")
        self.tail(cls, ubs)

    def tail(self, cls, ubs):
        A = self.A
        cfg = self.cfg
        nt = " nt" if cfg.st_nt else ""
        N = len(ubs)
        assert cfg.delta == 5
        assert slot_of(31) == 2 and slot_of(30) == 1
        STG = LDS_V
        KX = LDS_K + 16384
        self.KX = KX
        vG, vW, vR, vRW, vRR = 168, 170, 171, 174, 175
        vX = 169
        vG16 = vL + 5
        self.vG16, self.vX = vG16, vX
        self.vTmp, self.vTmp2, self.vChkQ, self.vRI = vT, vT + 1, vT + 2, vT + 6
        a = ubs[0][1]
        rest = [u for u in (2, 3, 4, 1, 0) if u != a]
        rest = [u for u in rest if self.qloc[u][0] == 'v'] + [u for u in rest if self.qloc[u][0] == 'a']
        b, c, d, e = rest
        if cls == 0:
            tl = [(a, 0), (b, 0), (a, 1), (b, 1), (c, 0), (c, 1), (d, 0), (d, 1), (e, 0), (e, 1)]
        else:
            tl = [(a, 0), (5, 0), (a, 1), (b, 0), (b, 1), (c, 0), (c, 1), (d, 0), (d, 1), (e, 0), (e, 1)]
        M = len(tl)
        idx = {ub: i for i, ub in enumerate(tl)}
        chk = self.vChkQ
        hooks = {i: [] for i in range(-1, M + 1)}

        def temps(u):
            f, base = self.qloc[u]
            return base if f == 'v' else vKF

        def F1(u):
            def f():
                r = vL + u
                if u in self.ones:
                    A(f"v_accvgpr_read_b32 v{r}, a{self.aLidx[u]}")
                    A("s_nop 0")
                else:
                    tt = self.vTmp
                    A(f"v_mov_b32 v{tt}, v{r}")
                    A("s_nop 1")
                    A(f"v_permlane16_swap_b32 v{r}, v{tt}")
                    A("s_nop 0")
                    A(f"v_add_f32 v{r}, v{r}, v{tt}")
                    A(f"v_mov_b32 v{tt}, v{r}")
                    A("s_nop 1")
                    A(f"v_permlane32_swap_b32 v{r}, v{tt}")
                    A("s_nop 0")
                    A(f"v_add_f32 v{r}, v{r}, v{tt}")
                A(f"v_rcp_f32 v{self.vTmp}, v{r}")
                A(f"v_cmp_nge_f32 vcc, v{r}, s{sThrLo}")
                A(f"ds_write_b32 v{vRW}, v{self.vTmp} offset:{u * 64}")
                A(f"s_or_b64 s[{sBad}:{sBad + 1}], s[{sBad}:{sBad + 1}], vcc")
                A(f"v_cmp_nle_f32 vcc, v{r}, s{sThrHi}")
                A("s_nop 1")
                A(f"s_or_b64 s[{sBad}:{sBad + 1}], s[{sBad}:{sBad + 1}], vcc")
            return f

        def WR(u, h):
            t = temps(u) + (16 * h if u == e else 0)
            for dt in range(4):
                src = aO + 32 * u + 16 * h + 4 * dt
                A(f"ds_write_b128 v{vW}, a[{src}:{src + 3}] offset:{dt * 32}")
            if h == 0:
                A(f"ds_read_b64 v[{vL2(u)}:{vL2(u) + 1}], v{vRR} offset:{u * 64}")
            for i in range(2):
                for k in range(2):
                    r = t + 8 * i + 4 * k
                    A(f"ds_read_b128 v[{r}:{r + 3}], v{vR} offset:{i * 8 * 272 + k * 128}")

        def vL2(u):
            return self.vRI + 2 * ([a, b, c, d, e].index(u) % 2)

        def PS(u, h):
            t = temps(u) + (16 * h if u == e else 0)
            ri = vL2(u)
            for i in range(2):
                sel = f" op_sel:[0,{i}] op_sel_hi:[1,{i}]"
                for k in range(4):
                    r = t + 8 * i + 2 * k
                    A(f"v_pk_mul_f32 v[{r}:{r + 1}], v[{r}:{r + 1}], v[{ri}:{ri + 1}]{sel}")
            for i in range(2):
                r = t + 8 * i
                for k in range(4):
                    A(f"v_cvt_pk_bf16_f32 v{r + k}, v{r + 2 * k}, v{r + 2 * k + 1}")
            for i in range(2):
                r = t + 8 * i
                A(f"buffer_store_dwordx4 v[{r}:{r + 3}], v{vG}, s[{sO}:{sO + 3}], s{sRowU[u]} offen offset:{i * 2048 + h * 128}{nt}")
            for i in range(2):
                r = t + 8 * i
                cc = "0" if not self.chk_started else f"v[{chk}:{chk + 3}]"
                self.chk_started = True
                A(f"v_mfma_f32_16x16x32_bf16 v[{chk}:{chk + 3}], v[{vOnes}:{vOnes + 3}], v[{r}:{r + 3}], {cc}")
        W0 = lambda: A("s_waitcnt lgkmcnt(0)")
        self.chk_started = False
        sRowU = {u: sArg + u for u in range(5)}
        self._tail_ctx = None

        A(f"v_mbcnt_lo_u32_b32 v{vG16}, -1, 0")
        A(f"v_mbcnt_hi_u32_b32 v{vG16}, -1, v{vG16}")
        kl1 = [self.k_read(1, 1, 0, t, j) for t in range(2) for j in range(4)]
        vl1 = [self.v_read(1, 1, 0, t, dt) for dt in range(8) for t in range(2)]
        for x in kl1:
            A(x)
        tt = self.vTmp
        A(f"v_and_b32 v{tt}, 15, v{vG16}")
        A(f"v_lshrrev_b32 v{vX}, 4, v{vG16}")
        A(f"s_lshl_b32 s{sT2}, s{sWave}, 13")
        A(f"s_add_u32 s{sT2}, s{sT2}, {STG}")
        A(f"v_mul_u32_u24 v{vW}, 272, v{tt}")
        A(f"v_and_b32 v{vR}, 1, v{vX}")
        A(f"v_lshl_add_u32 v{vW}, v{vR}, 7, v{vW}")
        A(f"v_lshrrev_b32 v{vR}, 1, v{vX}")
        A(f"v_lshl_add_u32 v{vW}, v{vR}, 4, v{vW}")
        A(f"v_add_u32 v{vW}, s{sT2}, v{vW}")
        A(f"v_and_b32 v{vRW}, 7, v{tt}")
        A(f"v_lshlrev_b32 v{vRW}, 3, v{vRW}")
        A(f"v_lshrrev_b32 v{tt}, 3, v{tt}")
        A(f"v_lshl_add_u32 v{vRW}, v{tt}, 2, v{vRW}")
        A(f"s_add_u32 s{sT1}, s{sT2}, 4608")
        A(f"v_add_u32 v{vRW}, s{sT1}, v{vRW}")
        A(f"v_lshrrev_b32 v{tt}, 3, v{vG16}")
        A(f"v_and_b32 v{vX}, 7, v{vG16}")
        A(f"v_lshlrev_b32 v{vX}, 4, v{vX}")
        A(f"v_mul_u32_u24 v{vR}, 272, v{tt}")
        A(f"v_add3_u32 v{vR}, v{vR}, v{vX}, s{sT2}")
        A(f"v_lshl_add_u32 v{vG}, v{tt}, 8, v{vX}")
        A(f"v_lshlrev_b32 v{vRR}, 3, v{tt}")
        A(f"v_add_u32 v{vRR}, s{sT1}, v{vRR}")
        A(f"v_lshlrev_b32 v{vG16}, 4, v{vG16}")
        A(f"s_lshl_b32 s{sT1}, s{sWave}, 10")
        A(f"v_add_u32 v{vX}, s{sT1}, v{vG16}")
        A(f"s_mul_i32 s{sArg}, s{sWave}, {80 * 256}")
        for u in range(1, 5):
            A(f"s_add_u32 s{sArg + u}, s{sArg}, {u * 4096}")
        A(f"s_mov_b64 s[{sBad}:{sBad + 1}], 0")
        A("s_waitcnt vmcnt(0)")

        def shared_out():
            base = LDS_SP
            A(f"v_add_u32 v{self.vTmp}, {base}, v{vX}")
            for i in range(8):
                A(f"ds_write_b128 v{self.vTmp}, a[{aO + 160 + 4 * i}:{aO + 160 + 4 * i + 3}] offset:{i * 4096}")
            A(f"v_accvgpr_read_b32 v{self.vTmp2}, a{self.aLidx[5]}")
            A("s_nop 0")
            A(f"ds_write_b32 v{vX}, v{self.vTmp2} offset:{KX}")

        def bar1():
            A("s_waitcnt lgkmcnt(0)")
            A("s_barrier")
            self.stamp(f"tbar1_{cls}") if cls == 0 else None

        qa_, qb_ = temps(a), temps(b)

        L5 = [vL + a, vL + b, vL + c, 172]

        def shared_read():
            for ww in range(4):
                A(f"ds_read_b32 v{L5[ww]}, v{vG16} offset:{KX + ww * 1024}")
            A(f"s_lshl_b32 s{sT1}, s{sWave}, 13")
            A(f"s_add_u32 s{sT1}, s{sT1}, {LDS_SP}")
            A(f"v_add_u32 v{self.vTmp}, s{sT1}, v{vG16}")
            for ww in range(4):
                base = (qa_ if ww < 2 else qb_) + 8 * (ww % 2)
                for i in range(2):
                    A(f"ds_read_b128 v[{base + 4 * i}:{base + 4 * i + 3}], v{self.vTmp} offset:{i * 4096 + ww * 1024}")

        def shared_fin():
            l5 = L5[0]
            x0, x1, y0, y1 = qa_, qa_ + 8, qb_, qb_ + 8
            A(f"v_add_f32 v{l5}, v{l5}, v{L5[1]}")
            A(f"v_add_f32 v{L5[2]}, v{L5[2]}, v{L5[3]}")
            for r in range(8):
                A(f"v_add_f32 v{x0 + r}, v{x0 + r}, v{x1 + r}")
                A(f"v_add_f32 v{y0 + r}, v{y0 + r}, v{y1 + r}")
            A(f"v_add_f32 v{l5}, v{l5}, v{L5[2]}")
            for r in range(8):
                A(f"v_add_f32 v{x0 + r}, v{x0 + r}, v{y0 + r}")
            A(f"v_rcp_f32 v{L5[1]}, v{l5}")
            A(f"v_cmp_nge_f32 vcc, v{l5}, s{sThrLo}")
            A("s_nop 0")
            A(f"s_or_b64 s[{sBad}:{sBad + 1}], s[{sBad}:{sBad + 1}], vcc")
            A(f"v_cmp_nle_f32 vcc, v{l5}, s{sThrHi}")
            for r in range(8):
                A(f"v_mul_f32 v{x0 + r}, v{x0 + r}, v{L5[1]}")
            A(f"s_or_b64 s[{sBad}:{sBad + 1}], s[{sBad}:{sBad + 1}], vcc")
            A(f"v_cvt_pk_bf16_f32 v{x1}, v{x0}, v{x0 + 1}")
            A(f"v_cvt_pk_bf16_f32 v{x1 + 2}, v{x0 + 4}, v{x0 + 5}")
            A(f"v_cvt_pk_bf16_f32 v{x1 + 1}, v{x0 + 2}, v{x0 + 3}")
            A(f"v_cvt_pk_bf16_f32 v{x1 + 3}, v{x0 + 6}, v{x0 + 7}")
            A(f"v_lshrrev_b32 v{y0}, 4, v{vG16}")
            A(f"v_and_b32 v{y0 + 1}, 15, v{y0}")
            A(f"v_permlane16_swap_b32 v{x1}, v{x1 + 2}")
            A(f"v_permlane16_swap_b32 v{x1 + 1}, v{x1 + 3}")
            A(f"v_lshlrev_b32 v{y0 + 1}, 8, v{y0 + 1}")
            A(f"v_bfe_u32 v{y0 + 2}, v{y0}, 4, 1")
            A(f"v_lshl_add_u32 v{y0 + 1}, v{y0 + 2}, 5, v{y0 + 1}")
            A(f"v_lshrrev_b32 v{y0 + 2}, 5, v{y0}")
            A(f"v_lshl_add_u32 v{y0 + 1}, v{y0 + 2}, 4, v{y0 + 1}")
            A(f"s_lshl_b32 s{sT1}, s{sWave}, 6")
            A(f"s_add_u32 s{sT1}, s{sT1}, {320 * 256}")
            A(f"v_mfma_f32_16x16x32_bf16 v[{chk}:{chk + 3}], v[{vOnes}:{vOnes + 3}], v[{x1}:{x1 + 3}], v[{chk}:{chk + 3}]")
            A(f"buffer_store_dwordx4 v[{x1}:{x1 + 3}], v{y0 + 1}, s[{sO}:{sO + 3}], s{sT1} offen{nt}")

        def hook(i, key, fn):
            hooks[i].append((key, fn))
        hook(0 if cls == 0 else 3, 90, shared_out)
        hook(3, 95, bar1)
        for rank, u in enumerate([a, b, c, d]):
            i = idx[(u, 1)]
            if u in self.ones:
                hook(i + 2, 10 * rank + 4, F1(u))
            else:
                hook(i, 80 + rank, F1(u))
            hook(i + 2, 10 * rank + 5, lambda u=u: WR(u, 0))
            if u != d:
                hook(i + 3, 10 * rank + 1, lambda u=u: (W0(), PS(u, 0), WR(u, 1)))
                hook(i + 4, 10 * rank + 2, lambda u=u: (W0(), PS(u, 1)))
        assert idx[(d, 1)] + 3 == M
        ib = idx[(b, 1)]
        assert ib + 5 < M and idx[(c, 1)] <= ib + 4
        hook(ib + 4, 70, shared_read)
        hook(ib + 5, -1, lambda: (W0(), shared_fin()))
        if e not in self.ones:
            hook(idx[(e, 1)], 85, F1(e))

        for n in range(M):
            qk = None
            if n + 1 < M:
                u1, L1 = tl[n + 1]
                qk = (u1, (n + 1) % 3, L1)
            if n == 0:
                pb, pu = ubs[N - 1]
                pv = (pu, (N - 1) % 3, pb % 2)
            else:
                u0, L0 = tl[n - 1]
                pv = (u0, (n - 1) % 3, L0)
            u, L = tl[n]
            mem = []
            if n == 1:
                A("s_waitcnt lgkmcnt(0)")
                mem = vl1
            if n == 3:
                A("s_waitcnt lgkmcnt(0)")
            if qk is None:
                A("s_nop 1")
            self.emit_slot(qk=qk, pv=pv, sm=(u, n % 3, n % 3), mem=mem)
            if cls == 0 and n in (0, 2, 4, 5, 6, 7, 8): self.stamp(f"T_s{n}")
            for key, h in sorted(hooks[n], key=lambda x: x[0]):
                h()
            if cls == 0 and n in (2, 4, 5, 6, 7, 8): self.stamp(f"T_h{n}")
        A("s_nop 1")
        u0, L0 = tl[M - 1]
        self.emit_slot(pv=(u0, (M - 1) % 3, L0))
        self.stamp(f"tpv_{cls}") if cls == 0 else None
        W0()
        PS(d, 0)
        if e in self.ones:
            F1(e)()
        WR(d, 1)
        WR(e, 0)
        WR(e, 1)
        A("s_waitcnt lgkmcnt(15)")
        PS(d, 1)
        A("s_waitcnt lgkmcnt(8)")
        PS(e, 0)
        A("s_waitcnt lgkmcnt(0)")
        PS(e, 1)
        self.stamp(f"tst_{cls}") if cls == 0 else None
        A("s_branch L_epi")

    def rowsum_reduce(self, reg, tmp):
        A = self.A
        A(f"v_mov_b32 v{tmp}, v{reg}")
        A("s_nop 1")
        A(f"v_permlane16_swap_b32 v{reg}, v{tmp}")
        A("s_nop 1")
        A(f"v_add_f32 v{reg}, v{reg}, v{tmp}")
        A(f"v_mov_b32 v{tmp}, v{reg}")
        A("s_nop 1")
        A(f"v_permlane32_swap_b32 v{reg}, v{tmp}")
        A("s_nop 1")
        A(f"v_add_f32 v{reg}, v{reg}, v{tmp}")

    def rowmax_reduce(self, reg, tmp):
        A = self.A
        A(f"v_mov_b32 v{tmp}, v{reg}")
        A("s_nop 1")
        A(f"v_permlane16_swap_b32 v{reg}, v{tmp}")
        A("s_nop 1")
        A(f"v_max_f32 v{reg}, v{reg}, v{tmp}")
        A(f"v_mov_b32 v{tmp}, v{reg}")
        A("s_nop 1")
        A(f"v_permlane32_swap_b32 v{reg}, v{tmp}")
        A("s_nop 1")
        A(f"v_max_f32 v{reg}, v{reg}, v{tmp}")

    def store_setup(self):
        A = self.A
        lane, t0, t1, t2 = vT + 8, vT, vT + 1, vT + 2
        A(f"v_and_b32 v{t0}, 15, v{lane}")
        A(f"v_lshrrev_b32 v{t1}, 4, v{lane}")
        A(f"s_lshl_b32 s{sT1}, s{sWave}, 13")
        A(f"s_add_u32 s{sT1}, s{sT1}, {LDS_SP}")
        A(f"v_and_b32 v{t2}, 1, v{t1}")
        A(f"v_lshlrev_b32 v{t2}, 3, v{t2}")
        A(f"v_lshl_add_u32 v{t2}, v{t0}, 8, v{t2}")
        A(f"v_add_u32 v{t2}, s{sT1}, v{t2}")
        A(f"v_lshrrev_b32 v{t1}, 1, v{t1}")
        for dt in range(8):
            A(f"v_add_u32 v{dt}, {2 * dt}, v{t1}")
            A(f"v_xor_b32 v{dt}, v{dt}, v{t0}")
            A(f"v_lshl_add_u32 v{dt}, v{dt}, 4, v{t2}")
        A(f"v_lshrrev_b32 v{t1}, 4, v{lane}")
        for i in range(4):
            A(f"v_add_u32 v{8 + i}, {4 * i}, v{t1}")
            A(f"v_xor_b32 v{t2}, v{8 + i}, v{t0}")
            A(f"v_lshlrev_b32 v{t2}, 4, v{t2}")
            A(f"v_lshl_add_u32 v{8 + i}, v{8 + i}, 8, v{t2}")
            A(f"v_add_u32 v{8 + i}, s{sT1}, v{8 + i}")
        A(f"v_lshlrev_b32 v12, 4, v{lane}")

    def store_unit(self, u, rinv, rowoff_sreg):
        A = self.A
        tb = 16
        for dt in range(8):
            for r in range(4):
                A(f"v_accvgpr_read_b32 v{tb + r}, a{aO + 32 * u + 4 * dt + r}")
            for r in range(4):
                A(f"v_mul_f32 v{tb + r}, v{tb + r}, v{rinv}")
            p = tb + 8 + 2 * dt
            A(f"v_cvt_pk_bf16_f32 v{p}, v{tb}, v{tb + 1}")
            A(f"v_cvt_pk_bf16_f32 v{p + 1}, v{tb + 2}, v{tb + 3}")
            A(f"ds_write_b64 v{dt}, {self.vr(p, 2)}")
        A("s_waitcnt lgkmcnt(0)")
        rb = 48
        for i in range(4):
            A(f"ds_read_b128 {self.vr(rb + 4 * i)}, v{8 + i}")
        nt = " nt" if self.cfg.st_nt else ""
        for i in range(4):
            A(f"s_waitcnt lgkmcnt({3 - i})")
            A(f"buffer_store_dwordx4 {self.vr(rb + 4 * i)}, v12, s[{sO}:{sO + 3}], s{rowoff_sreg} offen offset:{i * 1024}{nt}")

    def check_l(self, reg):
        A = self.A
        A(f"v_cmp_nge_f32 vcc, v{reg}, v{vT + 6}")
        A("s_nop 1")
        A(f"s_or_b64 s[{sBad}:{sBad + 1}], s[{sBad}:{sBad + 1}], vcc")
        A(f"v_cmp_nle_f32 vcc, v{reg}, v{vT + 7}")
        A("s_nop 1")
        A(f"s_or_b64 s[{sBad}:{sBad + 1}], s[{sBad}:{sBad + 1}], vcc")

    def epilogue(self):
        A = self.A
        cfg = self.cfg
        chk = self.vChkQ
        KX, vX, vG16 = self.KX, self.vX, self.vG16
        self.label("L_epi")
        A(f"s_movk_i32 s{sT1}, 0x207")
        A("s_nop 7")
        A(f"v_cmp_class_f32 vcc, v{chk}, s{sT1}")
        A("s_nop 1")
        A(f"s_or_b64 s[{sBad}:{sBad + 1}], s[{sBad}:{sBad + 1}], vcc")
        if cfg.force_fallback:
            A(f"s_mov_b64 s[{sBad}:{sBad + 1}], -1")
        if cfg.fallback:
            A(f"s_cmp_lg_u64 s[{sBad}:{sBad + 1}], 0")
            A(f"s_cselect_b32 s{sT2}, 1, 0")
            A(f"v_mov_b32 v97, s{sT2}")
            A(f"ds_write_b32 v{vX}, v97 offset:{KX + 4096}")
            A("s_waitcnt lgkmcnt(0)")
            A("s_barrier")
            for ww in range(4):
                A(f"ds_read_b32 v{98 + ww}, v{vG16} offset:{KX + 4096 + ww * 1024}")
            A("s_waitcnt lgkmcnt(0)")
            A(f"v_or_b32 v98, v98, v99")
            A(f"v_or3_b32 v98, v98, v100, v101")
            A(f"v_cmp_ne_u32 vcc, 0, v98")
            A("s_nop 1")
            A("s_cmp_lg_u64 vcc, 0")
            A("s_cbranch_scc1 L_fallback")
        self.finish()

    def finish(self):
        A = self.A
        if self.cfg.stamps:
            A("s_waitcnt vmcnt(0)")
            A(f"s_memrealtime s[{sArg}:{sArg + 1}]")
            A(f"s_memtime s[{sArg + 2}:{sArg + 3}]")
            A("s_waitcnt lgkmcnt(0)")
            A(f"s_sub_u32 s{sArg + 2}, s{sArg + 2}, s{sStamp + 2}")
            A(f"s_sub_u32 s{sArg + 4}, s{sStamp + 4}, s{sStamp + 2}")
            A(f"s_sub_u32 s{sArg + 5}, s{sStamp + 6}, s{sStamp + 4}")
            A(f"v_mov_b32 v64, s{sStamp}")
            A(f"v_mov_b32 v65, s{sArg}")
            A(f"v_mov_b32 v66, s{sArg + 2}")
            A(f"v_mov_b32 v67, s{sArg + 4}")
            A(f"v_mov_b32 v68, s{sArg + 5}")
            A(f"v_mov_b32 v69, s{sWave}")
            A(f"v_mov_b32 v70, 0")
            A(f"v_mov_b32 v71, 0")
            for i in range(len(self.stamp_names)):
                A(f"s_sub_u32 s{sPS + 2 * i}, s{sPS + 2 * i}, s{sStamp + 2}")
                A(f"v_mov_b32 v{76 + i}, s{sPS + 2 * i}")
            for i in range(len(self.stamp_names), 24):
                A(f"v_mov_b32 v{76 + i}, 0")
            A(f"s_lshl_b32 s{sT1}, s2, 7")
            A(f"s_lshl_b32 s{sT2}, s{sWave}, 15")
            A(f"s_add_u32 s{sT1}, s{sT1}, s{sT2}")
            A(f"v_mov_b32 v72, s{sT1}")
            A(f"v_mbcnt_lo_u32_b32 v73, -1, 0")
            A(f"v_mbcnt_hi_u32_b32 v73, -1, v73")
            A(f"v_cmp_eq_u32 vcc, 0, v73")
            A(f"s_and_saveexec_b64 s[{sTmp64}:{sTmp64 + 1}], vcc")
            A(f"buffer_store_dwordx4 v[64:67], v72, s[{sW_}:{sW_ + 3}], 0 offen")
            A(f"buffer_store_dwordx4 v[68:71], v72, s[{sW_}:{sW_ + 3}], 0 offen offset:16")
            for i in range(6):
                A(f"buffer_store_dwordx4 v[{76 + 4 * i}:{79 + 4 * i}], v72, s[{sW_}:{sW_ + 3}], 0 offen offset:{32 + 16 * i}")
        A("s_branch L_end")

    def fallback(self):
        A = self.A
        lane = vT + 8
        vM = 152
        vM = 140
        self.label("L_fallback")
        A("s_waitcnt vmcnt(0) lgkmcnt(0)")
        A("s_barrier")
        for i in range(8):
            A(f"v_accvgpr_read_b32 v{vKA + i}, a{aStash + i}")
        A(f"v_mbcnt_lo_u32_b32 v{lane}, -1, 0")
        A(f"v_mbcnt_hi_u32_b32 v{lane}, -1, v{lane}")
        A(f"v_and_b32 v{vT}, 15, v{lane}")
        A(f"v_lshrrev_b32 v{vT + 1}, 4, v{lane}")
        A(f"v_lshlrev_b32 v{vT}, 8, v{vT}")
        A(f"v_lshl_add_u32 v{vT}, v{vT + 1}, 4, v{vT}")
        A(f"s_mul_i32 s{sT3}, s{sWave}, {80 * 256}")
        for u in range(6):
            if u < 5:
                A(f"s_add_u32 s{sSoff}, s{sT3}, {u * 4096}")
            else:
                A(f"s_mov_b32 s{sSoff}, {320 * 256}")
            for j in range(4):
                A(f"buffer_load_dwordx4 {self.vr(vKF + 4 * j)}, v{vT}, s[{sQ}:{sQ + 3}], s{sSoff} offen offset:{j * 64}")
            A("s_waitcnt vmcnt(0)")
            f, b = self.qloc[u]
            if f == 'v':
                self.q_scale(vKF, b, 16)
            else:
                self.q_scale(vKF, b, 16, toacc=True)
        for u in range(6):
            A(f"v_mov_b32 v{vM + u}, 0xff800000")
        self.zero_acc()
        for ps in range(2):
            A(f"s_lshl_b32 s{sSlot}, s{sWave}, 10")
            A(f"s_mov_b32 s{sGoff}, 0")
            A(f"s_mov_b32 s{sLoop}, {NTILES}")
            self.label(f"L_fb{ps}")
            A("s_barrier")
            self.dma_tile_simple('K')
            if ps == 1:
                self.dma_tile_simple('V')
            A(f"s_add_u32 s{sGoff}, s{sGoff}, 16384")
            A("s_waitcnt vmcnt(0)")
            A("s_barrier")
            for L in range(2):
                for t in range(2):
                    for j in range(4):
                        A(self.k_read(0, L, 0, t, j))
                if ps == 1:
                    for dt in range(8):
                        for t in range(2):
                            A(self.v_read(0, L, 0, t, dt))
                A("s_waitcnt lgkmcnt(0)")
                for u in range(6):
                    for t in range(2):
                        for j in range(4):
                            A(self.qk_mfma(u, 0, 0, t, j))
                    A("s_nop 7")
                    A("s_nop 3")
                    if ps == 0:
                        for k in range(8):
                            A(f"v_max_f32 v{vM + u}, v{vM + u}, v{vS + k}")
                    else:
                        for k in range(8):
                            A(f"v_sub_f32 v{vS + k}, v{vS + k}, v{vM + u}")
                        for k in range(8):
                            A(f"v_exp_f32 v{vS + k}, v{vS + k}")
                        A("s_nop 0")
                        for k in range(8):
                            A(f"v_add_f32 v{vL + u}, v{vL + u}, v{vS + k}")
                        for k in range(4):
                            A(f"v_cvt_pk_bf16_f32 v{vP + k}, v{vS + 2 * k}, v{vS + 2 * k + 1}")
                        A("s_nop 1")
                        for dt in range(8):
                            A(self.pv_mfma(u, 0, 0, dt))
                    A("s_nop 3")
            A("s_waitcnt lgkmcnt(0)")
            A(f"s_sub_u32 s{sLoop}, s{sLoop}, 1")
            A(f"s_cmp_lg_u32 s{sLoop}, 0")
            A(f"s_cbranch_scc1 L_fb{ps}")
            if ps == 0:
                for u in range(6):
                    self.rowmax_reduce(vM + u, vT + 1)
        A("s_nop 7")
        A("s_nop 7")
        A("s_barrier")
        A(f"v_mbcnt_lo_u32_b32 v{lane}, -1, 0")
        A(f"v_mbcnt_hi_u32_b32 v{lane}, -1, v{lane}")
        for u in range(6):
            self.rowsum_reduce(vL + u, vT + 1)
        self.store_setup()
        for u in range(6):
            if u == 5:
                A(f"s_cmp_lg_u32 s{sWave}, 0")
                A("s_cbranch_scc1 L_fb_done")
            A(f"v_rcp_f32 v{vT + 2}, v{vL + u}")
            if u < 5:
                A(f"s_mul_i32 s{sT3}, s{sWave}, {80 * 256}")
                A(f"s_add_u32 s{sT3}, s{sT3}, {u * 4096}")
            else:
                A(f"s_mov_b32 s{sT3}, {320 * 256}")
            self.store_unit(u, vT + 2, sT3)
        self.label("L_fb_done")
        self.finish()

    def generate(self):
        A = self.A
        self.prologue()
        A(f"s_cmp_ge_u32 s{sWave}, 2")
        A("s_cbranch_scc1 L_cls1")
        self.main_loop(0)
        st0 = dict(self.stats)
        A("s_branch L_epi")
        self.label("L_cls1")
        self.main_loop(1)
        st1 = dict(self.stats)
        self.epilogue()
        if self.cfg.fallback:
            self.fallback()
        self.label("L_end")
        A("s_endpgm")
        hdr = open("standalone__gqa_softmax__near_ridge.s.ref").read().split("; Override")[0]
        txt = hdr
        txt += "; Override launch geometry by editing the next line.\n"
        txt += f"; @launch grid=(256,1,1) block=(256,1,1) lds={LDS_TOTAL}\n"
        txt += '.amdgcn_target "amdgcn-amd-amdhsa--gfx950"\n.text\n'
        txt += f".globl {NAME}\n.p2align 8\n.type {NAME},@function\n{NAME}:\n"
        for x in self.L:
            txt += (x if x.endswith(":") else "    " + x) + "\n"
        txt += '.section .rodata,"a"\n.p2align 6\n'
        txt += f""".amdhsa_kernel {NAME}
  .amdhsa_next_free_vgpr 512
  .amdhsa_next_free_sgpr 102
  .amdhsa_accum_offset 256
  .amdhsa_group_segment_fixed_size 0
  .amdhsa_kernarg_size 48
  .amdhsa_user_sgpr_count 2
  .amdhsa_user_sgpr_kernarg_segment_ptr 1
  .amdhsa_system_sgpr_workgroup_id_x 1
.end_amdhsa_kernel
"""
        return txt, st0, st1


if __name__ == "__main__":
    ap = argparse.ArgumentParser()
    ap.add_argument("-o", default="k.s")
    ap.add_argument("--stamps", action="store_true")
    ap.add_argument("--ones", default="0")
    ap.add_argument("--force-fallback", action="store_true")
    ap.add_argument("--set", action="append", default=[])
    a = ap.parse_args()
    kw = dict(stamps=a.stamps, force_fallback=a.force_fallback,
              ones_units=tuple(int(x) for x in a.ones.split(",") if x != ""))
    for s in a.set:
        k, v = s.split("=")
        kw[k] = eval(v)
    g = Gen(Cfg(**kw))
    txt, st0, st1 = g.generate()
    open(a.o, "w").write(txt)
    print("generated", a.o, st0, st1, "lines", txt.count("\n"), "stamps", g.stamp_names, file=sys.stderr)
```

```python
import sys, math, argparse

NAME = "standalone__gqa_softmax__near_ridge_kernel"
SQ, SK, D = 336, 2048, 128
NTILES = SK // 64
QBYTES = SQ * D * 2
KBYTES = SK * D * 2
LDS_K = 0
LDS_V = 65536
LDS_SP = 131072
LDS_TOTAL = 163840
CSCALE = math.log2(math.e) / math.sqrt(D)


def f32hex(x):
    import struct
    return "0x%08x" % struct.unpack("<I", struct.pack("<f", x))[0]


def slot_of(tile):
    return (tile + 3) % 4


class Cfg:
    def __init__(self, **kw):
        self.ones_units = (0,)
        self.stamps = False
        self.nt = True
        self.order = (1, 0, 2, 3, 4)
        self.shared_pos = 2
        self.fallback = True
        self.force_fallback = False
        self.bar_shift = 4
        self.coff = 40
        self.lo_thr = 2.0 ** -50
        self.hi_thr = 0.5
        self.st_nt = True
        self.st_mod = " nt"
        self.delta = 5
        self.qorder = (0, 1, 2, 3, 4)
        self.iter_stamps = False
        self.tail_stamps = False
        self.exp_noepi = False
        self.exp_noq = False
        self.pkmul = True
        self.block = True
        self.barA_blk = 99
        self.stamp_cls = 0
        self.w2 = True
        self.x_nochk = False
        self.x_nostore = False
        self.x_nomul = False
        self.x_nods = False
        self.barA = 8
        self.barB = 16
        for k, v in kw.items():
            assert hasattr(self, k), k
            setattr(self, k, v)


sQ, sK, sV, sO, sW_ = 8, 12, 16, 20, 24
sWave = 28
sLoop = 29
sGoff = 30
sSlot = 31
sT0, sT1, sT2, sT3 = 32, 33, 34, 35
sArg = 36
sBad = 44
sTmp64 = 46
sSoff = 48
sStamp = 50
sP = 58
sC = 60
sThrLo, sThrHi = 62, 63
sMask = 64
sPass = 65
sPS = 66
sHi = 42

vO = 0
vS = 192
vP = 216
vKA = 228
vVA = 230
vDK = 234
vDV = 235
vL = 236
vT = 242
vC = 252

aKF = 0
aVF = 64
aQ = 128
aL = 224
aOnes = 236
aStash = 240
aAddr = 248


class It:
    def __init__(self, txt, ds=None, needs=()):
        self.txt, self.ds, self.needs = txt, ds, list(needs)


class Gen:
    def __init__(self, cfg):
        self.cfg = cfg
        self.L = []
        self.uid = 0
        self.stamp_names = []
        ones = list(cfg.ones_units) + [5]
        self.ones = ones
        assert len(ones) <= 3
        self.aLidx = {u: aL + 4 * i for i, u in enumerate(ones)}
        self.qloc = {u: ('a', aQ + 16 * u) for u in range(6)}
        self.vm = []

    def A(self, s):
        self.L.append(s)

    def label(self, s):
        self.L.append(s + ":")

    def q(self, u, j):
        f, b = self.qloc[u]
        return f"{f}[{b + 4 * j}:{b + 4 * j + 3}]"

    @staticmethod
    def vr(b, n=4):
        return f"v[{b}:{b + n - 1}]"

    @staticmethod
    def ar(b, n=4):
        return f"a[{b}:{b + n - 1}]"

    def stamp(self, name):
        if not self.cfg.stamps:
            return
        if self.cfg.tail_stamps != name.startswith("T_") and not name.startswith("t"):
            return
        i = len(self.stamp_names)
        assert i < 17
        self.stamp_names.append(name)
        self.A(f"s_memtime s[{sPS + 2 * i}:{sPS + 2 * i + 1}]")

    def qk_mfma(self, u, sbuf, kbuf, t, j):
        d = vS + 8 * sbuf + 4 * t
        a = aKF + 32 * kbuf + 16 * t + 4 * j
        c = self.vr(vC) if j == 0 else self.vr(d)
        return f"v_mfma_f32_16x16x32_bf16 {self.vr(d)}, {self.ar(a)}, {self.q(u, j)}, {c}"

    def pv_mfma(self, u, pbuf, vbuf, dt, first=False):
        d = vO + 32 * u + 4 * dt
        a = aVF + 32 * vbuf + 4 * dt
        b = vP + 4 * pbuf
        c = "0" if first else self.vr(d)
        return f"v_mfma_f32_16x16x32_bf16 {self.vr(d)}, {self.ar(a)}, {self.vr(b)}, {c}"

    def ones_mfma(self, u, pbuf):
        d = self.aLidx[u]
        b = vP + 4 * pbuf
        return f"v_mfma_f32_16x16x32_bf16 {self.ar(d)}, {self.ar(aOnes)}, {self.vr(b)}, {self.ar(d)}"

    def k_read(self, kbuf, L, slotpar, t, j):
        d = aKF + 32 * kbuf + 16 * t + 4 * j
        off = slotpar * 16384 + t * 4096 + (j // 2) * 2048 + (j % 2) * 512
        return f"ds_read_b128 {self.ar(d)}, v{vKA + L} offset:{off}"

    def v_read(self, vbuf, L, slotpar, t, dt):
        d = aVF + 32 * vbuf + 4 * dt + 2 * t
        off = slotpar * 16384 + t * 4096 + (dt // 2) * 512
        return f"ds_read_b64_tr_b16 {self.ar(d, 2)}, v{vVA + 2 * L + (dt % 2)} offset:{off}"

    def dma(self, which):
        nt = " nt" if self.cfg.nt else ""
        if which == 'K':
            return f"buffer_load_dwordx4 v{vDK}, s[{sK}:{sK + 3}], s{sSoff} offen{nt} lds"
        return f"buffer_load_dwordx4 v{vDV}, s[{sV}:{sV + 3}], s{sSoff} offen{nt} lds"

    def dma_tile_simple(self, which):
        base = LDS_K if which == 'K' else LDS_V
        for m in range(4):
            self.A(f"s_add_u32 m0, s{sSlot}, {base + m * 4096}")
            self.A(f"s_add_u32 s{sSoff}, s{sGoff}, {m * 4096}")
            self.A(self.dma(which))

    def advance_tile(self):
        return [f"s_add_u32 s{sGoff}, s{sGoff}, 16384",
                f"s_add_u32 s{sSlot}, s{sSlot}, 16384",
                f"s_and_b32 s{sSlot}, s{sSlot}, 0xffff"]

    def sm_items(self, u, sbuf, pbuf):
        sb = vS + 8 * sbuf
        pb = vP + 4 * pbuf
        E = [f"v_exp_f32 v{sb + k}, v{sb + k}" for k in range(8)]
        C = {k: f"v_cvt_pk_bf16_f32 v{pb + k // 2}, v{sb + k - 1}, v{sb + k}" for k in (1, 3, 5, 7)}
        Ad = {k: f"v_add_f32 v{vL + u}, v{vL + u}, v{sb + k}" for k in range(8)} if u not in self.ones else {}
        return E, C, Ad

    def emit_slot(self, qk=None, pv=None, sm=None, mem=()):
        A = self.A
        mf = []
        if qk:
            u, sbuf, kbuf = qk
            mf += [self.qk_mfma(u, sbuf, kbuf, t, j) for t in range(2) for j in range(4)]
        if pv:
            u, pbuf, vbuf = pv[:3]
            first = len(pv) > 3 and pv[3]
            mf += [self.pv_mfma(u, pbuf, vbuf, dt, first) for dt in range(8)]
            if u in self.ones:
                mf.append(self.ones_mfma(u, pbuf))
        fill = [[] for _ in range(len(mf) + 1)]
        if sm:
            E, C, Ad = self.sm_items(*sm)
            if len(mf) >= 16:
                for k in range(8):
                    fill[2 * k].append(E[k])
                    if k in C:
                        fill[2 * k + 1].append(C[k])
                    if k in Ad:
                        fill[2 * k + 1].append(Ad[k])
            else:
                assert len(mf) >= 8
                for k in range(8):
                    fill[k].append(E[k])
                    nx = k + 1 if k + 1 < 8 else len(mf)
                    if k in C:
                        fill[nx].append(C[k])
                    if k in Ad:
                        fill[nx].append(Ad[k])
                if len(mf) == 8:
                    fill[8].insert(0, "s_nop 0")
        mem = list(mem)
        n = len(mf)
        memat = [[] for _ in range(n + 1)]
        for i, m in enumerate(mem):
            memat[min(n - 1, (i * n) // max(len(mem), 1))].append(m)
        for i, m in enumerate(mf):
            A(m)
            for x in memat[i]:
                A(x)
            for x in fill[i]:
                A(x)
        for x in fill[n]:
            A(x)

    def vm_issue(self, tag):
        self.vm.append(tag)

    def vm_wait(self, tag, extra=""):
        last = max(i for i, t in enumerate(self.vm) if t == tag)
        n = len(self.vm) - 1 - last
        self.A(f"s_waitcnt vmcnt({n}){extra}")

    def q_scale(self, src, dst, n, toacc=False):
        A = self.A
        tmp = vS
        for r0 in range(0, n, 4):
            for r in range(4):
                A(f"v_lshlrev_b32 v{tmp + 2 * r}, 16, v{src + r0 + r}")
                A(f"v_and_b32 v{tmp + 2 * r + 1}, s{sMask}, v{src + r0 + r}")
            for r in range(4):
                A(f"v_pk_mul_f32 v[{tmp + 2 * r}:{tmp + 2 * r + 1}], v[{tmp + 2 * r}:{tmp + 2 * r + 1}], s[{sC}:{sC + 1}]")
            for r in range(4):
                d = src if toacc else dst
                A(f"v_cvt_pk_bf16_f32 v{d + r0 + r}, v{tmp + 2 * r}, v{tmp + 2 * r + 1}")
            if toacc:
                for r in range(4):
                    A(f"v_accvgpr_write_b32 a{dst + r0 + r}, v{src + r0 + r}")

    def prologue(self):
        A = self.A
        cfg = self.cfg
        nt = " nt" if cfg.nt else ""
        A("s_cmp_ge_u32 s2, 256")
        A("s_cbranch_scc1 L_end")
        A(f"s_load_dwordx8 s[{sArg}:{sArg + 7}], s[0:1], 0")
        if cfg.stamps:
            A(f"s_load_dwordx2 s[{sW_}:{sW_ + 1}], s[0:1], 40")
            A(f"s_memrealtime s[{sStamp}:{sStamp + 1}]")
            A(f"s_memtime s[{sStamp + 2}:{sStamp + 3}]")
        t0, t1, t2, t3, t4 = vT, vT + 1, vT + 2, vT + 3, vT + 4
        lane = vT + 8
        for i in range(4):
            A(f"v_mov_b32 v{vP + i}, 0")
        zlist = [f"v_mfma_f32_32x32x16_bf16 v[{vO + 160 + 16 * i}:{vO + 175 + 16 * i}], v[{vP}:{vP + 3}], v[{vP}:{vP + 3}], 0"
                 for i in range(2)]
        zlist.append(f"v_mfma_f32_32x32x16_bf16 a[{aL}:{aL + 15}], v[{vP}:{vP + 3}], v[{vP}:{vP + 3}], 0")
        pre = []
        P = pre.append
        P(f"v_and_b32 v{lane}, 63, v0")
        P(f"v_lshrrev_b32 v{t0}, 6, v0")
        P(f"v_lshrrev_b32 v{t1}, 5, v{lane}")
        P(f"v_readfirstlane_b32 s{sWave}, v{t0}")
        P(f"v_lshlrev_b32 v{t0}, 6, v{t1}")
        P(f"v_bfe_u32 v{t1}, v{lane}, 2, 3")
        P(f"v_and_b32 v{t2}, 3, v{lane}")
        P(f"v_lshl_add_u32 v{t0}, v{t1}, 8, v{t0}")
        P(f"v_lshrrev_b32 v{t3}, 2, v{t1}")
        for rh in range(2):
            P(f"v_add_u32 v{t4}, {2 * rh}, v{t3}")
            P(f"v_sub_u32 v{t4}, 0, v{t4}")
            P(f"v_and_b32 v{t4}, 3, v{t4}")
            P(f"v_xor_b32 v{t4}, v{t4}, v{t2}")
            P(f"v_lshl_add_u32 v{t4}, v{t4}, 4, v{t0}")
            P(f"v_add_u32 v{vT + 6 + rh}, {rh * 2048}, v{t4}")
        P(f"s_and_b32 s{sP}, s{sWave}, 1")
        P(f"s_lshr_b32 s{sT0}, s{sWave}, 1")
        P(f"s_cmp_eq_u32 s{sP}, 0")
        P(f"s_cselect_b64 s[{sTmp64}:{sTmp64 + 1}], -1, 0")
        P(f"v_cndmask_b32 v{t3}, v{vT + 7}, v{vT + 6}, s[{sTmp64}:{sTmp64 + 1}]")
        P(f"s_lshl_b32 s{sT1}, s{sT0}, 7")
        P(f"v_add_u32 v{vDK}, s{sT1}, v{t3}")
        P(f"s_lshl_b32 s{sSlot}, s{sWave}, 10")
        P(f"s_mul_i32 s{sT1}, s2, {QBYTES}")
        P(f"s_lshl_b32 s{sT2}, s2, 19")
        zi = 0
        for i, x in enumerate(pre):
            A(x)
            if i % 3 == 2 and zi < len(zlist):
                A(zlist[zi]); zi += 1
        while zi < len(zlist):
            A(zlist[zi]); zi += 1

        def srd(reg, arg, off, size):
            A(f"s_add_u32 s{reg}, s{arg}, s{off}")
            A(f"s_addc_u32 s{reg + 1}, s{arg + 1}, 0")
            A(f"s_and_b32 s{reg + 1}, s{reg + 1}, 0xffff")
            A(f"s_mov_b32 s{reg + 2}, {size}")
            A(f"s_mov_b32 s{reg + 3}, 0x20000")

        def kv_group(which, tile):
            base = LDS_K if which == 'K' else LDS_V
            for m in range(4):
                A(f"s_add_u32 m0, s{sSlot}, {base + slot_of(tile) * 16384 + m * 4096}")
                A(f"s_mov_b32 s{sSoff}, {tile * 16384 + m * 4096}")
                A(self.dma(which))
                self.vm_issue(f"{which}{tile}")
        sW13, sW12, sRow = sT0, sT3, sPass
        B2 = LDS_K + slot_of(3) * 16384
        PC = LDS_V + slot_of(3) * 16384
        qorder = cfg.qorder
        stage = {qorder[0]: (sW13, LDS_SP), qorder[1]: (sW13, LDS_SP + 4096), qorder[2]: (sW12, B2),
                 qorder[3]: (sW13, LDS_SP), qorder[4]: (sW13, LDS_SP + 4096)}

        def q_dma(u):
            sreg, base = stage[u]
            for jp in range(2):
                for rh in range(2):
                    A(f"s_add_u32 m0, s{sreg}, {base + jp * 2048 + rh * 1024}")
                    A(f"s_add_u32 s{sSoff}, s{sRow}, {u * 4096 + jp * 128}")
                    A(f"buffer_load_dwordx4 v{vT + 6 + rh}, s[{sQ}:{sQ + 3}], s{sSoff} offen{nt} lds")
                    self.vm_issue(f"Q{u}")
        A("s_waitcnt lgkmcnt(0)")
        self.stamp("karg")
        srd(sK, sArg + 2, sT2, KBYTES)
        kv_group('K', 0)
        srd(sQ, sArg, sT1, QBYTES)
        A(f"s_lshl_b32 s{sW13}, s{sWave}, 13")
        A(f"s_lshl_b32 s{sW12}, s{sWave}, 12")
        A(f"s_mul_i32 s{sRow}, s{sWave}, {80 * 256}")
        q_dma(qorder[0])
        A(f"s_add_u32 m0, s{sSlot}, {PC}")
        A(f"s_lshr_b32 s{sSoff}, s{sWave}, 1")
        A(f"s_lshl_b32 s{sSoff}, s{sSoff}, 7")
        A(f"s_add_u32 s{sSoff}, s{sSoff}, {320 * 256}")
        A(f"buffer_load_dwordx4 v{t3}, s[{sQ}:{sQ + 3}], s{sSoff} offen{nt} lds")
        self.vm_issue("QP")
        self.stamp("iss9")
        srd(sV, sArg + 4, sT2, KBYTES)
        A(f"v_bfe_u32 v{t0}, v{lane}, 4, 1")
        A(f"v_bfe_u32 v{t1}, v{lane}, 2, 2")
        A(f"v_lshl_add_u32 v{t1}, v{t0}, 2, v{t1}")
        A(f"v_bfe_u32 v{t2}, v{lane}, 1, 1")
        A(f"v_xor_b32 v{t2}, v{t2}, v{t0}")
        A(f"v_and_b32 v{t3}, 1, v{lane}")
        A(f"v_lshl_add_u32 v{t2}, v{t2}, 1, v{t3}")
        A(f"v_lshrrev_b32 v{t3}, 5, v{lane}")
        A(f"v_lshl_add_u32 v{t2}, v{t3}, 2, v{t2}")
        A(f"v_lshlrev_b32 v{t2}, 4, v{t2}")
        A(f"v_lshl_add_u32 v{vDV}, v{t1}, 8, v{t2}")
        A(f"s_lshr_b32 s{sTmp64}, s{sWave}, 1")
        A(f"s_lshl_b32 s{sTmp64}, s{sTmp64}, 11")
        A(f"s_lshl_b32 s{sTmp64 + 1}, s{sP}, 7")
        A(f"s_add_u32 s{sTmp64}, s{sTmp64}, s{sTmp64 + 1}")
        A(f"v_add_u32 v{vDV}, s{sTmp64}, v{vDV}")
        kv_group('V', 0)
        q_dma(qorder[1])
        self.stamp("iss17")
        srd(sO, sArg + 6, sT1, QBYTES)
        if cfg.stamps:
            A(f"s_and_b32 s{sW_ + 1}, s{sW_ + 1}, 0xffff")
            A(f"s_mov_b32 s{sW_ + 2}, 0x100000")
            A(f"s_mov_b32 s{sW_ + 3}, 0x20000")
        qa01, k5addr, plin, qa2 = vT + 4, vT + 5, vT + 8, vT + 9
        kaddr = vP + 4
        A(f"v_and_b32 v{t0}, 15, v{lane}")
        A(f"v_lshrrev_b32 v{t1}, 4, v{lane}")
        A(f"v_lshrrev_b32 v{t2}, 2, v{t0}")
        A(f"v_sub_u32 v{t2}, 0, v{t2}")
        A(f"v_and_b32 v{t2}, 3, v{t2}")
        A(f"v_xor_b32 v{t2}, v{t2}, v{t1}")
        A(f"v_lshlrev_b32 v{t2}, 4, v{t2}")
        A(f"v_and_b32 v{t3}, 7, v{t0}")
        A(f"v_lshl_add_u32 v{t2}, v{t3}, 6, v{t2}")
        A(f"v_lshrrev_b32 v{t3}, 3, v{t0}")
        A(f"v_lshl_add_u32 v{kaddr}, v{t3}, 10, v{t2}")
        sA, sB = sTmp64, sTmp64 + 1
        A(f"s_lshl_b32 s{sA}, s{sP}, 13")
        A(f"s_xor_b32 s{sB}, s{sA}, 8192")
        A(f"v_add_u32 v{vKA}, s{sA}, v{kaddr}")
        A(f"v_add_u32 v{vKA + 1}, s{sB}, v{kaddr}")
        A(f"v_add_u32 v{k5addr}, {PC}, v{kaddr}")
        A(f"v_add_u32 v{qa01}, s{sW13}, v{kaddr}")
        A(f"v_add_u32 v{qa01}, {LDS_SP}, v{qa01}")
        A(f"v_add_u32 v{qa2}, s{sW12}, v{kaddr}")
        A(f"v_add_u32 v{qa2}, {B2}, v{qa2}")
        A(f"v_lshrrev_b32 v{t2}, 1, v{t1}")
        A(f"v_lshlrev_b32 v{t2}, 11, v{t2}")
        A(f"v_and_b32 v{t3}, 1, v{t1}")
        A(f"v_lshl_add_u32 v{t2}, v{t3}, 8, v{t2}")
        A(f"v_lshrrev_b32 v{kaddr}, 2, v{t0}")
        A(f"v_lshl_add_u32 v{t2}, v{kaddr}, 6, v{t2}")
        A(f"v_and_b32 v{kaddr}, 3, v{t0}")
        A(f"v_lshl_add_u32 v{t2}, v{kaddr}, 3, v{t2}")
        A(f"v_add_u32 v{t2}, {LDS_V}, v{t2}")
        for pi in range(2):
            A(f"v_xor_b32 v{kaddr}, {pi}, v{t3}")
            A(f"v_lshl_add_u32 v{kaddr}, v{kaddr}, 5, v{t2}")
            A(f"v_add_u32 v{vVA + pi}, s{sA}, v{kaddr}")
            A(f"v_add_u32 v{vVA + 2 + pi}, s{sB}, v{kaddr}")
        A(f"v_lshlrev_b32 v{plin}, 4, v{lane}")
        A(f"v_add_u32 v{plin}, s{sSlot}, v{plin}")
        A(f"v_add_u32 v{plin}, {PC}, v{plin}")
        A(f"s_mov_b32 s{sC}, {f32hex(CSCALE)}")
        A(f"s_mov_b32 s{sC + 1}, {f32hex(CSCALE)}")
        A(f"s_mov_b32 s{sMask}, 0xffff0000")
        A(f"s_mov_b32 s{sThrLo}, {f32hex(cfg.lo_thr)}")
        A(f"s_mov_b32 s{sThrHi}, {f32hex(cfg.hi_thr)}")
        for i in range(4):
            A(f"v_mov_b32 v{vT + 10}, 0x3f803f80") if i == 0 else None
            A(f"v_accvgpr_write_b32 a{aOnes + i}, v{vT + 10}")
        for i in range(6):
            A(f"v_mov_b32 v{vL + i}, 0")
        for i in range(4):
            A(f"v_mov_b32 v{vC + i}, {f32hex(-float(cfg.coff))}")
        for i in range(8):
            A(f"v_accvgpr_write_b32 a{aStash + i}, v{vKA + i}")
        self.out_addr_setup()
        self.stamp("setup")
        q_dma(qorder[2])
        S0 = slot_of(0)

        def kr(L, t, j):
            d = aKF + 32 * L + 16 * t + 4 * j
            return f"ds_read_b128 {self.ar(d)}, v{vKA + L} offset:{S0 * 16384 + t * 4096 + (j // 2) * 2048 + (j % 2) * 512}"

        def vrd(L, t, dt):
            d = aVF + 32 * L + 4 * dt + 2 * t
            return f"ds_read_b64_tr_b16 {self.ar(d, 2)}, v{vVA + 2 * L + (dt % 2)} offset:{S0 * 16384 + t * 4096 + (dt // 2) * 512}"
        self.vm_wait("K0")
        A("s_barrier")
        self.stamp("k0_bar")
        for L in range(2):
            for t in range(2):
                for j in range(4):
                    A(kr(L, t, j))

        def q_fetch(u, tq):
            sreg, base = stage[u]
            if base >= LDS_SP:
                reg, off = qa01, base - LDS_SP
            else:
                reg, off = qa2, 0
            for j in range(4):
                A(f"ds_read_b128 {self.vr(tq + 4 * j)}, v{reg} offset:{off + (j // 2) * 2048 + (j % 2) * 512}")
            A("s_waitcnt lgkmcnt(0)")

        def q_ready(u, after_read):
            f, b = self.qloc[u]
            tq = vO + 32 * u
            self.vm_wait(f"Q{u}")
            q_fetch(u, tq)
            after_read()
            self.q_scale(tq, b, 16, toacc=True)
            A("s_nop 1")
        a, b_, c, d_, e = qorder
        q_ready(a, lambda: q_dma(d_))
        self.stamp("qa_done")
        self.emit_slot(qk=(a, 1, 0))
        A("s_nop 2")
        self.emit_slot(qk=(a, 2, 1), sm=(a, 1, 1))
        E, C, Ad = self.sm_items(a, 2, 2)
        for k in range(8):
            A(E[k])
            if k >= 1 and (k - 1) in C:
                A(C[k - 1])
            if k >= 1 and (k - 1) in Ad:
                A(Ad[k - 1])
        A("s_nop 0")
        A(C[7])
        if 7 in Ad:
            A(Ad[7])
        self.vm_wait("QP")
        A(f"ds_read_b128 {self.vr(vP)}, v{plin}")
        A("s_waitcnt lgkmcnt(0)")
        self.q_scale(vP, vP, 4)
        A(f"ds_write_b128 v{plin}, {self.vr(vP)}")
        self.vm_wait("V0", " lgkmcnt(0)")
        A("s_barrier")
        self.stamp("v0_bar")
        for L in range(2):
            for dt in range(8):
                for t in range(2):
                    A(vrd(L, t, dt))
            if L == 0:
                for j in range(4):
                    A(f"ds_read_b128 {self.q(5, j)}, v{k5addr} offset:{(j // 2) * 2048 + (j % 2) * 512}")
        A("s_waitcnt lgkmcnt(15)")
        self.emit_slot(pv=(a, 1, 0, True))
        A("s_waitcnt lgkmcnt(0)")
        self.emit_slot(pv=(a, 2, 1))
        A(f"s_cmp_ge_u32 s{sWave}, 2")
        A("s_cbranch_scc1 L_noshared0")
        self.emit_slot(qk=(5, 1, 0))
        E, C, Ad = self.sm_items(5, 1, 1)
        A("s_nop 7")
        for k in range(8):
            A(E[k])
            if k >= 1 and (k - 1) in C:
                A(C[k - 1])
        A("s_nop 0")
        A(C[7])
        A("s_nop 1")
        self.emit_slot(pv=(5, 1, 0))
        self.label("L_noshared0")
        self.stamp("a_done")

        def burst(u, last=False):
            self.emit_slot(qk=(u, 1, 0))
            A("s_nop 2")
            self.emit_slot(qk=(u, 2, 1), sm=(u, 1, 1))
            A("s_nop 1")
            self.emit_slot(pv=(u, 1, 0, True), sm=(u, 2, 2))
            if not last:
                A("s_nop 1")
                self.emit_slot(pv=(u, 2, 1))
        q_ready(b_, lambda: q_dma(e))
        burst(b_)
        q_ready(c, lambda: kv_group('K', 1))
        burst(c)
        self.stamp("c_done")
        q_ready(d_, lambda: kv_group('V', 1))
        burst(d_)
        q_ready(e, lambda: kv_group('K', 2))
        burst(e, last=True)
        self.stamp("e_done")
        kv_group('V', 2)
        self.vm_wait("V1", " lgkmcnt(0)")
        A("s_barrier")
        self.stamp("bar0")
        for t in range(2):
            for j in range(4):
                A(self.k_read(0, 0, 0, t, j))
        for dt in range(8):
            for t in range(2):
                A(self.v_read(0, 0, 0, t, dt))
        kv_group('K', 3)
        A(f"s_mov_b32 s{sGoff}, {3 * 16384}")
        A(f"s_add_u32 s{sSlot}, s{sSlot}, {slot_of(3) * 16384}")
        A("s_waitcnt lgkmcnt(15)")

    def zero_acc(self):
        for i in range(192):
            self.A(f"v_mov_b32 v{vO + i}, 0")
        for i in range(6):
            self.A(f"v_mov_b32 v{vL + i}, 0")

    def ub_list(self, cls):
        cfg = self.cfg
        out = []
        shared_beta = 2 if cls == 0 else 0
        for beta in range(4):
            units = list(cfg.order)
            if beta == shared_beta:
                units.insert(cfg.shared_pos, 5)
            for u in units:
                out.append((beta, u))
        return out

    def build_loop(self, cls):
        cfg = self.cfg
        ubs = self.ub_list(cls)
        N = len(ubs)
        assert N % 3 == 0
        gaps = []
        slot_first = []
        for n in range(N):
            nb, nu = ubs[(n + 1) % N]
            cb, cu = ubs[n]
            pb, pu = ubs[(n - 1) % N]
            mf = []
            for t in range(2):
                for j in range(4):
                    mf.append(self.qk_mfma(nu, (n + 1) % 3, nb % 2, t, j))
            for dt in range(8):
                mf.append(self.pv_mfma(pu, (n - 1) % 3, pb % 2, dt))
            if pu in self.ones:
                mf.append(self.ones_mfma(pu, (n - 1) % 3))
            slot_first.append(len(gaps))
            sb = vS + 8 * (n % 3)
            pbuf = vP + 4 * (n % 3)
            adds = cu not in self.ones
            for i, m in enumerate(mf):
                g = dict(mfma=m, shadow=[], mem=[], valu=[], slot=n, pos=i, pre=[])
                if i < 16:
                    k = i // 2
                    if i % 2 == 0:
                        g['valu'].append(('E', f"v_exp_f32 v{sb + k}, v{sb + k}"))
                    else:
                        if k % 2 == 1:
                            g['valu'].append(('C', f"v_cvt_pk_bf16_f32 v{pbuf + k // 2}, v{sb + k - 1}, v{sb + k}"))
                        if adds:
                            g['valu'].append(('A', f"v_add_f32 v{vL + cu}, v{vL + cu}, v{sb + k}"))
                gaps.append(g)
        slot_first.append(len(gaps))
        G = len(gaps)

        def used(g):
            c = 0
            for k, _ in g['valu']:
                c += 2 if k == 'E' else 1
            for k, _ in g['mem']:
                c += 2 if k == 'D' else 1
            return c

        def place(items, lo, hi, cost):
            free = []
            for gi in range(lo, hi):
                f = 2 - used(gaps[gi])
                if cost == 2:
                    if f >= 2:
                        free.append(gi)
                else:
                    free.extend([gi] * max(f, 0))
            n = len(items)
            if len(free) >= n:
                sel = [free[(i * len(free)) // n] for i in range(n)]
            else:
                sel = list(free)
                cand = [gi for gi in range(lo, hi) if not any(k == 'E' for k, _ in gaps[gi]['valu'])]
                cnt = {gi: used(gaps[gi]) + sel.count(gi) * cost for gi in cand}
                while len(sel) < n:
                    gi = min(cand, key=lambda x: (cnt[x], abs(x - (lo + hi) // 2)))
                    sel.append(gi)
                    cnt[gi] += cost
                sel.sort()
            for it, gi in zip(items, sel):
                gaps[gi]['mem'].append(it)
            return sel

        bfirst = {}
        blast = {}
        for n, (b, u) in enumerate(ubs):
            bfirst.setdefault(b, n)
            blast[b] = n
        sh = cfg.bar_shift
        barpos = {}
        first = (cls == 1)
        for bb, sign in ((1, -1 if first else 1), (3, 1 if first else -1)):
            barpos[bb] = slot_first[bfirst[bb]] + sign * sh
        for bb in (1, 3):
            gi = barpos[bb] - 1
            gaps[gi]['shadow'].append(('W', f"s_waitcnt vmcnt({4 * (cfg.delta - 3)}) lgkmcnt(0)"))
            gaps[gi]['shadow'].append(('B', "s_barrier"))

        def dma_group(which, lo, hi):
            base = LDS_K if which == 'K' else LDS_V
            items = [('D', self.dma(which)) for m in range(4)]
            sel = place(items, lo, hi, 2)
            assert all(sel[i] + 3 <= sel[i + 1] for i in range(3)), sel
            prev = None
            for m, gi in enumerate(sel):
                gaps[gi - 1]['shadow'].append(('S', f"s_add_u32 m0, s{sSlot}, {base + m * 4096}"))
                gaps[gi - 2]['shadow'].append(('S', f"s_add_u32 s{sSoff}, s{sGoff}, {m * 4096}"))
            return sel

        for bb in (1, 3):
            nxt = (bb + 1) % 4
            lo = max(barpos[bb] + 3, slot_first[bfirst[bb]] + 3)
            selk = dma_group('K', lo, slot_first[blast[bb] + 1])
            lo2 = slot_first[bfirst[nxt]] + 3
            hi2 = slot_first[blast[nxt] + 1] - (sh + 2)
            selv = dma_group('V', lo2, hi2)
            gi = selv[-1] + 1
            adv = self.advance_tile()
            for i, x in enumerate(adv):
                gaps[gi + i]['shadow'].append(('S', x))

        need_wait = {}
        for beta in range(4):
            nb = (beta + 1) % 4
            L = nb % 2
            slotpar = (nb // 2) if nb != 0 else 0
            lo = slot_first[bfirst[beta]]
            hi = slot_first[blast[beta] + 1]
            crosses = (beta % 2 == 1)
            if crosses:
                lo = max(lo, barpos[beta])
                hiK = slot_first[blast[beta]] - 4
                hiV = hi
            else:
                endb = min(hi, barpos[nb])
                hiK = slot_first[blast[beta]] - 4
                hiV = endb - 8
            if beta == 3:
                tog = [('X', f"v_xor_b32 v{r}, 0x8000, v{r}") for r in (vKA, vVA, vVA + 1)]
                for i, it in enumerate(tog):
                    gaps[lo - 0 + 0]['pre'].append(it)
                tog2 = [('X', f"v_xor_b32 v{r}, 0x8000, v{r}") for r in (vKA + 1, vVA + 2, vVA + 3)]
                for it in tog2:
                    gaps[lo]['pre'].append(it)
                lo += 1
            kitems = [('R', self.k_read(nb % 2, L, slotpar, t, j), ('K', nb)) for t in range(2) for j in range(4)]
            kitems = [(k, txt) for k, txt, tag in kitems]
            place(kitems, lo, hiK, 1)
            loV = max(lo, slot_first[bfirst[beta] + 1])
            vitems = [('T', self.v_read(nb % 2, L, slotpar, t, dt)) for dt in range(8) for t in range(2)]
            place(vitems, loV, hiV, 1)
            need_wait[slot_first[blast[beta]]] = ('K', nb % 2)
            sl = (bfirst[nb] + 1) % N
            need_wait[slot_first[sl] + 8] = ('V', nb % 2)

        seq = []
        for gi, g in enumerate(gaps):
            if gi in need_wait:
                seq.append(('LW', need_wait[gi]))
            seq.append(('M', g['mfma']))
            for it in g['shadow']:
                seq.append(it)
            for it in g['pre']:
                seq.append(it)
            for it in g['mem']:
                seq.append(it)
            for it in g['valu']:
                seq.append(it)
        out = []
        for it in seq:
            if it[0] == 'LW':
                idx = max(i for i, x in enumerate(out) if x[0] == 'M') if any(x[0] == 'M' for x in out) else None
                if idx is None:
                    out.append(it)
                else:
                    out.insert(idx + 1, it)
            else:
                out.append(it)
        seq = out
        issued = 0
        last_write = {}
        res = {}
        for it_no in range(2):
            for i, (k, x) in enumerate(seq):
                if k in ('R', 'T'):
                    issued += 1
                    d = int(x.split('a[')[1].split(':')[0])
                    if aKF <= d < aKF + 64:
                        last_write[('K', (d - aKF) // 32)] = issued
                    else:
                        last_write[('V', (d - aVF) // 32)] = issued
                elif k == 'W':
                    pass
                elif k == 'LW' and it_no == 1:
                    n_out = issued - last_write[x]
                    res[i] = min(n_out, 15)
        final = []
        for i, (k, x) in enumerate(seq):
            if k == 'LW':
                final.append(('W', f"s_waitcnt lgkmcnt({res[i]})"))
            else:
                final.append((k, x))
        rd = [x for k, x in final if k in ('R', 'T')]
        lastd = int(rd[-1].split('a[')[1].split(':')[0])
        assert aVF <= lastd < aVF + 32, rd[-1]
        over = sum(max(0, used(g) + len(g['pre']) - 2) for g in gaps)
        self.stats = dict(gaps=G, overflow=over)
        return final

    def main_loop(self, cls):
        A = self.A
        seq = self.build_loop(cls)
        ubs = self.ub_list(cls)
        b0, u0 = ubs[0]
        for t in range(2):
            for j in range(4):
                A(self.qk_mfma(u0, 0, 0, t, j))
        A("s_nop 7")
        A(f"s_mov_b32 s{sLoop}, 15")
        if self.cfg.stamps:
            A(f"s_memtime s[{sStamp + 4}:{sStamp + 5}]")
        A("s_waitcnt lgkmcnt(0)") if self.cfg.stamps else None
        A(".p2align 6")
        self.label(f"L_loop{cls}")
        for k, x in seq:
            A(x)
        A(f"s_sub_u32 s{sLoop}, s{sLoop}, 1")
        A(f"s_cmp_lg_u32 s{sLoop}, 0")
        A(f"s_cbranch_scc1 L_loop{cls}")
        if self.cfg.stamps:
            A(f"s_memtime s[{sStamp + 6}:{sStamp + 7}]")
        self.tail(cls, ubs)

    vW, vR, vG, vX, vXS = 228, 230, 231, 234, 235
    STG = LDS_V
    vG16, vLmin, vLmax = vT, vT + 1, vT + 2
    KX = LDS_K + 16384
    sRowU = {u: sArg + u for u in range(6)}

    def out_addr_setup(self):
        A = self.A
        ln, t0, t1, r = vS, vS + 1, vS + 2, vS + 3
        A(f"v_mbcnt_lo_u32_b32 v{ln}, -1, 0")
        A(f"s_mul_i32 s{sArg}, s{sWave}, {80 * 256}")
        A(f"v_mbcnt_hi_u32_b32 v{ln}, -1, v{ln}")
        for u in range(1, 5):
            A(f"s_add_u32 s{sArg + u}, s{sArg}, {u * 4096}")
        A(f"s_mul_i32 s{sT2}, s{sWave}, 4608")
        A(f"s_add_u32 s{sT2}, s{sT2}, {self.STG}")
        A(f"v_and_b32 v{t0}, 15, v{ln}")
        A(f"v_lshrrev_b32 v{t1}, 4, v{ln}")
        A(f"v_mul_u32_u24 v{r}, 272, v{t0}")
        A(f"v_lshl_add_u32 v{r}, v{t1}, 3, v{r}")
        A(f"v_add_u32 v{r}, s{sT2}, v{r}")
        A(f"v_accvgpr_write_b32 a{aAddr}, v{r}")
        A(f"v_lshrrev_b32 v{t0}, 3, v{ln}")
        A(f"v_and_b32 v{t1}, 7, v{ln}")
        A(f"v_lshlrev_b32 v{t1}, 4, v{t1}")
        A(f"v_mul_u32_u24 v{r}, 272, v{t0}")
        A(f"v_add3_u32 v{r}, v{r}, v{t1}, s{sT2}")
        A(f"v_accvgpr_write_b32 a{aAddr + 1}, v{r}")
        A(f"v_lshl_add_u32 v{r}, v{t0}, 8, v{t1}")
        A(f"v_accvgpr_write_b32 a{aAddr + 2}, v{r}")
        A(f"v_lshlrev_b32 v{ln}, 4, v{ln}")
        A(f"v_accvgpr_write_b32 a{aAddr + 3}, v{ln}")

    def out_addr_items(self):
        o = [f"v_accvgpr_read_b32 v{self.vW}, a{aAddr}",
             f"v_accvgpr_read_b32 v{self.vR}, a{aAddr + 1}",
             f"v_accvgpr_read_b32 v{self.vG}, a{aAddr + 2}",
             f"v_accvgpr_read_b32 v{self.vG16}, a{aAddr + 3}",
             f"s_lshl_b32 s{sT1}, s{sWave}, 10",
             f"v_add_u32 v{self.vX}, s{sT1}, v{self.vG16}",
             f"v_add_u32 v{self.vXS}, {LDS_SP}, v{self.vX}"]
        return o

    def H_items(self, base, rinv, tag, stg_half):
        o = []
        pk = self.cfg.pkmul
        for jj in range(2):
            for j in (2 * jj, 2 * jj + 1):
                x = base + 4 * j
                if pk:
                    for r in (0, 2):
                        o.append(It(f"v_pk_mul_f32 v[{x + r}:{x + r + 1}], v[{x + r}:{x + r + 1}], v[{rinv & ~1}:{(rinv & ~1) + 1}] op_sel:[0,{rinv & 1}] op_sel_hi:[1,{rinv & 1}]"))
                else:
                    for r in range(4):
                        o.append(It(f"v_mul_f32 v{x + r}, v{x + r}, v{rinv}"))
            for j in (2 * jj, 2 * jj + 1):
                x = base + 4 * j
                o.append(It(f"v_cvt_pk_bf16_f32 v{x}, v{x}, v{x + 1}"))
                o.append(It(f"v_cvt_pk_bf16_f32 v{x + 1}, v{x + 2}, v{x + 3}"))
            x = base + 8 * jj
            d0 = 16 * stg_half + 8 * jj
            o.append(It(f"ds_write2_b64 v{self.vW}, v[{x}:{x + 1}], v[{x + 4}:{x + 5}] offset0:{d0} offset1:{d0 + 4}", ds=True))
        for i in range(2):
            o.append(It(f"ds_read_b128 v[{base + 4 * i}:{base + 4 * i + 3}], v{self.vR} offset:{i * 8 * 272 + stg_half * 128}", ds=(tag, i)))
        if self.cfg.x_nomul:
            o = [x for x in o if "mul_f32" not in x.txt]
        if self.cfg.x_nods:
            o = [x for x in o if not x.txt.startswith("ds_write")]
        return o

    def S_items(self, base, tag, srow, h):
        o = []
        nt = self.cfg.st_mod
        for i in range(2):
            r = base + 4 * i
            o.append(It(f"buffer_store_dwordx4 v[{r}:{r + 3}], v{self.vG}, s[{sO}:{sO + 3}], s{srow} offen offset:{i * 2048 + h * 128}{nt}", needs=[(tag, i)]))
        if self.cfg.x_nostore:
            o = [It("s_nop 0", needs=x.needs) for x in o]
        return o

    def lim_items(self, r):
        if not self.lim_started:
            self.lim_started = True
            return [It(f"v_mov_b32 v{self.vLmin}, v{r}"), It(f"v_mov_b32 v{self.vLmax}, v{r}")]
        return [It(f"v_min_f32 v{self.vLmin}, v{self.vLmin}, v{r}"), It(f"v_max_f32 v{self.vLmax}, v{self.vLmax}, v{r}")]

    def F1_items(self, u):
        r = vL + u
        tt = vT + 5
        o = []
        if u in self.ones:
            o.append(It(f"v_accvgpr_read_b32 v{r}, a{self.aLidx[u]}"))
        else:
            o += [It(f"v_mov_b32 v{tt}, v{r}"), None, None,
                  It(f"v_permlane16_swap_b32 v{r}, v{tt}"), None,
                  It(f"v_add_f32 v{r}, v{r}, v{tt}"),
                  It(f"v_mov_b32 v{tt}, v{r}"), None, None,
                  It(f"v_permlane32_swap_b32 v{r}, v{tt}"), None,
                  It(f"v_add_f32 v{r}, v{r}, v{tt}")]
        o += self.lim_items(r)
        o += [It(f"v_rcp_f32 v{r}, v{r}"), None]
        return o

    @staticmethod
    def weave(prim, fill):
        fill = list(fill)
        out = []
        for x in prim:
            if x is None:
                out.append(fill.pop(0) if fill else It("s_nop 0"))
            else:
                out.append(x)
        return out + fill

    def t_emit(self, items):
        for it in items:
            if isinstance(it, str):
                it = It(it)
            for tag in it.needs:
                idx = self.ds_tag[tag]
                if idx > self.ds_done:
                    n = min(self.ds_issued - idx, 15)
                    self.A(f"s_waitcnt lgkmcnt({n})")
                    self.ds_done = self.ds_issued - n
            for x in (it.txt if isinstance(it.txt, list) else [it.txt]):
                self.A(x)
            if it.ds is not None:
                self.ds_issued += 1
                if it.ds is not True:
                    self.ds_tag[it.ds] = self.ds_issued
            if it.txt == "s_waitcnt lgkmcnt(0)":
                self.ds_done = self.ds_issued

    def t_slot(self, qk=None, pv=None, sm=None, bg=(), pv_first=False, need_qk=(), need_pv=(), bg_lo=0, bg_hi=None, late=()):
        mq, mp = [], []
        if qk:
            u, sbuf, kbuf = qk
            mq = [It(self.qk_mfma(u, sbuf, kbuf, t, j)) for t in range(2) for j in range(4)]
            mq[0].needs = list(need_qk)
        if pv:
            u, pbuf, vbuf = pv
            mp = [It(self.pv_mfma(u, pbuf, vbuf, dt)) for dt in range(8)]
            mp[0].needs = list(need_pv)
            if u in self.ones:
                mp.append(It(self.ones_mfma(u, pbuf)))
        mf = mp + mq if pv_first else mq + mp
        n = len(mf)
        fill = [[] for _ in range(n + 1)]
        if sm:
            E, C, Ad = self.sm_items(*sm)
            if n >= 16:
                for k in range(8):
                    fill[2 * k].append(E[k])
                    if k in C:
                        fill[2 * k + 1].append(C[k])
                    if k in Ad:
                        fill[2 * k + 1].append(Ad[k])
            else:
                assert n >= 8
                for k in range(8):
                    fill[k].append(E[k])
                    nx = k + 1 if k + 1 < 8 else n
                    if k in C:
                        fill[nx].append(C[k])
                    if k in Ad:
                        fill[nx].append(Ad[k])
                if n == 8:
                    fill[8].insert(0, "s_nop 0")
        bg = list(bg)
        bgat = [[] for _ in range(n + 1)]
        hi = n if bg_hi is None else bg_hi
        for i, m in enumerate(bg):
            bgat[bg_lo + (i * (hi - bg_lo)) // len(bg)].append(m)
        bg = None
        for pos, its in late:
            bgat[pos] += its
        seq = []
        for i, m in enumerate(mf):
            seq.append(m)
            seq += fill[i]
            seq += bgat[i]
        seq += fill[n] + bgat[n]
        self.t_emit(seq)

    def tail(self, cls, ubs):
        A = self.A
        cfg = self.cfg
        N = len(ubs)
        assert cfg.delta == 5
        assert slot_of(31) == 2 and slot_of(30) == 1
        vX, vXS, vG16 = self.vX, self.vXS, self.vG16
        KX = self.KX
        sRowU = self.sRowU
        a = ubs[0][1]
        rest = [u for u in (0, 1, 2, 3, 4) if u != a]
        rest = [u for u in rest if u in self.ones] + [u for u in rest if u not in self.ones]
        b, c, d, e = rest
        assert e not in self.ones
        own = [a, b, c, d, e]
        self.own = own
        tl = [(u, L) for u in own for L in range(2)]
        if cls == 1:
            tl.insert(1, (5, 0))
        M = len(tl)
        idx = {ub: i for i, ub in enumerate(tl)}
        self.lim_started = False
        self.ds_issued, self.ds_done, self.ds_tag = 0, -1, {'V0': 0}

        bg = {i: [] for i in range(M + 2)}
        late = {i: [] for i in range(M + 2)}
        Hu = lambda u, h: self.H_items(vO + 32 * u + 16 * h, vL + u, (u, h), h)
        Su = lambda u, h: self.S_items(vO + 32 * u + 16 * h, (u, h), sRowU[u], h)

        kl1 = [It(self.k_read(1, 1, 0, t, j), ds=True) for t in range(2) for j in range(4)]
        kl1[-1].ds = 'K1'
        vl1 = [It(self.v_read(1, 1, 0, t, dt), ds=True) for dt in range(8) for t in range(2)]
        vl1[-1].ds = 'V1'
        self.t_emit(kl1)
        addr = [It(x) for x in self.out_addr_items()]
        O5 = vO + 160

        def shared_out():
            o = [It(f"ds_write_b128 v{vXS}, v[{O5 + 4 * i}:{O5 + 4 * i + 3}] offset:{i * 4096}", ds=True) for i in range(8)]
            o.insert(4, It(f"v_accvgpr_read_b32 v{vT + 6}, a{self.aLidx[5]}"))
            o.append(It(f"ds_write_b32 v{vX}, v{vT + 6} offset:{KX}", ds=True))
            return o
        bar = [It("s_waitcnt lgkmcnt(0)"), It("s_barrier")]

        for u in own:
            f = idx[(u, 1)] + 1
            f1 = self.F1_items(u)
            if u in self.ones:
                bg[f + 1].append(('F1', [x if x is not None else It("s_nop 0") for x in f1]))
            else:
                bg[f].append(('F', f1))
            if u != e:
                bg[f + 1].append(('H', Hu(u, 0)))
                bg[f + 2].append(('H', Hu(u, 1)))
                bg[f + 2].append(('S', Su(u, 0)))
                if f + 3 <= M:
                    bg[f + 3].append(('S', Su(u, 1)))
        fd = idx[(d, 1)] + 1
        assert fd + 2 == M

        def assemble(lst):
            F = [x for k, l in lst if k == 'F' for x in l]
            Hs = [x for k, l in lst if k == 'F1' for x in l] + [x for k, l in lst if k == 'H' for x in l]
            S_ = [x for k, l in lst if k == 'S' for x in l]
            X = [x for k, l in lst if k == 'X' for x in l]
            X0 = [x for k, l in lst if k == 'X0' for x in l]
            return F, Hs, S_, X, X0

        if cls == 0:
            bg[1].append(('X', addr))
            bg[2].append(('X', shared_out()))
            barslot, barpos = 3, cfg.barA
            ACC, TMP = O5, O5 + 16
            L5 = [vL + 5, vT + 7, vT + 8, vT + 9]
            vXR = vXS
            rd = lambda s_, dst: [It(f"ds_read_b128 v[{dst + 4 * j}:{dst + 4 * j + 3}], v{vXR} offset:{j * 4096 + s_ * 1024}", ds=('P', s_, j)) for j in range(4)]
            ad = lambda s_: [It(f"v_add_f32 v{ACC + k}, v{ACC + k}, v{TMP + k}", needs=([('P', s_, k // 4)] + ([('P', 0, 3)] if k == 0 else []))) for k in range(16)]
            pre = [It(f"s_lshl_b32 s{sT1}, s{sP}, 14"),
                   It(f"s_add_u32 s{sT1}, s{sT1}, {LDS_SP}"),
                   It(f"v_add_u32 v{vXR}, s{sT1}, v{vG16}"),
                   It(f"s_lshl_b32 s{sRowU[5]}, s{sP}, 7"),
                   It(f"s_add_u32 s{sRowU[5]}, s{sRowU[5]}, {320 * 256}")]
            lrd = [It(f"ds_read_b32 v{L5[ww]}, v{vG16} offset:{KX + ww * 1024}", ds=('L5', ww)) for ww in range(4)]
            bg[4].append(('X0', pre + rd(0, ACC) + rd(1, TMP) + lrd))
            bg[4].append(('X', ad(1)))
            bg[5].append(('X0', rd(2, TMP)))
            lsum = [It(f"v_add_f32 v{L5[0]}, v{L5[0]}, v{L5[1]}", needs=[('L5', 3)]),
                    It(f"v_add_f32 v{L5[2]}, v{L5[2]}, v{L5[3]}"),
                    It(f"v_add_f32 v{L5[0]}, v{L5[0]}, v{L5[2]}")]
            bg[5].append(('X', ad(2) + lsum))
            bg[6].append(('X0', rd(3, TMP)))
            bg[6].append(('X', self.lim_items(L5[0]) + [It(f"v_rcp_f32 v{L5[0]}, v{L5[0]}")] + ad(3)))
            bg[7].append(('X', self.H_items(ACC, L5[0], (5, 0), 0)))
            bg[8].append(('X', self.S_items(ACC, (5, 0), sRowU[5], 0)))
        else:
            bg[1].append(('X', addr))
            bg[3].append(('X0', shared_out()))
            barslot, barpos = 3, cfg.barB

        for n in range(M + 1):
            qk = None
            if n + 1 < M:
                u1, L1 = tl[n + 1]
                qk = (u1, (n + 1) % 3, L1)
            if n == 0:
                pb, pu = ubs[N - 1]
                pv = (pu, (N - 1) % 3, pb % 2)
            else:
                u0, L0 = tl[n - 1]
                pv = (u0, (n - 1) % 3, L0)
            sm = None
            if n < M:
                u, L = tl[n]
                sm = (u, n % 3, n % 3)
            need_qk = ['K1'] if (qk and tl[n + 1] == (a, 1)) else []
            need_pv = []
            if n >= 1 and tl[n - 1] == (a, 0):
                need_pv = ['V0']
            if n >= 1 and tl[n - 1] == (a, 1):
                need_pv = ['V1']
            F, Hs, S_, X, X0 = assemble(bg[n])
            head = self.weave(F, Hs) if F else Hs
            half = len(head) // 2
            lst = X0 + head[:half] + S_ + head[half:] + X
            lt = []
            pvf = False
            if n == 0:
                if cls == 0:
                    pvf = True
                    nm = 8 + (1 if pv[0] in self.ones else 0)
                    lt.append((nm, vl1[:8]))
                    lt.append((nm + 4, vl1[8:]))
                else:
                    nm = 16 + (1 if pv[0] in self.ones else 0)
                    lt.append((nm, vl1))
            if n == barslot and not (cfg.block and cls == 0):
                lt.append((barpos, bar))
            if qk is None:
                self.t_emit(["s_nop 1"])
            lo, hi = 0, None
            if any(k == 'F1' for k, l in bg[n]):
                lo = 4
            if cls == 1 and n == barslot:
                hi = 10
            if cfg.block and n >= 3 and not (cls == 1 and n == barslot):
                nm = (8 if qk else 0) + 8 + (1 if pv[0] in self.ones else 0)
                lt.append((0, X0))
                if n == barslot:
                    k = cfg.barA_blk
                    blk = S_ + head + X
                    lt.append((nm, blk[:k] + bar + blk[k:]))
                else:
                    lt.append((nm, S_ + head + X))
                lst = []
            self.t_slot(qk=qk, pv=pv, sm=sm, bg=lst, pv_first=pvf, need_qk=need_qk, need_pv=need_pv, bg_lo=lo, bg_hi=hi, late=lt)
            if cls == cfg.stamp_cls and n in (0, 2, 3, 4, 5, 6, 7, 8, 9, 10): self.stamp(f"T_s{n}")
        self.stamp(f"tpv_{cls}") if cls == cfg.stamp_cls else None
        h0, h1 = Hu(e, 0), Hu(e, 1)
        sd = Su(d, 1)
        self.t_emit(h0[:6] + sd + h0[6:] + h1 + Su(e, 0) + Su(e, 1))
        self.stamp(f"tst_{cls}") if cls == cfg.stamp_cls else None
        A("s_branch L_epi")

    def rowsum_reduce(self, reg, tmp):
        A = self.A
        A(f"v_mov_b32 v{tmp}, v{reg}")
        A("s_nop 1")
        A(f"v_permlane16_swap_b32 v{reg}, v{tmp}")
        A("s_nop 1")
        A(f"v_add_f32 v{reg}, v{reg}, v{tmp}")
        A(f"v_mov_b32 v{tmp}, v{reg}")
        A("s_nop 1")
        A(f"v_permlane32_swap_b32 v{reg}, v{tmp}")
        A("s_nop 1")
        A(f"v_add_f32 v{reg}, v{reg}, v{tmp}")

    def rowmax_reduce(self, reg, tmp):
        A = self.A
        A(f"v_mov_b32 v{tmp}, v{reg}")
        A("s_nop 1")
        A(f"v_permlane16_swap_b32 v{reg}, v{tmp}")
        A("s_nop 1")
        A(f"v_max_f32 v{reg}, v{reg}, v{tmp}")
        A(f"v_mov_b32 v{tmp}, v{reg}")
        A("s_nop 1")
        A(f"v_permlane32_swap_b32 v{reg}, v{tmp}")
        A("s_nop 1")
        A(f"v_max_f32 v{reg}, v{reg}, v{tmp}")

    def epilogue(self):
        A = self.A
        cfg = self.cfg
        KX, vX, vG16 = self.KX, self.vX, self.vG16
        t0 = vT + 4
        self.label("L_epi")
        A(f"v_cmp_nge_f32 vcc, v{self.vLmin}, s{sThrLo}")
        A(f"s_mov_b64 s[{sBad}:{sBad + 1}], vcc")
        A(f"v_cmp_nle_f32 vcc, v{self.vLmax}, s{sThrHi}")
        A(f"s_or_b64 s[{sBad}:{sBad + 1}], s[{sBad}:{sBad + 1}], vcc")
        if cfg.force_fallback:
            A(f"s_mov_b64 s[{sBad}:{sBad + 1}], -1")
        if cfg.fallback:
            A(f"s_cmp_lg_u64 s[{sBad}:{sBad + 1}], 0")
            A(f"s_cselect_b32 s{sT2}, 1, 0")
            A(f"v_mov_b32 v{t0}, s{sT2}")
            A(f"ds_write_b32 v{vX}, v{t0} offset:{KX + 4096}")
            A("s_waitcnt lgkmcnt(0)")
            A("s_barrier")
            for ww in range(4):
                A(f"ds_read_b32 v{t0 + 1 + ww}, v{vG16} offset:{KX + 4096 + ww * 1024}")
            A("s_waitcnt lgkmcnt(0)")
            A(f"v_or_b32 v{t0 + 1}, v{t0 + 1}, v{t0 + 2}")
            A(f"v_or3_b32 v{t0 + 1}, v{t0 + 1}, v{t0 + 3}, v{t0 + 4}")
            A(f"v_cmp_ne_u32 vcc, 0, v{t0 + 1}")
            A("s_nop 1")
            A("s_cmp_lg_u64 vcc, 0")
            A("s_cbranch_scc1 L_fallback")
        self.finish()

    def finish(self):
        A = self.A
        if self.cfg.stamps:
            A("s_waitcnt vmcnt(0)")
            A(f"s_memrealtime s[{sArg}:{sArg + 1}]")
            A(f"s_memtime s[{sArg + 2}:{sArg + 3}]")
            A("s_waitcnt lgkmcnt(0)")
            A(f"s_sub_u32 s{sArg + 2}, s{sArg + 2}, s{sStamp + 2}")
            A(f"s_sub_u32 s{sArg + 4}, s{sStamp + 4}, s{sStamp + 2}")
            A(f"s_sub_u32 s{sArg + 5}, s{sStamp + 6}, s{sStamp + 4}")
            A(f"v_mov_b32 v64, s{sStamp}")
            A(f"v_mov_b32 v65, s{sArg}")
            A(f"v_mov_b32 v66, s{sArg + 2}")
            A(f"v_mov_b32 v67, s{sArg + 4}")
            A(f"v_mov_b32 v68, s{sArg + 5}")
            A(f"v_mov_b32 v69, s{sWave}")
            A(f"v_mov_b32 v70, 0")
            A(f"v_mov_b32 v71, 0")
            for i in range(len(self.stamp_names)):
                A(f"s_sub_u32 s{sPS + 2 * i}, s{sPS + 2 * i}, s{sStamp + 2}")
                A(f"v_mov_b32 v{76 + i}, s{sPS + 2 * i}")
            for i in range(len(self.stamp_names), 24):
                A(f"v_mov_b32 v{76 + i}, 0")
            A(f"s_lshl_b32 s{sT1}, s2, 7")
            A(f"s_lshl_b32 s{sT2}, s{sWave}, 15")
            A(f"s_add_u32 s{sT1}, s{sT1}, s{sT2}")
            A(f"v_mov_b32 v72, s{sT1}")
            A(f"v_mbcnt_lo_u32_b32 v73, -1, 0")
            A(f"v_mbcnt_hi_u32_b32 v73, -1, v73")
            A(f"v_cmp_eq_u32 vcc, 0, v73")
            A(f"s_and_saveexec_b64 s[{sTmp64}:{sTmp64 + 1}], vcc")
            A(f"buffer_store_dwordx4 v[64:67], v72, s[{sW_}:{sW_ + 3}], 0 offen")
            A(f"buffer_store_dwordx4 v[68:71], v72, s[{sW_}:{sW_ + 3}], 0 offen offset:16")
            for i in range(6):
                A(f"buffer_store_dwordx4 v[{76 + 4 * i}:{79 + 4 * i}], v72, s[{sW_}:{sW_ + 3}], 0 offen offset:{32 + 16 * i}")
        A("s_branch L_end")

    def fallback(self):
        A = self.A
        lane = vT + 8
        vM = vS + 8
        self.label("L_fallback")
        A("s_waitcnt vmcnt(0) lgkmcnt(0)")
        A("s_barrier")
        for i in range(8):
            A(f"v_accvgpr_read_b32 v{vKA + i}, a{aStash + i}")
        A(f"v_mbcnt_lo_u32_b32 v{lane}, -1, 0")
        A(f"v_mbcnt_hi_u32_b32 v{lane}, -1, v{lane}")
        A(f"v_and_b32 v{vT}, 15, v{lane}")
        A(f"v_lshrrev_b32 v{vT + 1}, 4, v{lane}")
        A(f"v_lshlrev_b32 v{vT}, 8, v{vT}")
        A(f"v_lshl_add_u32 v{vT}, v{vT + 1}, 4, v{vT}")
        A(f"s_mul_i32 s{sT3}, s{sWave}, {80 * 256}")
        for u in range(6):
            if u < 5:
                A(f"s_add_u32 s{sSoff}, s{sT3}, {u * 4096}")
            else:
                A(f"s_mov_b32 s{sSoff}, {320 * 256}")
            for j in range(4):
                A(f"buffer_load_dwordx4 {self.vr(vO + 4 * j)}, v{vT}, s[{sQ}:{sQ + 3}], s{sSoff} offen offset:{j * 64}")
            A("s_waitcnt vmcnt(0)")
            f, b = self.qloc[u]
            self.q_scale(vO, b, 16, toacc=True)
        for u in range(6):
            A(f"v_mov_b32 v{vM + u}, 0xff800000")
        self.zero_acc()
        for ps in range(2):
            A(f"s_lshl_b32 s{sSlot}, s{sWave}, 10")
            A(f"s_mov_b32 s{sGoff}, 0")
            A(f"s_mov_b32 s{sLoop}, {NTILES}")
            self.label(f"L_fb{ps}")
            A("s_barrier")
            self.dma_tile_simple('K')
            if ps == 1:
                self.dma_tile_simple('V')
            A(f"s_add_u32 s{sGoff}, s{sGoff}, 16384")
            A("s_waitcnt vmcnt(0)")
            A("s_barrier")
            for L in range(2):
                for t in range(2):
                    for j in range(4):
                        A(self.k_read(0, L, 0, t, j))
                if ps == 1:
                    for dt in range(8):
                        for t in range(2):
                            A(self.v_read(0, L, 0, t, dt))
                A("s_waitcnt lgkmcnt(0)")
                for u in range(6):
                    for t in range(2):
                        for j in range(4):
                            A(self.qk_mfma(u, 0, 0, t, j))
                    A("s_nop 7")
                    A("s_nop 3")
                    if ps == 0:
                        for k in range(8):
                            A(f"v_max_f32 v{vM + u}, v{vM + u}, v{vS + k}")
                    else:
                        for k in range(8):
                            A(f"v_sub_f32 v{vS + k}, v{vS + k}, v{vM + u}")
                        for k in range(8):
                            A(f"v_exp_f32 v{vS + k}, v{vS + k}")
                        A("s_nop 0")
                        for k in range(8):
                            A(f"v_add_f32 v{vL + u}, v{vL + u}, v{vS + k}")
                        for k in range(4):
                            A(f"v_cvt_pk_bf16_f32 v{vP + k}, v{vS + 2 * k}, v{vS + 2 * k + 1}")
                        A("s_nop 1")
                        for dt in range(8):
                            A(self.pv_mfma(u, 0, 0, dt))
                    A("s_nop 3")
            A("s_waitcnt lgkmcnt(0)")
            A(f"s_sub_u32 s{sLoop}, s{sLoop}, 1")
            A(f"s_cmp_lg_u32 s{sLoop}, 0")
            A(f"s_cbranch_scc1 L_fb{ps}")
            if ps == 0:
                for u in range(6):
                    self.rowmax_reduce(vM + u, vT + 1)
        A("s_nop 7")
        A("s_nop 7")
        A("s_barrier")
        for u in range(6):
            self.rowsum_reduce(vL + u, vT + 1)
        self.t_emit(self.out_addr_items())
        A(f"s_mov_b32 s{self.sRowU[5]}, {320 * 256}")
        self.ds_issued, self.ds_done, self.ds_tag = 0, 0, {}
        for u in range(6):
            if u == 5:
                A(f"s_cmp_lg_u32 s{sWave}, 0")
                A("s_cbranch_scc1 L_fb_done")
            A(f"v_rcp_f32 v{vL + u}, v{vL + u}")
            A("s_nop 0")
            for h in range(2):
                base = vO + 32 * u + 16 * h
                self.t_emit(self.H_items(base, vL + u, ('fb', u, h), h))
                self.t_emit(self.S_items(base, ('fb', u, h), self.sRowU[u], h))
        self.label("L_fb_done")
        self.finish()

    def generate(self):
        A = self.A
        self.prologue()
        A(f"s_cmp_ge_u32 s{sWave}, 2")
        A("s_cbranch_scc1 L_cls1")
        self.main_loop(0)
        st0 = dict(self.stats)
        A("s_branch L_epi")
        self.label("L_cls1")
        self.main_loop(1)
        st1 = dict(self.stats)
        self.epilogue()
        if self.cfg.fallback:
            self.fallback()
        self.label("L_end")
        A("s_endpgm")
        hdr = open("standalone__gqa_softmax__near_ridge.s.ref").read().split("; Override")[0]
        txt = hdr
        txt += "; Override launch geometry by editing the next line.\n"
        txt += f"; @launch grid=(256,1,1) block=(256,1,1) lds={LDS_TOTAL}\n"
        txt += '.amdgcn_target "amdgcn-amd-amdhsa--gfx950"\n.text\n'
        txt += f".globl {NAME}\n.p2align 8\n.type {NAME},@function\n{NAME}:\n"
        for x in self.L:
            txt += (x if x.endswith(":") else "    " + x) + "\n"
        txt += '.section .rodata,"a"\n.p2align 6\n'
        txt += f""".amdhsa_kernel {NAME}
  .amdhsa_next_free_vgpr 512
  .amdhsa_next_free_sgpr 102
  .amdhsa_accum_offset 256
  .amdhsa_group_segment_fixed_size 0
  .amdhsa_kernarg_size 48
  .amdhsa_user_sgpr_count 2
  .amdhsa_user_sgpr_kernarg_segment_ptr 1
  .amdhsa_system_sgpr_workgroup_id_x 1
.end_amdhsa_kernel
"""
        return txt, st0, st1


if __name__ == "__main__":
    ap = argparse.ArgumentParser()
    ap.add_argument("-o", default="k.s")
    ap.add_argument("--stamps", action="store_true")
    ap.add_argument("--ones", default="0")
    ap.add_argument("--force-fallback", action="store_true")
    ap.add_argument("--set", action="append", default=[])
    a = ap.parse_args()
    kw = dict(stamps=a.stamps, force_fallback=a.force_fallback,
              ones_units=tuple(int(x) for x in a.ones.split(",") if x != ""))
    for s in a.set:
        k, v = s.split("=")
        kw[k] = eval(v)
    g = Gen(Cfg(**kw))
    txt, st0, st1 = g.generate()
    open(a.o, "w").write(txt)
    print("generated", a.o, st0, st1, "lines", txt.count("\n"), "stamps", g.stamp_names, file=sys.stderr)
```

```python
import sys, math, argparse

NAME = "standalone__gqa_softmax__near_ridge_kernel"
SQ, SK, D = 336, 2048, 128
NTILES = SK // 64
QBYTES = SQ * D * 2
KBYTES = SK * D * 2
LDS_K = 0
LDS_V = 65536
LDS_SP = 131072
LDS_TOTAL = 163840
CSCALE = math.log2(math.e) / math.sqrt(D)


def f32hex(x):
    import struct
    return "0x%08x" % struct.unpack("<I", struct.pack("<f", x))[0]


def slot_of(tile):
    return (tile + 3) % 4


class Cfg:
    def __init__(self, **kw):
        self.ones_units = (0,)
        self.stamps = False
        self.nt = True
        self.order = (1, 0, 2, 3, 4)
        self.shared_pos = 2
        self.fallback = True
        self.force_fallback = False
        self.bar_shift = 4
        self.coff = 40
        self.lo_thr = 2.0 ** -50
        self.hi_thr = 0.5
        self.st_nt = True
        self.st_mod = " nt"
        self.delta = 5
        self.qorder = (0, 1, 2, 3, 4)
        self.iter_stamps = False
        self.loop_stamps = None
        self.barg = None
        self.single_first = False
        self.jit = {}
        self.br_gap = None
        self.x_drop = ""
        self.bar_clear = True
        self.bar_wearly = 0
        self.spreadx = False
        self.bar_lgkm = True
        self.kearly = 0
        self.vearly = 0
        self.vlate = 0
        self.tail_stamps = False
        self.exp_noepi = False
        self.exp_noq = False
        self.pkmul = True
        self.block = True
        self.sched = {'i1': ['V0', 'Qb'], 'setup': ['Qc'], 'k0': [], 'qa': ['Qd'], 'v0': [], 'qb': ['Qe'], 'qc': ['K1'],
                      'qd': ['V1'], 'qe': ['K2'], 'end0': ['V2'], 'end1': ['K3']}
        self.barA_blk = 99
        self.stamp_cls = 0
        self.w2 = True
        self.x_nochk = False
        self.x_nostore = False
        self.x_nomul = False
        self.x_nods = False
        self.barA = 8
        self.barB = 16
        for k, v in kw.items():
            assert hasattr(self, k), k
            setattr(self, k, v)


sQ, sK, sV, sO, sW_ = 8, 12, 16, 20, 24
sWave = 28
sLoop = 29
sGoff = 30
sSlot = 31
sT0, sT1, sT2, sT3 = 32, 33, 34, 35
sArg = 36
sBad = 44
sTmp64 = 46
sSoff = 48
sStamp = 50
sP = 58
sC = 60
sThrLo, sThrHi = 62, 63
sMask = 64
sPass = 65
sPS = 66
sHi = 42

vO = 0
vS = 192
vP = 216
vKA = 228
vVA = 230
vDK = 234
vDV = 235
vL = 236
vT = 242
vC = 252

aKF = 0
aVF = 64
aQ = 128
aL = 224
aOnes = 236
aStash = 240
aAddr = 248


class It:
    def __init__(self, txt, ds=None, needs=()):
        self.txt, self.ds, self.needs = txt, ds, list(needs)


class Gen:
    def __init__(self, cfg):
        self.cfg = cfg
        self.L = []
        self.uid = 0
        self.stamp_names = []
        ones = list(cfg.ones_units) + [5]
        self.ones = ones
        assert len(ones) <= 3
        self.aLidx = {u: aL + 4 * i for i, u in enumerate(ones)}
        self.qloc = {u: ('a', aQ + 16 * u) for u in range(6)}
        self.vm = []

    def A(self, s):
        self.L.append(s)

    def label(self, s):
        self.L.append(s + ":")

    def q(self, u, j):
        f, b = self.qloc[u]
        return f"{f}[{b + 4 * j}:{b + 4 * j + 3}]"

    @staticmethod
    def vr(b, n=4):
        return f"v[{b}:{b + n - 1}]"

    @staticmethod
    def ar(b, n=4):
        return f"a[{b}:{b + n - 1}]"

    def stamp(self, name):
        if not self.cfg.stamps:
            return
        if self.cfg.loop_stamps:
            return
        if self.cfg.tail_stamps != name.startswith("T_") and not name.startswith("t"):
            return
        i = len(self.stamp_names)
        assert i < 17
        self.stamp_names.append(name)
        self.A(f"s_memtime s[{sPS + 2 * i}:{sPS + 2 * i + 1}]")

    def qk_mfma(self, u, sbuf, kbuf, t, j):
        d = vS + 8 * sbuf + 4 * t
        a = aKF + 32 * kbuf + 16 * t + 4 * j
        c = self.vr(vC) if j == 0 else self.vr(d)
        return f"v_mfma_f32_16x16x32_bf16 {self.vr(d)}, {self.ar(a)}, {self.q(u, j)}, {c}"

    def pv_mfma(self, u, pbuf, vbuf, dt, first=False):
        d = vO + 32 * u + 4 * dt
        a = aVF + 32 * vbuf + 4 * dt
        b = vP + 4 * pbuf
        c = "0" if first else self.vr(d)
        return f"v_mfma_f32_16x16x32_bf16 {self.vr(d)}, {self.ar(a)}, {self.vr(b)}, {c}"

    def ones_mfma(self, u, pbuf):
        d = self.aLidx[u]
        b = vP + 4 * pbuf
        return f"v_mfma_f32_16x16x32_bf16 {self.ar(d)}, {self.ar(aOnes)}, {self.vr(b)}, {self.ar(d)}"

    def k_read(self, kbuf, L, slotpar, t, j):
        d = aKF + 32 * kbuf + 16 * t + 4 * j
        off = slotpar * 16384 + t * 4096 + (j // 2) * 2048 + (j % 2) * 512
        return f"ds_read_b128 {self.ar(d)}, v{vKA + L} offset:{off}"

    def v_read(self, vbuf, L, slotpar, t, dt):
        d = aVF + 32 * vbuf + 4 * dt + 2 * t
        off = slotpar * 16384 + t * 4096 + (dt // 2) * 512
        return f"ds_read_b64_tr_b16 {self.ar(d, 2)}, v{vVA + 2 * L + (dt % 2)} offset:{off}"

    def dma(self, which):
        nt = " nt" if self.cfg.nt else ""
        if which == 'K':
            return f"buffer_load_dwordx4 v{vDK}, s[{sK}:{sK + 3}], s{sSoff} offen{nt} lds"
        return f"buffer_load_dwordx4 v{vDV}, s[{sV}:{sV + 3}], s{sSoff} offen{nt} lds"

    def dma_tile_simple(self, which):
        base = LDS_K if which == 'K' else LDS_V
        for m in range(4):
            self.A(f"s_add_u32 m0, s{sSlot}, {base + m * 4096}")
            self.A(f"s_add_u32 s{sSoff}, s{sGoff}, {m * 4096}")
            self.A(self.dma(which))

    def advance_tile(self):
        return [f"s_add_u32 s{sGoff}, s{sGoff}, 16384",
                f"s_add_u32 s{sSlot}, s{sSlot}, 16384",
                f"s_and_b32 s{sSlot}, s{sSlot}, 0xffff"]

    def sm_items(self, u, sbuf, pbuf):
        sb = vS + 8 * sbuf
        pb = vP + 4 * pbuf
        E = [f"v_exp_f32 v{sb + k}, v{sb + k}" for k in range(8)]
        C = {k: f"v_cvt_pk_bf16_f32 v{pb + k // 2}, v{sb + k - 1}, v{sb + k}" for k in (1, 3, 5, 7)}
        Ad = {k: f"v_add_f32 v{vL + u}, v{vL + u}, v{sb + k}" for k in range(8)} if u not in self.ones else {}
        return E, C, Ad

    def emit_slot(self, qk=None, pv=None, sm=None, mem=()):
        A = self.A
        mf = []
        if qk:
            u, sbuf, kbuf = qk
            mf += [self.qk_mfma(u, sbuf, kbuf, t, j) for t in range(2) for j in range(4)]
        if pv:
            u, pbuf, vbuf = pv[:3]
            first = len(pv) > 3 and pv[3]
            mf += [self.pv_mfma(u, pbuf, vbuf, dt, first) for dt in range(8)]
            if u in self.ones:
                mf.append(self.ones_mfma(u, pbuf))
        fill = [[] for _ in range(len(mf) + 1)]
        if sm:
            E, C, Ad = self.sm_items(*sm)
            if len(mf) >= 16:
                for k in range(8):
                    fill[2 * k].append(E[k])
                    if k in C:
                        fill[2 * k + 1].append(C[k])
                    if k in Ad:
                        fill[2 * k + 1].append(Ad[k])
            else:
                assert len(mf) >= 8
                for k in range(8):
                    fill[k].append(E[k])
                    nx = k + 1 if k + 1 < 8 else len(mf)
                    if k in C:
                        fill[nx].append(C[k])
                    if k in Ad:
                        fill[nx].append(Ad[k])
                if len(mf) == 8:
                    fill[8].insert(0, "s_nop 0")
        mem = list(mem)
        n = len(mf)
        memat = [[] for _ in range(n + 1)]
        for i, m in enumerate(mem):
            memat[min(n - 1, (i * n) // max(len(mem), 1))].append(m)
        for i, m in enumerate(mf):
            A(m)
            for x in memat[i]:
                A(x)
            for x in fill[i]:
                A(x)
        for x in fill[n]:
            A(x)

    def vm_issue(self, tag):
        self.vm.append(tag)

    def vm_wait(self, tag, extra=""):
        last = max(i for i, t in enumerate(self.vm) if t == tag)
        n = len(self.vm) - 1 - last
        self.A(f"s_waitcnt vmcnt({n}){extra}")

    def q_scale(self, src, dst, n, toacc=False):
        A = self.A
        tmp = vS
        for r0 in range(0, n, 4):
            for r in range(4):
                A(f"v_lshlrev_b32 v{tmp + 2 * r}, 16, v{src + r0 + r}")
                A(f"v_and_b32 v{tmp + 2 * r + 1}, s{sMask}, v{src + r0 + r}")
            for r in range(4):
                A(f"v_pk_mul_f32 v[{tmp + 2 * r}:{tmp + 2 * r + 1}], v[{tmp + 2 * r}:{tmp + 2 * r + 1}], s[{sC}:{sC + 1}]")
            for r in range(4):
                d = src if toacc else dst
                A(f"v_cvt_pk_bf16_f32 v{d + r0 + r}, v{tmp + 2 * r}, v{tmp + 2 * r + 1}")
            if toacc:
                for r in range(4):
                    A(f"v_accvgpr_write_b32 a{dst + r0 + r}, v{src + r0 + r}")

    def prologue(self):
        A = self.A
        cfg = self.cfg
        nt = " nt" if cfg.nt else ""
        A("s_cmp_ge_u32 s2, 256")
        A("s_cbranch_scc1 L_end")
        A(f"s_load_dwordx8 s[{sArg}:{sArg + 7}], s[0:1], 0")
        if cfg.stamps:
            A(f"s_load_dwordx2 s[{sW_}:{sW_ + 1}], s[0:1], 40")
            A(f"s_memrealtime s[{sStamp}:{sStamp + 1}]")
            A(f"s_memtime s[{sStamp + 2}:{sStamp + 3}]")
        t0, t1, t2, t3, t4 = vT, vT + 1, vT + 2, vT + 3, vT + 4
        lane = vT + 8
        for i in range(4):
            A(f"v_mov_b32 v{vP + i}, 0")
        zlist = [f"v_mfma_f32_32x32x16_bf16 v[{vO + 160 + 16 * i}:{vO + 175 + 16 * i}], v[{vP}:{vP + 3}], v[{vP}:{vP + 3}], 0"
                 for i in range(2)]
        zlist.append(f"v_mfma_f32_32x32x16_bf16 a[{aL}:{aL + 15}], v[{vP}:{vP + 3}], v[{vP}:{vP + 3}], 0")
        pre = []
        P = pre.append
        P(f"v_and_b32 v{lane}, 63, v0")
        P(f"v_lshrrev_b32 v{t0}, 6, v0")
        P(f"v_lshrrev_b32 v{t1}, 5, v{lane}")
        P(f"v_readfirstlane_b32 s{sWave}, v{t0}")
        P(f"v_lshlrev_b32 v{t0}, 6, v{t1}")
        P(f"v_bfe_u32 v{t1}, v{lane}, 2, 3")
        P(f"v_and_b32 v{t2}, 3, v{lane}")
        P(f"v_lshl_add_u32 v{t0}, v{t1}, 8, v{t0}")
        P(f"v_lshrrev_b32 v{t3}, 2, v{t1}")
        for rh in range(2):
            P(f"v_add_u32 v{t4}, {2 * rh}, v{t3}")
            P(f"v_sub_u32 v{t4}, 0, v{t4}")
            P(f"v_and_b32 v{t4}, 3, v{t4}")
            P(f"v_xor_b32 v{t4}, v{t4}, v{t2}")
            P(f"v_lshl_add_u32 v{t4}, v{t4}, 4, v{t0}")
            P(f"v_add_u32 v{vT + 6 + rh}, {rh * 2048}, v{t4}")
        P(f"s_and_b32 s{sP}, s{sWave}, 1")
        P(f"s_lshr_b32 s{sT0}, s{sWave}, 1")
        P(f"s_cmp_eq_u32 s{sP}, 0")
        P(f"s_cselect_b64 s[{sTmp64}:{sTmp64 + 1}], -1, 0")
        P(f"v_cndmask_b32 v{t3}, v{vT + 7}, v{vT + 6}, s[{sTmp64}:{sTmp64 + 1}]")
        P(f"s_lshl_b32 s{sT1}, s{sT0}, 7")
        P(f"v_add_u32 v{vDK}, s{sT1}, v{t3}")
        P(f"s_lshl_b32 s{sSlot}, s{sWave}, 10")
        P(f"s_mul_i32 s{sT1}, s2, {QBYTES}")
        P(f"s_lshl_b32 s{sT2}, s2, 19")
        zi = 0
        for i, x in enumerate(pre):
            A(x)
            if i % 3 == 2 and zi < len(zlist):
                A(zlist[zi]); zi += 1
        while zi < len(zlist):
            A(zlist[zi]); zi += 1

        def srd(reg, arg, off, size):
            A(f"s_add_u32 s{reg}, s{arg}, s{off}")
            A(f"s_addc_u32 s{reg + 1}, s{arg + 1}, 0")
            A(f"s_and_b32 s{reg + 1}, s{reg + 1}, 0xffff")
            A(f"s_mov_b32 s{reg + 2}, {size}")
            A(f"s_mov_b32 s{reg + 3}, 0x20000")

        def kv_group(which, tile):
            base = LDS_K if which == 'K' else LDS_V
            for m in range(4):
                A(f"s_add_u32 m0, s{sSlot}, {base + slot_of(tile) * 16384 + m * 4096}")
                A(f"s_mov_b32 s{sSoff}, {tile * 16384 + m * 4096}")
                A(self.dma(which))
                self.vm_issue(f"{which}{tile}")
        sW13, sW12, sRow = sT0, sT3, sPass
        B2 = LDS_K + slot_of(3) * 16384
        PC = LDS_V + slot_of(3) * 16384
        qorder = cfg.qorder
        stage = {qorder[0]: (sW13, LDS_SP), qorder[1]: (sW13, LDS_SP + 4096), qorder[2]: (sW12, B2),
                 qorder[3]: (sW13, LDS_SP), qorder[4]: (sW13, LDS_SP + 4096)}

        def q_dma(u):
            sreg, base = stage[u]
            for jp in range(2):
                for rh in range(2):
                    A(f"s_add_u32 m0, s{sreg}, {base + jp * 2048 + rh * 1024}")
                    A(f"s_add_u32 s{sSoff}, s{sRow}, {u * 4096 + jp * 128}")
                    A(f"buffer_load_dwordx4 v{vT + 6 + rh}, s[{sQ}:{sQ + 3}], s{sSoff} offen{nt} lds")
                    self.vm_issue(f"Q{u}")
        def issue(ev):
            for g in cfg.sched.get(ev, []):
                if g[0] == 'Q':
                    q_dma(qorder["abcde".index(g[1])])
                else:
                    kv_group(g[0], int(g[1]))
        A("s_waitcnt lgkmcnt(0)")
        self.stamp("karg")
        srd(sK, sArg + 2, sT2, KBYTES)
        kv_group('K', 0)
        srd(sQ, sArg, sT1, QBYTES)
        A(f"s_lshl_b32 s{sW13}, s{sWave}, 13")
        A(f"s_lshl_b32 s{sW12}, s{sWave}, 12")
        A(f"s_mul_i32 s{sRow}, s{sWave}, {80 * 256}")
        q_dma(qorder[0])
        A(f"s_add_u32 m0, s{sSlot}, {PC}")
        A(f"s_lshr_b32 s{sSoff}, s{sWave}, 1")
        A(f"s_lshl_b32 s{sSoff}, s{sSoff}, 7")
        A(f"s_add_u32 s{sSoff}, s{sSoff}, {320 * 256}")
        A(f"buffer_load_dwordx4 v{t3}, s[{sQ}:{sQ + 3}], s{sSoff} offen{nt} lds")
        self.vm_issue("QP")
        self.stamp("iss9")
        srd(sV, sArg + 4, sT2, KBYTES)
        A(f"v_bfe_u32 v{t0}, v{lane}, 4, 1")
        A(f"v_bfe_u32 v{t1}, v{lane}, 2, 2")
        A(f"v_lshl_add_u32 v{t1}, v{t0}, 2, v{t1}")
        A(f"v_bfe_u32 v{t2}, v{lane}, 1, 1")
        A(f"v_xor_b32 v{t2}, v{t2}, v{t0}")
        A(f"v_and_b32 v{t3}, 1, v{lane}")
        A(f"v_lshl_add_u32 v{t2}, v{t2}, 1, v{t3}")
        A(f"v_lshrrev_b32 v{t3}, 5, v{lane}")
        A(f"v_lshl_add_u32 v{t2}, v{t3}, 2, v{t2}")
        A(f"v_lshlrev_b32 v{t2}, 4, v{t2}")
        A(f"v_lshl_add_u32 v{vDV}, v{t1}, 8, v{t2}")
        A(f"s_lshr_b32 s{sTmp64}, s{sWave}, 1")
        A(f"s_lshl_b32 s{sTmp64}, s{sTmp64}, 11")
        A(f"s_lshl_b32 s{sTmp64 + 1}, s{sP}, 7")
        A(f"s_add_u32 s{sTmp64}, s{sTmp64}, s{sTmp64 + 1}")
        A(f"v_add_u32 v{vDV}, s{sTmp64}, v{vDV}")
        issue('i1')
        self.stamp("iss17")
        srd(sO, sArg + 6, sT1, QBYTES)
        if cfg.stamps:
            A(f"s_and_b32 s{sW_ + 1}, s{sW_ + 1}, 0xffff")
            A(f"s_mov_b32 s{sW_ + 2}, 0x100000")
            A(f"s_mov_b32 s{sW_ + 3}, 0x20000")
        qa01, k5addr, plin, qa2 = vT + 4, vT + 5, vT + 8, vT + 9
        kaddr = vP + 4
        A(f"v_and_b32 v{t0}, 15, v{lane}")
        A(f"v_lshrrev_b32 v{t1}, 4, v{lane}")
        A(f"v_lshrrev_b32 v{t2}, 2, v{t0}")
        A(f"v_sub_u32 v{t2}, 0, v{t2}")
        A(f"v_and_b32 v{t2}, 3, v{t2}")
        A(f"v_xor_b32 v{t2}, v{t2}, v{t1}")
        A(f"v_lshlrev_b32 v{t2}, 4, v{t2}")
        A(f"v_and_b32 v{t3}, 7, v{t0}")
        A(f"v_lshl_add_u32 v{t2}, v{t3}, 6, v{t2}")
        A(f"v_lshrrev_b32 v{t3}, 3, v{t0}")
        A(f"v_lshl_add_u32 v{kaddr}, v{t3}, 10, v{t2}")
        sA, sB = sTmp64, sTmp64 + 1
        A(f"s_lshl_b32 s{sA}, s{sP}, 13")
        A(f"s_xor_b32 s{sB}, s{sA}, 8192")
        A(f"v_add_u32 v{vKA}, s{sA}, v{kaddr}")
        A(f"v_add_u32 v{vKA + 1}, s{sB}, v{kaddr}")
        A(f"v_add_u32 v{k5addr}, {PC}, v{kaddr}")
        A(f"v_add_u32 v{qa01}, s{sW13}, v{kaddr}")
        A(f"v_add_u32 v{qa01}, {LDS_SP}, v{qa01}")
        A(f"v_add_u32 v{qa2}, s{sW12}, v{kaddr}")
        A(f"v_add_u32 v{qa2}, {B2}, v{qa2}")
        A(f"v_lshrrev_b32 v{t2}, 1, v{t1}")
        A(f"v_lshlrev_b32 v{t2}, 11, v{t2}")
        A(f"v_and_b32 v{t3}, 1, v{t1}")
        A(f"v_lshl_add_u32 v{t2}, v{t3}, 8, v{t2}")
        A(f"v_lshrrev_b32 v{kaddr}, 2, v{t0}")
        A(f"v_lshl_add_u32 v{t2}, v{kaddr}, 6, v{t2}")
        A(f"v_and_b32 v{kaddr}, 3, v{t0}")
        A(f"v_lshl_add_u32 v{t2}, v{kaddr}, 3, v{t2}")
        A(f"v_add_u32 v{t2}, {LDS_V}, v{t2}")
        for pi in range(2):
            A(f"v_xor_b32 v{kaddr}, {pi}, v{t3}")
            A(f"v_lshl_add_u32 v{kaddr}, v{kaddr}, 5, v{t2}")
            A(f"v_add_u32 v{vVA + pi}, s{sA}, v{kaddr}")
            A(f"v_add_u32 v{vVA + 2 + pi}, s{sB}, v{kaddr}")
        A(f"v_lshlrev_b32 v{plin}, 4, v{lane}")
        A(f"v_add_u32 v{plin}, s{sSlot}, v{plin}")
        A(f"v_add_u32 v{plin}, {PC}, v{plin}")
        A(f"s_mov_b32 s{sC}, {f32hex(CSCALE)}")
        A(f"s_mov_b32 s{sC + 1}, {f32hex(CSCALE)}")
        A(f"s_mov_b32 s{sMask}, 0xffff0000")
        A(f"s_mov_b32 s{sThrLo}, {f32hex(cfg.lo_thr)}")
        A(f"s_mov_b32 s{sThrHi}, {f32hex(cfg.hi_thr)}")
        for i in range(4):
            A(f"v_mov_b32 v{vT + 10}, 0x3f803f80") if i == 0 else None
            A(f"v_accvgpr_write_b32 a{aOnes + i}, v{vT + 10}")
        for i in range(6):
            A(f"v_mov_b32 v{vL + i}, 0")
        for i in range(4):
            A(f"v_mov_b32 v{vC + i}, {f32hex(-float(cfg.coff))}")
        for i in range(8):
            A(f"v_accvgpr_write_b32 a{aStash + i}, v{vKA + i}")
        self.out_addr_setup()
        self.stamp("setup")
        issue('setup')
        S0 = slot_of(0)

        def kr(L, t, j):
            d = aKF + 32 * L + 16 * t + 4 * j
            return f"ds_read_b128 {self.ar(d)}, v{vKA + L} offset:{S0 * 16384 + t * 4096 + (j // 2) * 2048 + (j % 2) * 512}"

        def vrd(L, t, dt):
            d = aVF + 32 * L + 4 * dt + 2 * t
            return f"ds_read_b64_tr_b16 {self.ar(d, 2)}, v{vVA + 2 * L + (dt % 2)} offset:{S0 * 16384 + t * 4096 + (dt // 2) * 512}"
        self.vm_wait("K0")
        A("s_barrier")
        self.stamp("k0_bar")
        issue('k0')
        for L in range(2):
            for t in range(2):
                for j in range(4):
                    A(kr(L, t, j))

        def q_fetch(u, tq):
            sreg, base = stage[u]
            if base >= LDS_SP:
                reg, off = qa01, base - LDS_SP
            else:
                reg, off = qa2, 0
            for j in range(4):
                A(f"ds_read_b128 {self.vr(tq + 4 * j)}, v{reg} offset:{off + (j // 2) * 2048 + (j % 2) * 512}")
            A("s_waitcnt lgkmcnt(0)")

        def q_ready(u, after_read):
            f, b = self.qloc[u]
            tq = vO + 32 * u
            self.vm_wait(f"Q{u}")
            q_fetch(u, tq)
            after_read()
            self.q_scale(tq, b, 16, toacc=True)
            A("s_nop 1")
        a, b_, c, d_, e = qorder
        q_ready(a, lambda: issue('qa'))
        self.stamp("qa_done")
        self.emit_slot(qk=(a, 1, 0))
        A("s_nop 2")
        self.emit_slot(qk=(a, 2, 1), sm=(a, 1, 1))
        E, C, Ad = self.sm_items(a, 2, 2)
        for k in range(8):
            A(E[k])
            if k >= 1 and (k - 1) in C:
                A(C[k - 1])
            if k >= 1 and (k - 1) in Ad:
                A(Ad[k - 1])
        A("s_nop 0")
        A(C[7])
        if 7 in Ad:
            A(Ad[7])
        self.vm_wait("QP")
        A(f"ds_read_b128 {self.vr(vP)}, v{plin}")
        A("s_waitcnt lgkmcnt(0)")
        self.q_scale(vP, vP, 4)
        A(f"ds_write_b128 v{plin}, {self.vr(vP)}")
        self.vm_wait("V0", " lgkmcnt(0)")
        A("s_barrier")
        self.stamp("v0_bar")
        issue('v0')
        for L in range(2):
            for dt in range(8):
                for t in range(2):
                    A(vrd(L, t, dt))
            if L == 0:
                for j in range(4):
                    A(f"ds_read_b128 {self.q(5, j)}, v{k5addr} offset:{(j // 2) * 2048 + (j % 2) * 512}")
        A("s_waitcnt lgkmcnt(15)")
        self.emit_slot(pv=(a, 1, 0, True))
        A("s_waitcnt lgkmcnt(0)")
        self.emit_slot(pv=(a, 2, 1))
        A(f"s_cmp_ge_u32 s{sWave}, 2")
        A("s_cbranch_scc1 L_noshared0")
        self.emit_slot(qk=(5, 1, 0))
        E, C, Ad = self.sm_items(5, 1, 1)
        A("s_nop 7")
        for k in range(8):
            A(E[k])
            if k >= 1 and (k - 1) in C:
                A(C[k - 1])
        A("s_nop 0")
        A(C[7])
        A("s_nop 1")
        self.emit_slot(pv=(5, 1, 0))
        self.label("L_noshared0")
        self.stamp("a_done")

        def burst(u, last=False):
            self.emit_slot(qk=(u, 1, 0))
            A("s_nop 2")
            self.emit_slot(qk=(u, 2, 1), sm=(u, 1, 1))
            A("s_nop 1")
            self.emit_slot(pv=(u, 1, 0, True), sm=(u, 2, 2))
            if not last:
                A("s_nop 1")
                self.emit_slot(pv=(u, 2, 1))
        q_ready(b_, lambda: issue('qb'))
        burst(b_)
        q_ready(c, lambda: issue('qc'))
        burst(c)
        self.stamp("c_done")
        q_ready(d_, lambda: issue('qd'))
        burst(d_)
        q_ready(e, lambda: issue('qe'))
        burst(e, last=True)
        self.stamp("e_done")
        issue('end0')
        self.vm_wait("V1", " lgkmcnt(0)")
        A("s_barrier")
        self.stamp("bar0")
        for t in range(2):
            for j in range(4):
                A(self.k_read(0, 0, 0, t, j))
        for dt in range(8):
            for t in range(2):
                A(self.v_read(0, 0, 0, t, dt))
        issue('end1')
        A(f"s_mov_b32 s{sGoff}, {3 * 16384}")
        A(f"s_add_u32 s{sSlot}, s{sSlot}, {slot_of(3) * 16384}")
        A("s_waitcnt lgkmcnt(15)")

    def zero_acc(self):
        for i in range(192):
            self.A(f"v_mov_b32 v{vO + i}, 0")
        for i in range(6):
            self.A(f"v_mov_b32 v{vL + i}, 0")

    def ub_list(self, cls):
        cfg = self.cfg
        out = []
        shared_beta = 2 if cls == 0 else 0
        for beta in range(4):
            units = list(cfg.order)
            if beta == shared_beta:
                units.insert(cfg.shared_pos, 5)
            for u in units:
                out.append((beta, u))
        return out

    def build_loop(self, cls):
        cfg = self.cfg
        ubs = self.ub_list(cls)
        N = len(ubs)
        assert N % 3 == 0
        gaps = []
        slot_first = []
        for n in range(N):
            nb, nu = ubs[(n + 1) % N]
            cb, cu = ubs[n]
            pb, pu = ubs[(n - 1) % N]
            mf = []
            for t in range(2):
                for j in range(4):
                    mf.append(self.qk_mfma(nu, (n + 1) % 3, nb % 2, t, j))
            for dt in range(8):
                mf.append(self.pv_mfma(pu, (n - 1) % 3, pb % 2, dt))
            if pu in self.ones:
                mf.append(self.ones_mfma(pu, (n - 1) % 3))
            slot_first.append(len(gaps))
            sb = vS + 8 * (n % 3)
            pbuf = vP + 4 * (n % 3)
            adds = cu not in self.ones
            for i, m in enumerate(mf):
                g = dict(mfma=m, shadow=[], mem=[], valu=[], slot=n, pos=i, pre=[])
                if i < 16:
                    k = i // 2
                    if i % 2 == 0:
                        g['valu'].append(('E', f"v_exp_f32 v{sb + k}, v{sb + k}"))
                    else:
                        if k % 2 == 1:
                            g['valu'].append(('C', f"v_cvt_pk_bf16_f32 v{pbuf + k // 2}, v{sb + k - 1}, v{sb + k}"))
                        if adds:
                            g['valu'].append(('A', f"v_add_f32 v{vL + cu}, v{vL + cu}, v{sb + k}"))
                gaps.append(g)
        slot_first.append(len(gaps))
        G = len(gaps)

        def used(g):
            if g.get('resv'):
                return 2
            c = 0
            for k, _ in g['valu']:
                c += 2 if k == 'E' else 1
            for k, _ in g['mem']:
                c += 2 if k == 'D' else 1
            c += len(g['pre'])
            return c

        def place(items, lo, hi, cost, key='mem', grp=None):
            free = []
            for gi in range(lo, hi):
                f = 2 - used(gaps[gi % G])
                if cost == 2:
                    if f >= 2:
                        free.append(gi)
                else:
                    free.extend([gi] * max(f, 0))
            n = len(items)
            if cost == 1 and cfg.single_first:
                uniq = []
                for gi in free:
                    if gi not in uniq and not gaps[gi % G]['mem']:
                        uniq.append(gi)
                if len(uniq) >= n:
                    free = uniq
            seed = cfg.jit.get((cls,) + grp) if grp else None
            if len(free) >= n and seed is not None:
                import random
                rnd = random.Random(seed)
                for _try in range(200):
                    if seed % 2:
                        sel = sorted(rnd.sample(free, n))
                    else:
                        sel = [free[rnd.randrange((i * len(free)) // n, max(((i + 1) * len(free)) // n, (i * len(free)) // n + 1))] for i in range(n)]
                    if cost == 1 or all(sel[i] + 3 <= sel[i + 1] for i in range(n - 1)):
                        break
                else:
                    raise ValueError("no placement")
            elif len(free) >= n:
                sel = [free[(i * len(free)) // n] for i in range(n)]
            else:
                sel = list(free)
                cand = [gi for gi in range(lo, hi) if not any(k == 'E' for k, _ in gaps[gi % G]['valu']) and not gaps[gi % G].get('resv')]
                cnt = {gi: used(gaps[gi % G]) + sel.count(gi) * cost for gi in cand}
                while len(sel) < n:
                    gi = min(cand, key=lambda x: (cnt[x], abs(x - (lo + hi) // 2)))
                    sel.append(gi)
                    cnt[gi] += cost
                sel.sort()
            for it, gi in zip(items, sel):
                gaps[gi % G][key].append(it)
            return sel

        bfirst = {}
        blast = {}
        for n, (b, u) in enumerate(ubs):
            bfirst.setdefault(b, n)
            blast[b] = n
        sh = cfg.bar_shift
        barpos = {}
        first = (cls == 1)
        for bb, sign in ((1, -1 if first else 1), (3, 1 if first else -1)):
            barpos[bb] = slot_first[bfirst[bb]] + sign * sh
        if cfg.barg:
            barpos = {1: cfg.barg[cls][0] + 1, 3: cfg.barg[cls][1] + 1}
        lg = " lgkmcnt(0)" if cfg.bar_lgkm else ""
        for bb in (1, 3):
            gi = barpos[bb] - 1
            if cfg.barg and cfg.bar_clear:
                g = gaps[gi]
                assert not any(k == 'E' for k, _ in g['valu']), (cls, bb, gi)
                mv = g['valu']
                g['valu'] = []
                gj = gi + 1
                while mv:
                    gj += 1
                    h = gaps[gj]
                    if any(k == 'E' for k, _ in h['valu']):
                        continue
                    if used(h) < 2:
                        h['valu'].insert(0, mv.pop(0))
                g['resv'] = True
                gaps[gi - 1]['shadow'].append(('BW', bb))
                g['shadow'].append(('B', "s_barrier"))
            else:
                gaps[gi - cfg.bar_wearly]['shadow'].append(('BW', bb))
                gaps[gi]['shadow'].append(('B', "s_barrier"))

        if cfg.br_gap:
            gi = cfg.br_gap[cls]
            g = gaps[gi]
            assert not any(k == 'E' for k, _ in g['valu']), (cls, gi)
            mv = g['valu']
            g['valu'] = []
            gj = gi + 1
            while mv:
                gj += 1
                h = gaps[gj]
                if any(k == 'E' for k, _ in h['valu']):
                    continue
                if used(h) < 2:
                    h['valu'].insert(0, mv.pop(0))
            g['resv'] = True
            g['norm_s'] = True
            gaps[gi - 1]['norm_s'] = True
            gaps[gi - 1]['shadow'].append(('L', f"s_sub_u32 s{sLoop}, s{sLoop}, 1"))
            gaps[gi - 1]['shadow'].append(('L', f"s_cmp_lg_u32 s{sLoop}, 0"))
            g['shadow'].append(('BR', f"s_cbranch_scc1 L_loop{cls}"))

        def dma_group(which, lo, hi, tag):
            base = LDS_K if which == 'K' else LDS_V
            items = [('D', self.dma(which)) for m in range(4)]
            sel = place(items, lo, hi, 2, grp=('D',) + tag)
            assert all(sel[i] + 3 <= sel[i + 1] for i in range(3)), sel
            prev = None
            for m, gi in enumerate(sel):
                gaps[gi - 1]['shadow'].append(('S', f"s_add_u32 m0, s{sSlot}, {base + m * 4096}"))
                gaps[gi - 2]['shadow'].append(('S', f"s_add_u32 s{sSoff}, s{sGoff}, {m * 4096}"))
                gaps[gi].setdefault('dtag', []).append(tag)
            return sel

        for bb in (1, 3):
            nxt = (bb + 1) % 4
            lo = max(barpos[bb] + 3, slot_first[bfirst[bb]] + 3)
            selk = dma_group('K', lo, slot_first[blast[bb] + 1], ('K', bb))
            lo2 = slot_first[bfirst[nxt]] + 3
            nb_bar = barpos[(nxt + 1) % 4]
            hi2 = min(slot_first[blast[nxt] + 1] - (sh + 2), nb_bar - 3)
            selv = dma_group('V', lo2, hi2, ('V', bb))
            gi = selv[-1] + 1
            adv = self.advance_tile()
            for i, x in enumerate(adv):
                gaps[gi + i]['shadow'].append(('S', x))

        if cfg.spreadx:
            pass
        need_wait = {}
        xitems = {}
        for beta in range(4):
            nb = (beta + 1) % 4
            L = nb % 2
            slotpar = (nb // 2) if nb != 0 else 0
            lo = slot_first[bfirst[beta]]
            hi = slot_first[blast[beta] + 1]
            crosses = (beta % 2 == 1)
            loK = lo
            vl = cfg.vlate if beta != 3 else 0
            if crosses:
                lo = max(lo, barpos[beta])
                loK = lo
                hiK = slot_first[blast[beta]] - 4
                hiV = hi + vl
            else:
                hiK = slot_first[blast[beta]] - 4
                if beta != 0:
                    loK = lo - cfg.kearly
                if cfg.bar_lgkm:
                    endb = min(hi, barpos[nb])
                    hiV = endb - 8
                else:
                    hiV = hi + vl
            if beta == 3 and not cfg.spreadx:
                tog = [('X', f"v_xor_b32 v{r}, 0x8000, v{r}") for r in (vKA, vVA, vVA + 1)]
                for i, it in enumerate(tog):
                    gaps[lo - 0 + 0]['pre'].append(it)
                tog2 = [('X', f"v_xor_b32 v{r}, 0x8000, v{r}") for r in (vKA + 1, vVA + 2, vVA + 3)]
                for it in tog2:
                    gaps[lo]['pre'].append(it)
                lo += 1
                loK = lo
            kitems = [('R', self.k_read(nb % 2, L, slotpar, t, j), ('K', nb)) for t in range(2) for j in range(4)]
            kitems = [(k, txt) for k, txt, tag in kitems]
            selK = place(kitems, loK, hiK, 1, grp=('K', beta))
            loV = max(lo, slot_first[bfirst[beta] + 1] - cfg.vearly)
            vitems = [('T', self.v_read(nb % 2, L, slotpar, t, dt)) for dt in range(8) for t in range(2)]
            selV = place(vitems, loV, hiV, 1, grp=('V', beta))
            if cfg.vearly:
                s0 = slot_first[bfirst[beta]]
                for i, gi in enumerate(selV):
                    assert gi >= s0 + 8 + i // 2, (beta, i, gi, s0)
            xitems[beta] = (min(selK + selV), max(selK + selV))
            need_wait[slot_first[blast[beta]]] = ('K', nb % 2)
            sl = (bfirst[nb] + 1) % N
            need_wait[slot_first[sl] + 8] = ('V', nb % 2)
        if cfg.spreadx:
            w0 = (xitems[1][1] + 1, xitems[3][0])
            w1 = (xitems[2][1] + 1, min(G, G + xitems[0][0]))
            place([('X', f"v_xor_b32 v{r}, 0x8000, v{r}") for r in (vKA, vVA, vVA + 1)], w0[0], w0[1], 1, key='valu', grp=('X', 0))
            place([('X', f"v_xor_b32 v{r}, 0x8000, v{r}") for r in (vKA + 1, vVA + 2, vVA + 3)], w1[0], w1[1], 1, key='valu', grp=('X', 1))

        seq = []
        for gi, g in enumerate(gaps):
            if gi in need_wait:
                seq.append(('LW', need_wait[gi]))
            seq.append(('M', g['mfma']))
            if cfg.stamps and cfg.loop_stamps and g['pos'] == 0 and cfg.loop_stamps[0] <= g['slot'] < cfg.loop_stamps[1]:
                i = g['slot'] - cfg.loop_stamps[0]
                seq.append(('S', f"s_memtime s[{sPS + 2 * i}:{sPS + 2 * i + 1}]"))
                if cls == 0:
                    self.stamp_names.append(f"slot{g['slot']}")
            for it in g['shadow']:
                seq.append(it)
            for it in g['pre']:
                seq.append(it)
            for it in g['mem']:
                seq.append(it)
            for it in g['valu']:
                seq.append(it)
        out = []
        for it in seq:
            if it[0] == 'LW':
                idx = max(i for i, x in enumerate(out) if x[0] == 'M') if any(x[0] == 'M' for x in out) else None
                if idx is None:
                    out.append(it)
                else:
                    out.insert(idx + 1, it)
            else:
                out.append(it)
        seq = out
        if cfg.br_gap:
            ib = next(i for i, (k, x) in enumerate(seq) if k == 'BR')
            ic = next(i for i, (k, x) in enumerate(seq) if k == 'L' and x.startswith("s_cmp"))
            assert all(k not in ('S',) for k, x in seq[ic:ib]), seq[ic:ib]
        dts = []
        for gi, g in enumerate(gaps):
            for t in g.get('dtag', []):
                dts.append(t)
        order = []
        di = 0
        for k, x in seq:
            if k == 'D':
                order.append(dts[di]); di += 1
            elif k == 'BW':
                order.append(('BW', x))
        two = order + order
        bwn = {}
        for i in range(len(order), len(two)):
            if two[i][0] == 'BW':
                bb = two[i][1]
                j = max(jj for jj in range(i) if two[jj] == ('V', bb))
                bwn[bb] = sum(1 for jj in range(j + 1, i) if two[jj][0] in ('K', 'V'))
        seq = [(('W', f"s_waitcnt vmcnt({bwn[x]}){lg}") if k == 'BW' else (k, x)) for k, x in seq]
        self.bwn = bwn
        issued = 0
        last_write = {}
        res = {}
        for it_no in range(2):
            for i, (k, x) in enumerate(seq):
                if k in ('R', 'T'):
                    issued += 1
                    d = int(x.split('a[')[1].split(':')[0])
                    if aKF <= d < aKF + 64:
                        last_write[('K', (d - aKF) // 32)] = issued
                    else:
                        last_write[('V', (d - aVF) // 32)] = issued
                elif k == 'W':
                    pass
                elif k == 'LW' and it_no == 1:
                    n_out = issued - last_write[x]
                    res[i] = min(n_out, 15)
        final = []
        for i, (k, x) in enumerate(seq):
            if k == 'LW':
                final.append(('W', f"s_waitcnt lgkmcnt({res[i]})"))
            else:
                final.append((k, x))
        rd = [x for k, x in final if k in ('R', 'T')]
        self.last_rd = rd[-1]
        if cfg.x_drop:
            final = [(k, x) for k, x in final if k not in cfg.x_drop]
        lastd = int(rd[-1].split('a[')[1].split(':')[0])
        assert aVF <= lastd < aVF + 32, rd[-1]
        over = sum(max(0, used(g) - 2) for g in gaps)
        self.stats = dict(gaps=G, overflow=over, bwn=bwn, bar=barpos)
        return final

    def main_loop(self, cls):
        A = self.A
        seq = self.build_loop(cls)
        ubs = self.ub_list(cls)
        b0, u0 = ubs[0]
        for t in range(2):
            for j in range(4):
                A(self.qk_mfma(u0, 0, 0, t, j))
        A("s_nop 7")
        A(f"s_mov_b32 s{sLoop}, 15")
        if self.cfg.stamps:
            A(f"s_memtime s[{sStamp + 4}:{sStamp + 5}]")
        A("s_waitcnt lgkmcnt(0)") if self.cfg.stamps else None
        if self.cfg.stamps and self.cfg.iter_stamps:
            A(f"v_mov_b32 v245, 0")
            A(f"s_mov_b32 s{sPS + 32}, s{sStamp + 4}")
        if self.cfg.br_gap:
            ib = next(i for i, (k, x) in enumerate(seq) if k == 'BR')
            part1, part2 = seq[:ib + 1], seq[ib + 1:]

            def emit2():
                for k, x in part2:
                    A(x)
                if self.cfg.stamps and self.cfg.iter_stamps:
                    A(f"s_add_u32 m0, s{sLoop}, 1")
                    A("s_nop 0")
                    A(f"v_writelane_b32 v245, s{sPS + 32}, m0")
                    A(f"s_memtime s[{sPS + 32}:{sPS + 33}]")
            A(f"s_branch L_mid{cls}")
            A(".p2align 6")
            self.label(f"L_loop{cls}")
            emit2()
            self.label(f"L_mid{cls}")
            for k, x in part1:
                A(x)
            emit2()
            if self.cfg.stamps:
                A(f"s_memtime s[{sStamp + 6}:{sStamp + 7}]")
            self.tail(cls, ubs)
            return
        A(".p2align 6")
        self.label(f"L_loop{cls}")
        for k, x in seq:
            A(x)
        if self.cfg.stamps and self.cfg.iter_stamps:
            A(f"s_mov_b32 m0, s{sLoop}")
            A("s_nop 0")
            A(f"v_writelane_b32 v245, s{sPS + 32}, m0")
            A(f"s_memtime s[{sPS + 32}:{sPS + 33}]")
        A(f"s_sub_u32 s{sLoop}, s{sLoop}, 1")
        A(f"s_cmp_lg_u32 s{sLoop}, 0")
        A(f"s_cbranch_scc1 L_loop{cls}")
        if self.cfg.stamps:
            A(f"s_memtime s[{sStamp + 6}:{sStamp + 7}]")
        self.tail(cls, ubs)

    vW, vR, vG, vX, vXS = 228, 230, 231, 234, 235
    STG = LDS_V
    vG16, vLmin, vLmax = vT, vT + 1, vT + 2
    KX = LDS_K + 16384
    sRowU = {u: sArg + u for u in range(6)}

    def out_addr_setup(self):
        A = self.A
        ln, t0, t1, r = vS, vS + 1, vS + 2, vS + 3
        A(f"v_mbcnt_lo_u32_b32 v{ln}, -1, 0")
        A(f"s_mul_i32 s{sArg}, s{sWave}, {80 * 256}")
        A(f"v_mbcnt_hi_u32_b32 v{ln}, -1, v{ln}")
        for u in range(1, 5):
            A(f"s_add_u32 s{sArg + u}, s{sArg}, {u * 4096}")
        A(f"s_mul_i32 s{sT2}, s{sWave}, 4608")
        A(f"s_add_u32 s{sT2}, s{sT2}, {self.STG}")
        A(f"v_and_b32 v{t0}, 15, v{ln}")
        A(f"v_lshrrev_b32 v{t1}, 4, v{ln}")
        A(f"v_mul_u32_u24 v{r}, 272, v{t0}")
        A(f"v_lshl_add_u32 v{r}, v{t1}, 3, v{r}")
        A(f"v_add_u32 v{r}, s{sT2}, v{r}")
        A(f"v_accvgpr_write_b32 a{aAddr}, v{r}")
        A(f"v_lshrrev_b32 v{t0}, 3, v{ln}")
        A(f"v_and_b32 v{t1}, 7, v{ln}")
        A(f"v_lshlrev_b32 v{t1}, 4, v{t1}")
        A(f"v_mul_u32_u24 v{r}, 272, v{t0}")
        A(f"v_add3_u32 v{r}, v{r}, v{t1}, s{sT2}")
        A(f"v_accvgpr_write_b32 a{aAddr + 1}, v{r}")
        A(f"v_lshl_add_u32 v{r}, v{t0}, 8, v{t1}")
        A(f"v_accvgpr_write_b32 a{aAddr + 2}, v{r}")
        A(f"v_lshlrev_b32 v{ln}, 4, v{ln}")
        A(f"v_accvgpr_write_b32 a{aAddr + 3}, v{ln}")

    def out_addr_items(self):
        o = [f"v_accvgpr_read_b32 v{self.vW}, a{aAddr}",
             f"v_accvgpr_read_b32 v{self.vR}, a{aAddr + 1}",
             f"v_accvgpr_read_b32 v{self.vG}, a{aAddr + 2}",
             f"v_accvgpr_read_b32 v{self.vG16}, a{aAddr + 3}",
             f"s_lshl_b32 s{sT1}, s{sWave}, 10",
             f"v_add_u32 v{self.vX}, s{sT1}, v{self.vG16}",
             f"v_add_u32 v{self.vXS}, {LDS_SP}, v{self.vX}"]
        return o

    def H_items(self, base, rinv, tag, stg_half):
        o = []
        pk = self.cfg.pkmul
        for jj in range(2):
            for j in (2 * jj, 2 * jj + 1):
                x = base + 4 * j
                if pk:
                    for r in (0, 2):
                        o.append(It(f"v_pk_mul_f32 v[{x + r}:{x + r + 1}], v[{x + r}:{x + r + 1}], v[{rinv & ~1}:{(rinv & ~1) + 1}] op_sel:[0,{rinv & 1}] op_sel_hi:[1,{rinv & 1}]"))
                else:
                    for r in range(4):
                        o.append(It(f"v_mul_f32 v{x + r}, v{x + r}, v{rinv}"))
            for j in (2 * jj, 2 * jj + 1):
                x = base + 4 * j
                o.append(It(f"v_cvt_pk_bf16_f32 v{x}, v{x}, v{x + 1}"))
                o.append(It(f"v_cvt_pk_bf16_f32 v{x + 1}, v{x + 2}, v{x + 3}"))
            x = base + 8 * jj
            d0 = 16 * stg_half + 8 * jj
            o.append(It(f"ds_write2_b64 v{self.vW}, v[{x}:{x + 1}], v[{x + 4}:{x + 5}] offset0:{d0} offset1:{d0 + 4}", ds=True))
        for i in range(2):
            o.append(It(f"ds_read_b128 v[{base + 4 * i}:{base + 4 * i + 3}], v{self.vR} offset:{i * 8 * 272 + stg_half * 128}", ds=(tag, i)))
        if self.cfg.x_nomul:
            o = [x for x in o if "mul_f32" not in x.txt]
        if self.cfg.x_nods:
            o = [x for x in o if not x.txt.startswith("ds_write")]
        return o

    def S_items(self, base, tag, srow, h):
        o = []
        nt = self.cfg.st_mod
        for i in range(2):
            r = base + 4 * i
            o.append(It(f"buffer_store_dwordx4 v[{r}:{r + 3}], v{self.vG}, s[{sO}:{sO + 3}], s{srow} offen offset:{i * 2048 + h * 128}{nt}", needs=[(tag, i)]))
        if self.cfg.x_nostore:
            o = [It("s_nop 0", needs=x.needs) for x in o]
        return o

    def lim_items(self, r):
        if not self.lim_started:
            self.lim_started = True
            return [It(f"v_mov_b32 v{self.vLmin}, v{r}"), It(f"v_mov_b32 v{self.vLmax}, v{r}")]
        return [It(f"v_min_f32 v{self.vLmin}, v{self.vLmin}, v{r}"), It(f"v_max_f32 v{self.vLmax}, v{self.vLmax}, v{r}")]

    def F1_items(self, u):
        r = vL + u
        tt = vT + 5
        o = []
        if u in self.ones:
            o.append(It(f"v_accvgpr_read_b32 v{r}, a{self.aLidx[u]}"))
        else:
            o += [It(f"v_mov_b32 v{tt}, v{r}"), None, None,
                  It(f"v_permlane16_swap_b32 v{r}, v{tt}"), None,
                  It(f"v_add_f32 v{r}, v{r}, v{tt}"),
                  It(f"v_mov_b32 v{tt}, v{r}"), None, None,
                  It(f"v_permlane32_swap_b32 v{r}, v{tt}"), None,
                  It(f"v_add_f32 v{r}, v{r}, v{tt}")]
        o += self.lim_items(r)
        o += [It(f"v_rcp_f32 v{r}, v{r}"), None]
        return o

    @staticmethod
    def weave(prim, fill):
        fill = list(fill)
        out = []
        for x in prim:
            if x is None:
                out.append(fill.pop(0) if fill else It("s_nop 0"))
            else:
                out.append(x)
        return out + fill

    def t_emit(self, items):
        for it in items:
            if isinstance(it, str):
                it = It(it)
            for tag in it.needs:
                idx = self.ds_tag[tag]
                if idx > self.ds_done:
                    n = min(self.ds_issued - idx, 15)
                    self.A(f"s_waitcnt lgkmcnt({n})")
                    self.ds_done = self.ds_issued - n
            for x in (it.txt if isinstance(it.txt, list) else [it.txt]):
                self.A(x)
            if it.ds is not None:
                self.ds_issued += 1
                if it.ds is not True:
                    self.ds_tag[it.ds] = self.ds_issued
            if it.txt == "s_waitcnt lgkmcnt(0)":
                self.ds_done = self.ds_issued

    def t_slot(self, qk=None, pv=None, sm=None, bg=(), pv_first=False, need_qk=(), need_pv=(), bg_lo=0, bg_hi=None, late=()):
        mq, mp = [], []
        if qk:
            u, sbuf, kbuf = qk
            mq = [It(self.qk_mfma(u, sbuf, kbuf, t, j)) for t in range(2) for j in range(4)]
            mq[0].needs = list(need_qk)
        if pv:
            u, pbuf, vbuf = pv
            mp = [It(self.pv_mfma(u, pbuf, vbuf, dt)) for dt in range(8)]
            mp[0].needs = list(need_pv)
            if u in self.ones:
                mp.append(It(self.ones_mfma(u, pbuf)))
        mf = mp + mq if pv_first else mq + mp
        n = len(mf)
        fill = [[] for _ in range(n + 1)]
        if sm:
            E, C, Ad = self.sm_items(*sm)
            if n >= 16:
                for k in range(8):
                    fill[2 * k].append(E[k])
                    if k in C:
                        fill[2 * k + 1].append(C[k])
                    if k in Ad:
                        fill[2 * k + 1].append(Ad[k])
            else:
                assert n >= 8
                for k in range(8):
                    fill[k].append(E[k])
                    nx = k + 1 if k + 1 < 8 else n
                    if k in C:
                        fill[nx].append(C[k])
                    if k in Ad:
                        fill[nx].append(Ad[k])
                if n == 8:
                    fill[8].insert(0, "s_nop 0")
        bg = list(bg)
        bgat = [[] for _ in range(n + 1)]
        hi = n if bg_hi is None else bg_hi
        for i, m in enumerate(bg):
            bgat[bg_lo + (i * (hi - bg_lo)) // len(bg)].append(m)
        bg = None
        for pos, its in late:
            bgat[pos] += its
        seq = []
        for i, m in enumerate(mf):
            seq.append(m)
            seq += fill[i]
            seq += bgat[i]
        seq += fill[n] + bgat[n]
        self.t_emit(seq)

    def tail(self, cls, ubs):
        A = self.A
        cfg = self.cfg
        N = len(ubs)
        assert cfg.delta == 5
        assert slot_of(31) == 2 and slot_of(30) == 1
        vX, vXS, vG16 = self.vX, self.vXS, self.vG16
        KX = self.KX
        sRowU = self.sRowU
        a = ubs[0][1]
        rest = [u for u in (0, 1, 2, 3, 4) if u != a]
        rest = [u for u in rest if u in self.ones] + [u for u in rest if u not in self.ones]
        b, c, d, e = rest
        assert e not in self.ones
        own = [a, b, c, d, e]
        self.own = own
        tl = [(u, L) for u in own for L in range(2)]
        if cls == 1:
            tl.insert(1, (5, 0))
        M = len(tl)
        idx = {ub: i for i, ub in enumerate(tl)}
        self.lim_started = False
        self.ds_issued, self.ds_done, self.ds_tag = 0, -1, {'V0': 0}

        bg = {i: [] for i in range(M + 2)}
        late = {i: [] for i in range(M + 2)}
        Hu = lambda u, h: self.H_items(vO + 32 * u + 16 * h, vL + u, (u, h), h)
        Su = lambda u, h: self.S_items(vO + 32 * u + 16 * h, (u, h), sRowU[u], h)

        kl1 = [It(self.k_read(1, 1, 0, t, j), ds=True) for t in range(2) for j in range(4)]
        kl1[-1].ds = 'K1'
        vl1 = [It(self.v_read(1, 1, 0, t, dt), ds=True) for dt in range(8) for t in range(2)]
        vl1[-1].ds = 'V1'
        self.t_emit(kl1)
        addr = [It(x) for x in self.out_addr_items()]
        O5 = vO + 160

        def shared_out():
            o = [It(f"ds_write_b128 v{vXS}, v[{O5 + 4 * i}:{O5 + 4 * i + 3}] offset:{i * 4096}", ds=True) for i in range(8)]
            o.insert(4, It(f"v_accvgpr_read_b32 v{vT + 6}, a{self.aLidx[5]}"))
            o.append(It(f"ds_write_b32 v{vX}, v{vT + 6} offset:{KX}", ds=True))
            return o
        bar = [It("s_waitcnt lgkmcnt(0)"), It("s_barrier")]

        for u in own:
            f = idx[(u, 1)] + 1
            f1 = self.F1_items(u)
            if u in self.ones:
                bg[f + 1].append(('F1', [x if x is not None else It("s_nop 0") for x in f1]))
            else:
                bg[f].append(('F', f1))
            if u != e:
                bg[f + 1].append(('H', Hu(u, 0)))
                bg[f + 2].append(('H', Hu(u, 1)))
                bg[f + 2].append(('S', Su(u, 0)))
                if f + 3 <= M:
                    bg[f + 3].append(('S', Su(u, 1)))
        fd = idx[(d, 1)] + 1
        assert fd + 2 == M

        def assemble(lst):
            F = [x for k, l in lst if k == 'F' for x in l]
            Hs = [x for k, l in lst if k == 'F1' for x in l] + [x for k, l in lst if k == 'H' for x in l]
            S_ = [x for k, l in lst if k == 'S' for x in l]
            X = [x for k, l in lst if k == 'X' for x in l]
            X0 = [x for k, l in lst if k == 'X0' for x in l]
            return F, Hs, S_, X, X0

        if cls == 0:
            bg[1].append(('X', addr))
            bg[2].append(('X', shared_out()))
            barslot, barpos = 3, cfg.barA
            ACC, TMP = O5, O5 + 16
            L5 = [vL + 5, vT + 7, vT + 8, vT + 9]
            vXR = vXS
            rd = lambda s_, dst: [It(f"ds_read_b128 v[{dst + 4 * j}:{dst + 4 * j + 3}], v{vXR} offset:{j * 4096 + s_ * 1024}", ds=('P', s_, j)) for j in range(4)]
            ad = lambda s_: [It(f"v_add_f32 v{ACC + k}, v{ACC + k}, v{TMP + k}", needs=([('P', s_, k // 4)] + ([('P', 0, 3)] if k == 0 else []))) for k in range(16)]
            pre = [It(f"s_lshl_b32 s{sT1}, s{sP}, 14"),
                   It(f"s_add_u32 s{sT1}, s{sT1}, {LDS_SP}"),
                   It(f"v_add_u32 v{vXR}, s{sT1}, v{vG16}"),
                   It(f"s_lshl_b32 s{sRowU[5]}, s{sP}, 7"),
                   It(f"s_add_u32 s{sRowU[5]}, s{sRowU[5]}, {320 * 256}")]
            lrd = [It(f"ds_read_b32 v{L5[ww]}, v{vG16} offset:{KX + ww * 1024}", ds=('L5', ww)) for ww in range(4)]
            bg[4].append(('X0', pre + rd(0, ACC) + rd(1, TMP) + lrd))
            bg[4].append(('X', ad(1)))
            bg[5].append(('X0', rd(2, TMP)))
            lsum = [It(f"v_add_f32 v{L5[0]}, v{L5[0]}, v{L5[1]}", needs=[('L5', 3)]),
                    It(f"v_add_f32 v{L5[2]}, v{L5[2]}, v{L5[3]}"),
                    It(f"v_add_f32 v{L5[0]}, v{L5[0]}, v{L5[2]}")]
            bg[5].append(('X', ad(2) + lsum))
            bg[6].append(('X0', rd(3, TMP)))
            bg[6].append(('X', self.lim_items(L5[0]) + [It(f"v_rcp_f32 v{L5[0]}, v{L5[0]}")] + ad(3)))
            bg[7].append(('X', self.H_items(ACC, L5[0], (5, 0), 0)))
            bg[8].append(('X', self.S_items(ACC, (5, 0), sRowU[5], 0)))
        else:
            bg[1].append(('X', addr))
            bg[3].append(('X0', shared_out()))
            barslot, barpos = 3, cfg.barB

        for n in range(M + 1):
            qk = None
            if n + 1 < M:
                u1, L1 = tl[n + 1]
                qk = (u1, (n + 1) % 3, L1)
            if n == 0:
                pb, pu = ubs[N - 1]
                pv = (pu, (N - 1) % 3, pb % 2)
            else:
                u0, L0 = tl[n - 1]
                pv = (u0, (n - 1) % 3, L0)
            sm = None
            if n < M:
                u, L = tl[n]
                sm = (u, n % 3, n % 3)
            need_qk = ['K1'] if (qk and tl[n + 1] == (a, 1)) else []
            need_pv = []
            if n >= 1 and tl[n - 1] == (a, 0):
                need_pv = ['V0']
            if n >= 1 and tl[n - 1] == (a, 1):
                need_pv = ['V1']
            F, Hs, S_, X, X0 = assemble(bg[n])
            head = self.weave(F, Hs) if F else Hs
            half = len(head) // 2
            lst = X0 + head[:half] + S_ + head[half:] + X
            lt = []
            pvf = False
            if n == 0:
                if cls == 0:
                    pvf = True
                    nm = 8 + (1 if pv[0] in self.ones else 0)
                    lt.append((nm, vl1[:8]))
                    lt.append((nm + 4, vl1[8:]))
                else:
                    nm = 16 + (1 if pv[0] in self.ones else 0)
                    lt.append((nm, vl1))
            if n == barslot and not (cfg.block and cls == 0):
                lt.append((barpos, bar))
            if qk is None:
                self.t_emit(["s_nop 1"])
            lo, hi = 0, None
            if any(k == 'F1' for k, l in bg[n]):
                lo = 4
            if cls == 1 and n == barslot:
                hi = 10
            if cfg.block and n >= 3 and not (cls == 1 and n == barslot):
                nm = (8 if qk else 0) + 8 + (1 if pv[0] in self.ones else 0)
                lt.append((0, X0))
                if n == barslot:
                    k = cfg.barA_blk
                    blk = S_ + head + X
                    lt.append((nm, blk[:k] + bar + blk[k:]))
                else:
                    lt.append((nm, S_ + head + X))
                lst = []
            self.t_slot(qk=qk, pv=pv, sm=sm, bg=lst, pv_first=pvf, need_qk=need_qk, need_pv=need_pv, bg_lo=lo, bg_hi=hi, late=lt)
            if cls == cfg.stamp_cls and n in (0, 2, 3, 4, 5, 6, 7, 8, 9, 10): self.stamp(f"T_s{n}")
        self.stamp(f"tpv_{cls}") if cls == cfg.stamp_cls else None
        h0, h1 = Hu(e, 0), Hu(e, 1)
        sd = Su(d, 1)
        self.t_emit(h0[:6] + sd + h0[6:] + h1 + Su(e, 0) + Su(e, 1))
        self.stamp(f"tst_{cls}") if cls == cfg.stamp_cls else None
        A("s_branch L_epi")

    def rowsum_reduce(self, reg, tmp):
        A = self.A
        A(f"v_mov_b32 v{tmp}, v{reg}")
        A("s_nop 1")
        A(f"v_permlane16_swap_b32 v{reg}, v{tmp}")
        A("s_nop 1")
        A(f"v_add_f32 v{reg}, v{reg}, v{tmp}")
        A(f"v_mov_b32 v{tmp}, v{reg}")
        A("s_nop 1")
        A(f"v_permlane32_swap_b32 v{reg}, v{tmp}")
        A("s_nop 1")
        A(f"v_add_f32 v{reg}, v{reg}, v{tmp}")

    def rowmax_reduce(self, reg, tmp):
        A = self.A
        A(f"v_mov_b32 v{tmp}, v{reg}")
        A("s_nop 1")
        A(f"v_permlane16_swap_b32 v{reg}, v{tmp}")
        A("s_nop 1")
        A(f"v_max_f32 v{reg}, v{reg}, v{tmp}")
        A(f"v_mov_b32 v{tmp}, v{reg}")
        A("s_nop 1")
        A(f"v_permlane32_swap_b32 v{reg}, v{tmp}")
        A("s_nop 1")
        A(f"v_max_f32 v{reg}, v{reg}, v{tmp}")

    def epilogue(self):
        A = self.A
        cfg = self.cfg
        KX, vX, vG16 = self.KX, self.vX, self.vG16
        t0 = vT + 4
        self.label("L_epi")
        A(f"v_cmp_nge_f32 vcc, v{self.vLmin}, s{sThrLo}")
        A(f"s_mov_b64 s[{sBad}:{sBad + 1}], vcc")
        A(f"v_cmp_nle_f32 vcc, v{self.vLmax}, s{sThrHi}")
        A(f"s_or_b64 s[{sBad}:{sBad + 1}], s[{sBad}:{sBad + 1}], vcc")
        if cfg.force_fallback:
            A(f"s_mov_b64 s[{sBad}:{sBad + 1}], -1")
        if cfg.fallback:
            A(f"s_cmp_lg_u64 s[{sBad}:{sBad + 1}], 0")
            A(f"s_cselect_b32 s{sT2}, 1, 0")
            A(f"v_mov_b32 v{t0}, s{sT2}")
            A(f"ds_write_b32 v{vX}, v{t0} offset:{KX + 4096}")
            A("s_waitcnt lgkmcnt(0)")
            A("s_barrier")
            for ww in range(4):
                A(f"ds_read_b32 v{t0 + 1 + ww}, v{vG16} offset:{KX + 4096 + ww * 1024}")
            A("s_waitcnt lgkmcnt(0)")
            A(f"v_or_b32 v{t0 + 1}, v{t0 + 1}, v{t0 + 2}")
            A(f"v_or3_b32 v{t0 + 1}, v{t0 + 1}, v{t0 + 3}, v{t0 + 4}")
            A(f"v_cmp_ne_u32 vcc, 0, v{t0 + 1}")
            A("s_nop 1")
            A("s_cmp_lg_u64 vcc, 0")
            A("s_cbranch_scc1 L_fallback")
        self.finish()

    def finish(self):
        A = self.A
        if self.cfg.stamps:
            A("s_waitcnt vmcnt(0)")
            A(f"s_memrealtime s[{sArg}:{sArg + 1}]")
            A(f"s_memtime s[{sArg + 2}:{sArg + 3}]")
            A("s_waitcnt lgkmcnt(0)")
            A(f"s_sub_u32 s{sArg + 2}, s{sArg + 2}, s{sStamp + 2}")
            A(f"s_sub_u32 s{sArg + 4}, s{sStamp + 4}, s{sStamp + 2}")
            A(f"s_sub_u32 s{sArg + 5}, s{sStamp + 6}, s{sStamp + 4}")
            A(f"v_mov_b32 v64, s{sStamp}")
            A(f"v_mov_b32 v65, s{sArg}")
            A(f"v_mov_b32 v66, s{sArg + 2}")
            A(f"v_mov_b32 v67, s{sArg + 4}")
            A(f"v_mov_b32 v68, s{sArg + 5}")
            A(f"v_mov_b32 v69, s{sWave}")
            A(f"v_mov_b32 v70, 0")
            A(f"v_mov_b32 v71, 0")
            for i in range(len(self.stamp_names)):
                A(f"s_sub_u32 s{sPS + 2 * i}, s{sPS + 2 * i}, s{sStamp + 2}")
                A(f"v_mov_b32 v{76 + i}, s{sPS + 2 * i}")
            for i in range(len(self.stamp_names), 24):
                A(f"v_mov_b32 v{76 + i}, 0")
            if self.cfg.iter_stamps:
                A(f"v_writelane_b32 v245, s{sPS + 32}, 0")
                A(f"v_subrev_u32 v245, s{sStamp + 2}, v245")
                A(f"v_mbcnt_lo_u32_b32 v73, -1, 0")
                A(f"v_mbcnt_hi_u32_b32 v73, -1, v73")
                A(f"v_lshlrev_b32 v73, 2, v73")
                A(f"s_lshl_b32 s{sT1}, s2, 8")
                A(f"s_lshl_b32 s{sT2}, s{sWave}, 16")
                A(f"s_add_u32 s{sT1}, s{sT1}, s{sT2}")
                A(f"s_add_u32 s{sT1}, s{sT1}, 0x40000")
                A(f"buffer_store_dword v245, v73, s[{sW_}:{sW_ + 3}], s{sT1} offen")
            A(f"s_lshl_b32 s{sT1}, s2, 7")
            A(f"s_lshl_b32 s{sT2}, s{sWave}, 15")
            A(f"s_add_u32 s{sT1}, s{sT1}, s{sT2}")
            A(f"v_mov_b32 v72, s{sT1}")
            A(f"v_mbcnt_lo_u32_b32 v73, -1, 0")
            A(f"v_mbcnt_hi_u32_b32 v73, -1, v73")
            A(f"v_cmp_eq_u32 vcc, 0, v73")
            A(f"s_and_saveexec_b64 s[{sTmp64}:{sTmp64 + 1}], vcc")
            A(f"buffer_store_dwordx4 v[64:67], v72, s[{sW_}:{sW_ + 3}], 0 offen")
            A(f"buffer_store_dwordx4 v[68:71], v72, s[{sW_}:{sW_ + 3}], 0 offen offset:16")
            for i in range(6):
                A(f"buffer_store_dwordx4 v[{76 + 4 * i}:{79 + 4 * i}], v72, s[{sW_}:{sW_ + 3}], 0 offen offset:{32 + 16 * i}")
        A("s_branch L_end")

    def fallback(self):
        A = self.A
        lane = vT + 8
        vM = vS + 8
        self.label("L_fallback")
        A("s_waitcnt vmcnt(0) lgkmcnt(0)")
        A("s_barrier")
        for i in range(8):
            A(f"v_accvgpr_read_b32 v{vKA + i}, a{aStash + i}")
        A(f"v_mbcnt_lo_u32_b32 v{lane}, -1, 0")
        A(f"v_mbcnt_hi_u32_b32 v{lane}, -1, v{lane}")
        A(f"v_and_b32 v{vT}, 15, v{lane}")
        A(f"v_lshrrev_b32 v{vT + 1}, 4, v{lane}")
        A(f"v_lshlrev_b32 v{vT}, 8, v{vT}")
        A(f"v_lshl_add_u32 v{vT}, v{vT + 1}, 4, v{vT}")
        A(f"s_mul_i32 s{sT3}, s{sWave}, {80 * 256}")
        for u in range(6):
            if u < 5:
                A(f"s_add_u32 s{sSoff}, s{sT3}, {u * 4096}")
            else:
                A(f"s_mov_b32 s{sSoff}, {320 * 256}")
            for j in range(4):
                A(f"buffer_load_dwordx4 {self.vr(vO + 4 * j)}, v{vT}, s[{sQ}:{sQ + 3}], s{sSoff} offen offset:{j * 64}")
            A("s_waitcnt vmcnt(0)")
            f, b = self.qloc[u]
            self.q_scale(vO, b, 16, toacc=True)
        for u in range(6):
            A(f"v_mov_b32 v{vM + u}, 0xff800000")
        self.zero_acc()
        for ps in range(2):
            A(f"s_lshl_b32 s{sSlot}, s{sWave}, 10")
            A(f"s_mov_b32 s{sGoff}, 0")
            A(f"s_mov_b32 s{sLoop}, {NTILES}")
            self.label(f"L_fb{ps}")
            A("s_barrier")
            self.dma_tile_simple('K')
            if ps == 1:
                self.dma_tile_simple('V')
            A(f"s_add_u32 s{sGoff}, s{sGoff}, 16384")
            A("s_waitcnt vmcnt(0)")
            A("s_barrier")
            for L in range(2):
                for t in range(2):
                    for j in range(4):
                        A(self.k_read(0, L, 0, t, j))
                if ps == 1:
                    for dt in range(8):
                        for t in range(2):
                            A(self.v_read(0, L, 0, t, dt))
                A("s_waitcnt lgkmcnt(0)")
                for u in range(6):
                    for t in range(2):
                        for j in range(4):
                            A(self.qk_mfma(u, 0, 0, t, j))
                    A("s_nop 7")
                    A("s_nop 3")
                    if ps == 0:
                        for k in range(8):
                            A(f"v_max_f32 v{vM + u}, v{vM + u}, v{vS + k}")
                    else:
                        for k in range(8):
                            A(f"v_sub_f32 v{vS + k}, v{vS + k}, v{vM + u}")
                        for k in range(8):
                            A(f"v_exp_f32 v{vS + k}, v{vS + k}")
                        A("s_nop 0")
                        for k in range(8):
                            A(f"v_add_f32 v{vL + u}, v{vL + u}, v{vS + k}")
                        for k in range(4):
                            A(f"v_cvt_pk_bf16_f32 v{vP + k}, v{vS + 2 * k}, v{vS + 2 * k + 1}")
                        A("s_nop 1")
                        for dt in range(8):
                            A(self.pv_mfma(u, 0, 0, dt))
                    A("s_nop 3")
            A("s_waitcnt lgkmcnt(0)")
            A(f"s_sub_u32 s{sLoop}, s{sLoop}, 1")
            A(f"s_cmp_lg_u32 s{sLoop}, 0")
            A(f"s_cbranch_scc1 L_fb{ps}")
            if ps == 0:
                for u in range(6):
                    self.rowmax_reduce(vM + u, vT + 1)
        A("s_nop 7")
        A("s_nop 7")
        A("s_barrier")
        for u in range(6):
            self.rowsum_reduce(vL + u, vT + 1)
        self.t_emit(self.out_addr_items())
        A(f"s_mov_b32 s{self.sRowU[5]}, {320 * 256}")
        self.ds_issued, self.ds_done, self.ds_tag = 0, 0, {}
        for u in range(6):
            if u == 5:
                A(f"s_cmp_lg_u32 s{sWave}, 0")
                A("s_cbranch_scc1 L_fb_done")
            A(f"v_rcp_f32 v{vL + u}, v{vL + u}")
            A("s_nop 0")
            for h in range(2):
                base = vO + 32 * u + 16 * h
                self.t_emit(self.H_items(base, vL + u, ('fb', u, h), h))
                self.t_emit(self.S_items(base, ('fb', u, h), self.sRowU[u], h))
        self.label("L_fb_done")
        self.finish()

    def generate(self):
        A = self.A
        self.prologue()
        A(f"s_cmp_ge_u32 s{sWave}, 2")
        A("s_cbranch_scc1 L_cls1")
        self.main_loop(0)
        st0 = dict(self.stats)
        A("s_branch L_epi")
        self.label("L_cls1")
        self.main_loop(1)
        st1 = dict(self.stats)
        self.epilogue()
        if self.cfg.fallback:
            self.fallback()
        self.label("L_end")
        A("s_endpgm")
        hdr = open("standalone__gqa_softmax__near_ridge.s.ref").read().split("; Override")[0]
        txt = hdr
        txt += "; Override launch geometry by editing the next line.\n"
        txt += f"; @launch grid=(256,1,1) block=(256,1,1) lds={LDS_TOTAL}\n"
        txt += '.amdgcn_target "amdgcn-amd-amdhsa--gfx950"\n.text\n'
        txt += f".globl {NAME}\n.p2align 8\n.type {NAME},@function\n{NAME}:\n"
        for x in self.L:
            txt += (x if x.endswith(":") else "    " + x) + "\n"
        txt += '.section .rodata,"a"\n.p2align 6\n'
        txt += f""".amdhsa_kernel {NAME}
  .amdhsa_next_free_vgpr 512
  .amdhsa_next_free_sgpr 102
  .amdhsa_accum_offset 256
  .amdhsa_group_segment_fixed_size 0
  .amdhsa_kernarg_size 48
  .amdhsa_user_sgpr_count 2
  .amdhsa_user_sgpr_kernarg_segment_ptr 1
  .amdhsa_system_sgpr_workgroup_id_x 1
.end_amdhsa_kernel
"""
        return txt, st0, st1


if __name__ == "__main__":
    ap = argparse.ArgumentParser()
    ap.add_argument("-o", default="k.s")
    ap.add_argument("--stamps", action="store_true")
    ap.add_argument("--ones", default="0")
    ap.add_argument("--force-fallback", action="store_true")
    ap.add_argument("--set", action="append", default=[])
    ap.add_argument("--cfg", action="append", default=[], help="file holding a dict of settings")
    a = ap.parse_args()
    kw = dict(stamps=a.stamps, force_fallback=a.force_fallback,
              ones_units=tuple(int(x) for x in a.ones.split(",") if x != ""))
    for f in a.cfg:
        kw.update(eval(open(f).read()))
    for s in a.set:
        k, v = s.split("=", 1)
        kw[k] = eval(v)
    g = Gen(Cfg(**kw))
    txt, st0, st1 = g.generate()
    open(a.o, "w").write(txt)
    print("generated", a.o, st0, st1, "lines", txt.count("\n"), "stamps", g.stamp_names, file=sys.stderr)
```

```python
import sys, math, argparse

NAME = "standalone__gqa_softmax__near_ridge_kernel"
SQ, SK, D = 336, 2048, 128
NTILES = SK // 64
QBYTES = SQ * D * 2
KBYTES = SK * D * 2
LDS_K = 0
LDS_V = 65536
LDS_SP = 131072
LDS_TOTAL = 163840
CSCALE = math.log2(math.e) / math.sqrt(D)


def f32hex(x):
    import struct
    return "0x%08x" % struct.unpack("<I", struct.pack("<f", x))[0]


def slot_of(tile):
    return (tile + 3) % 4


class Cfg:
    def __init__(self, **kw):
        self.ones_units = (0,)
        self.stamps = False
        self.nt = True
        self.order = (1, 0, 2, 3, 4)
        self.shared_pos = 2
        self.fallback = True
        self.force_fallback = False
        self.bar_shift = 4
        self.coff = 40
        self.lo_thr = 2.0 ** -50
        self.hi_thr = 0.5
        self.st_nt = True
        self.st_mod = " nt"
        self.delta = 5
        self.qorder = (0, 1, 2, 3, 4)
        self.iter_stamps = False
        self.loop_stamps = None
        self.barg = None
        self.single_first = False
        self.rot = None
        self.code_pf = 0
        self.iter_rt = False
        self.headmap = None
        self.pf = 0
        self.jit = {}
        self.br_gap = None
        self.x_drop = ""
        self.bar_clear = True
        self.bar_wearly = 0
        self.spreadx = False
        self.bar_lgkm = True
        self.kearly = 0
        self.vearly = 0
        self.vlate = 0
        self.tail_stamps = False
        self.exp_noepi = False
        self.exp_noq = False
        self.pkmul = True
        self.block = True
        self.sched = {'i1': ['V0', 'Qb'], 'setup': ['Qc'], 'k0': [], 'qa': ['Qd'], 'v0': [], 'qb': ['Qe'], 'qc': ['K1'],
                      'qd': ['V1'], 'qe': ['K2'], 'end0': ['V2'], 'end1': ['K3']}
        self.barA_blk = 99
        self.stamp_cls = 0
        self.w2 = True
        self.x_nochk = False
        self.x_nostore = False
        self.x_nomul = False
        self.x_nods = False
        self.barA = 8
        self.barB = 16
        for k, v in kw.items():
            assert hasattr(self, k), k
            setattr(self, k, v)


sQ, sK, sV, sO, sW_ = 8, 12, 16, 20, 24
sWave = 28
sLoop = 29
sGoff = 30
sSlot = 31
sT0, sT1, sT2, sT3 = 32, 33, 34, 35
sArg = 36
sBad = 44
sTmp64 = 46
sSoff = 48
sStamp = 50
sP = 58
sDead = 59
sC = 60
sThrLo, sThrHi = 62, 63
sMask = 64
sPass = 65
sPS = 66
sHi = 42

vO = 0
vS = 192
vP = 216
vKA = 228
vVA = 230
vDK = 234
vDV = 235
vL = 236
vT = 242
vC = 252

aKF = 0
aVF = 64
aQ = 128
aL = 224
aOnes = 236
aStash = 240
aAddr = 248


class It:
    def __init__(self, txt, ds=None, needs=()):
        self.txt, self.ds, self.needs = txt, ds, list(needs)


class Gen:
    def __init__(self, cfg):
        self.cfg = cfg
        self.L = []
        self.uid = 0
        self.stamp_names = []
        ones = list(cfg.ones_units) + [5]
        self.ones = ones
        assert len(ones) <= 3
        self.aLidx = {u: aL + 4 * i for i, u in enumerate(ones)}
        self.qloc = {u: ('a', aQ + 16 * u) for u in range(6)}
        self.vm = []

    def A(self, s):
        self.L.append(s)

    def label(self, s):
        self.L.append(s + ":")

    def q(self, u, j):
        f, b = self.qloc[u]
        return f"{f}[{b + 4 * j}:{b + 4 * j + 3}]"

    @staticmethod
    def vr(b, n=4):
        return f"v[{b}:{b + n - 1}]"

    @staticmethod
    def ar(b, n=4):
        return f"a[{b}:{b + n - 1}]"

    def stamp(self, name):
        if not self.cfg.stamps:
            return
        if self.cfg.loop_stamps:
            return
        if self.cfg.tail_stamps != name.startswith("T_") and not name.startswith("t"):
            return
        i = len(self.stamp_names)
        assert i < 17
        self.stamp_names.append(name)
        self.A(f"s_memtime s[{sPS + 2 * i}:{sPS + 2 * i + 1}]")

    def qk_mfma(self, u, sbuf, kbuf, t, j):
        d = vS + 8 * sbuf + 4 * t
        a = aKF + 32 * kbuf + 16 * t + 4 * j
        c = self.vr(vC) if j == 0 else self.vr(d)
        return f"v_mfma_f32_16x16x32_bf16 {self.vr(d)}, {self.ar(a)}, {self.q(u, j)}, {c}"

    def pv_mfma(self, u, pbuf, vbuf, dt, first=False):
        d = vO + 32 * u + 4 * dt
        a = aVF + 32 * vbuf + 4 * dt
        b = vP + 4 * pbuf
        c = "0" if first else self.vr(d)
        return f"v_mfma_f32_16x16x32_bf16 {self.vr(d)}, {self.ar(a)}, {self.vr(b)}, {c}"

    def ones_mfma(self, u, pbuf):
        d = self.aLidx[u]
        b = vP + 4 * pbuf
        return f"v_mfma_f32_16x16x32_bf16 {self.ar(d)}, {self.ar(aOnes)}, {self.vr(b)}, {self.ar(d)}"

    def k_read(self, kbuf, L, slotpar, t, j):
        d = aKF + 32 * kbuf + 16 * t + 4 * j
        off = slotpar * 16384 + t * 4096 + (j // 2) * 2048 + (j % 2) * 512
        return f"ds_read_b128 {self.ar(d)}, v{vKA + L} offset:{off}"

    def v_read(self, vbuf, L, slotpar, t, dt):
        d = aVF + 32 * vbuf + 4 * dt + 2 * t
        off = slotpar * 16384 + t * 4096 + (dt // 2) * 512
        return f"ds_read_b64_tr_b16 {self.ar(d, 2)}, v{vVA + 2 * L + (dt % 2)} offset:{off}"

    def dma(self, which):
        nt = " nt" if self.cfg.nt else ""
        if which == 'K':
            return f"buffer_load_dwordx4 v{vDK}, s[{sK}:{sK + 3}], s{sSoff} offen{nt} lds"
        return f"buffer_load_dwordx4 v{vDV}, s[{sV}:{sV + 3}], s{sSoff} offen{nt} lds"

    def dma_tile_simple(self, which):
        base = LDS_K if which == 'K' else LDS_V
        for m in range(4):
            self.A(f"s_add_u32 m0, s{sSlot}, {base + m * 4096}")
            self.A(f"s_add_u32 s{sSoff}, s{sGoff}, {m * 4096}")
            self.A(self.dma(which))

    def advance_tile(self):
        o = [f"s_add_u32 s{sGoff}, s{sGoff}, 16384",
             f"s_add_u32 s{sSlot}, s{sSlot}, 16384",
             f"s_and_b32 s{sSlot}, s{sSlot}, 0xffff"]
        if self.cfg.pf:
            o[2] = [o[2], f"s_cmp_ge_u32 s{sGoff}, {KBYTES}", f"s_cselect_b32 s{sSlot}, s{sDead}, s{sSlot}"]
        if self.cfg.rot:
            assert not self.cfg.pf
            o = [o[0], [f"s_and_b32 s{sGoff}, s{sGoff}, {KBYTES - 1}", o[1]],
                 [f"s_cmp_eq_u32 s{sLoop}, 1", f"s_cselect_b32 s{sGoff}, {KBYTES}, s{sGoff}", o[2]]]
        return o

    def sm_items(self, u, sbuf, pbuf):
        sb = vS + 8 * sbuf
        pb = vP + 4 * pbuf
        E = [f"v_exp_f32 v{sb + k}, v{sb + k}" for k in range(8)]
        C = {k: f"v_cvt_pk_bf16_f32 v{pb + k // 2}, v{sb + k - 1}, v{sb + k}" for k in (1, 3, 5, 7)}
        Ad = {k: f"v_add_f32 v{vL + u}, v{vL + u}, v{sb + k}" for k in range(8)} if u not in self.ones else {}
        return E, C, Ad

    def emit_slot(self, qk=None, pv=None, sm=None, mem=()):
        A = self.A
        mf = []
        if qk:
            u, sbuf, kbuf = qk
            mf += [self.qk_mfma(u, sbuf, kbuf, t, j) for t in range(2) for j in range(4)]
        if pv:
            u, pbuf, vbuf = pv[:3]
            first = len(pv) > 3 and pv[3]
            mf += [self.pv_mfma(u, pbuf, vbuf, dt, first) for dt in range(8)]
            if u in self.ones:
                mf.append(self.ones_mfma(u, pbuf))
        fill = [[] for _ in range(len(mf) + 1)]
        if sm:
            E, C, Ad = self.sm_items(*sm)
            if len(mf) >= 16:
                for k in range(8):
                    fill[2 * k].append(E[k])
                    if k in C:
                        fill[2 * k + 1].append(C[k])
                    if k in Ad:
                        fill[2 * k + 1].append(Ad[k])
            else:
                assert len(mf) >= 8
                for k in range(8):
                    fill[k].append(E[k])
                    nx = k + 1 if k + 1 < 8 else len(mf)
                    if k in C:
                        fill[nx].append(C[k])
                    if k in Ad:
                        fill[nx].append(Ad[k])
                if len(mf) == 8:
                    fill[8].insert(0, "s_nop 0")
        mem = list(mem)
        n = len(mf)
        memat = [[] for _ in range(n + 1)]
        for i, m in enumerate(mem):
            memat[min(n - 1, (i * n) // max(len(mem), 1))].append(m)
        for i, m in enumerate(mf):
            A(m)
            for x in memat[i]:
                A(x)
            for x in fill[i]:
                A(x)
        for x in fill[n]:
            A(x)

    def vm_issue(self, tag):
        self.vm.append(tag)

    def vm_wait(self, tag, extra=""):
        last = max(i for i, t in enumerate(self.vm) if t == tag)
        n = len(self.vm) - 1 - last
        self.A(f"s_waitcnt vmcnt({n}){extra}")

    def q_scale(self, src, dst, n, toacc=False):
        A = self.A
        tmp = vS
        for r0 in range(0, n, 4):
            for r in range(4):
                A(f"v_lshlrev_b32 v{tmp + 2 * r}, 16, v{src + r0 + r}")
                A(f"v_and_b32 v{tmp + 2 * r + 1}, s{sMask}, v{src + r0 + r}")
            for r in range(4):
                A(f"v_pk_mul_f32 v[{tmp + 2 * r}:{tmp + 2 * r + 1}], v[{tmp + 2 * r}:{tmp + 2 * r + 1}], s[{sC}:{sC + 1}]")
            for r in range(4):
                d = src if toacc else dst
                A(f"v_cvt_pk_bf16_f32 v{d + r0 + r}, v{tmp + 2 * r}, v{tmp + 2 * r + 1}")
            if toacc:
                for r in range(4):
                    A(f"v_accvgpr_write_b32 a{dst + r0 + r}, v{src + r0 + r}")

    def prologue(self):
        A = self.A
        cfg = self.cfg
        nt = " nt" if cfg.nt else ""
        A("s_cmp_ge_u32 s2, 256")
        A("s_cbranch_scc1 L_end")
        self.wg = "s2"
        if cfg.headmap:
            A("s_mov_b32 s3, s2")
            self.wg = "s3"
            for x in cfg.headmap:
                A(x)
        A(f"s_load_dwordx8 s[{sArg}:{sArg + 7}], s[0:1], 0")
        if cfg.rot:
            for x in cfg.rot:
                A(x)
            A("s_and_b32 s6, s6, 31")
            A("s_lshl_b32 s6, s6, 14")
        if cfg.stamps:
            A(f"s_load_dwordx2 s[{sW_}:{sW_ + 1}], s[0:1], 40")
            A(f"s_memrealtime s[{sStamp}:{sStamp + 1}]")
            A(f"s_memtime s[{sStamp + 2}:{sStamp + 3}]")
        t0, t1, t2, t3, t4 = vT, vT + 1, vT + 2, vT + 3, vT + 4
        lane = vT + 8
        if cfg.code_pf:
            A("s_getpc_b64 s[4:5]")
            self.label("L_pc0")
            A(f"s_sub_u32 s4, s4, L_pc0-{NAME}")
            A("s_subb_u32 s5, s5, 0")
            A(f"v_lshlrev_b32 v{vS}, 7, v0")
            A(f"v_mov_b32 v{vS + 1}, s5")
            A(f"v_add_co_u32 v{vS}, vcc, s4, v{vS}")
            A(f"v_addc_co_u32 v{vS + 1}, vcc, 0, v{vS + 1}, vcc")
            A(f"global_load_dword v100, v[{vS}:{vS + 1}], off")
            self.vm_issue("CP")
        for i in range(4):
            A(f"v_mov_b32 v{vP + i}, 0")
        zlist = [f"v_mfma_f32_32x32x16_bf16 v[{vO + 160 + 16 * i}:{vO + 175 + 16 * i}], v[{vP}:{vP + 3}], v[{vP}:{vP + 3}], 0"
                 for i in range(2)]
        zlist.append(f"v_mfma_f32_32x32x16_bf16 a[{aL}:{aL + 15}], v[{vP}:{vP + 3}], v[{vP}:{vP + 3}], 0")
        pre = []
        P = pre.append
        P(f"v_and_b32 v{lane}, 63, v0")
        P(f"v_lshrrev_b32 v{t0}, 6, v0")
        P(f"v_lshrrev_b32 v{t1}, 5, v{lane}")
        P(f"v_readfirstlane_b32 s{sWave}, v{t0}")
        P(f"v_lshlrev_b32 v{t0}, 6, v{t1}")
        P(f"v_bfe_u32 v{t1}, v{lane}, 2, 3")
        P(f"v_and_b32 v{t2}, 3, v{lane}")
        P(f"v_lshl_add_u32 v{t0}, v{t1}, 8, v{t0}")
        P(f"v_lshrrev_b32 v{t3}, 2, v{t1}")
        for rh in range(2):
            P(f"v_add_u32 v{t4}, {2 * rh}, v{t3}")
            P(f"v_sub_u32 v{t4}, 0, v{t4}")
            P(f"v_and_b32 v{t4}, 3, v{t4}")
            P(f"v_xor_b32 v{t4}, v{t4}, v{t2}")
            P(f"v_lshl_add_u32 v{t4}, v{t4}, 4, v{t0}")
            P(f"v_add_u32 v{vT + 6 + rh}, {rh * 2048}, v{t4}")
        P(f"s_and_b32 s{sP}, s{sWave}, 1")
        P(f"s_lshr_b32 s{sT0}, s{sWave}, 1")
        P(f"s_cmp_eq_u32 s{sP}, 0")
        P(f"s_cselect_b64 s[{sTmp64}:{sTmp64 + 1}], -1, 0")
        P(f"v_cndmask_b32 v{t3}, v{vT + 7}, v{vT + 6}, s[{sTmp64}:{sTmp64 + 1}]")
        P(f"s_lshl_b32 s{sT1}, s{sT0}, 7")
        P(f"v_add_u32 v{vDK}, s{sT1}, v{t3}")
        P(f"s_lshl_b32 s{sSlot}, s{sWave}, 10")
        P(f"s_mul_i32 s{sT1}, s2, {QBYTES}")
        P(f"s_lshl_b32 s{sT2}, s2, 19")
        zi = 0
        for i, x in enumerate(pre):
            A(x)
            if i % 3 == 2 and zi < len(zlist):
                A(zlist[zi]); zi += 1
        while zi < len(zlist):
            A(zlist[zi]); zi += 1

        def srd(reg, arg, off, size):
            A(f"s_add_u32 s{reg}, s{arg}, s{off}")
            A(f"s_addc_u32 s{reg + 1}, s{arg + 1}, 0")
            A(f"s_and_b32 s{reg + 1}, s{reg + 1}, 0xffff")
            A(f"s_mov_b32 s{reg + 2}, {size}")
            A(f"s_mov_b32 s{reg + 3}, 0x20000")

        def kv_group(which, tile):
            base = LDS_K if which == 'K' else LDS_V
            if cfg.rot and tile:
                A(f"s_add_u32 s7, s6, {tile * 16384}")
                A(f"s_and_b32 s7, s7, {KBYTES - 1}")
            for m in range(4):
                A(f"s_add_u32 m0, s{sSlot}, {base + slot_of(tile) * 16384 + m * 4096}")
                if cfg.rot:
                    A(f"s_add_u32 s{sSoff}, s{7 if tile else 6}, {m * 4096}")
                else:
                    A(f"s_mov_b32 s{sSoff}, {tile * 16384 + m * 4096}")
                A(self.dma(which))
                self.vm_issue(f"{which}{tile}")
        sW13, sW12, sRow = sT0, sT3, sPass
        B2 = LDS_K + slot_of(3) * 16384
        PC = LDS_V + slot_of(3) * 16384
        qorder = cfg.qorder
        stage = {qorder[0]: (sW13, LDS_SP), qorder[1]: (sW13, LDS_SP + 4096), qorder[2]: (sW12, B2),
                 qorder[3]: (sW13, LDS_SP), qorder[4]: (sW13, LDS_SP + 4096)}

        def q_dma(u):
            sreg, base = stage[u]
            for jp in range(2):
                for rh in range(2):
                    A(f"s_add_u32 m0, s{sreg}, {base + jp * 2048 + rh * 1024}")
                    A(f"s_add_u32 s{sSoff}, s{sRow}, {u * 4096 + jp * 128}")
                    A(f"buffer_load_dwordx4 v{vT + 6 + rh}, s[{sQ}:{sQ + 3}], s{sSoff} offen{nt} lds")
                    self.vm_issue(f"Q{u}")
        def issue(ev):
            for g in cfg.sched.get(ev, []):
                if g[0] == 'Q':
                    q_dma(qorder["abcde".index(g[1])])
                else:
                    kv_group(g[0], int(g[1]))
        A("s_waitcnt lgkmcnt(0)")
        self.stamp("karg")
        srd(sK, sArg + 2, sT2, KBYTES)
        kv_group('K', 0)
        srd(sQ, sArg, sT1, QBYTES)
        A(f"s_lshl_b32 s{sW13}, s{sWave}, 13")
        A(f"s_lshl_b32 s{sW12}, s{sWave}, 12")
        A(f"s_mul_i32 s{sRow}, s{sWave}, {80 * 256}")
        q_dma(qorder[0])
        A(f"s_add_u32 m0, s{sSlot}, {PC}")
        A(f"s_lshr_b32 s{sSoff}, s{sWave}, 1")
        A(f"s_lshl_b32 s{sSoff}, s{sSoff}, 7")
        A(f"s_add_u32 s{sSoff}, s{sSoff}, {320 * 256}")
        A(f"buffer_load_dwordx4 v{t3}, s[{sQ}:{sQ + 3}], s{sSoff} offen{nt} lds")
        self.vm_issue("QP")
        self.stamp("iss9")
        srd(sV, sArg + 4, sT2, KBYTES)
        A(f"v_bfe_u32 v{t0}, v{lane}, 4, 1")
        A(f"v_bfe_u32 v{t1}, v{lane}, 2, 2")
        A(f"v_lshl_add_u32 v{t1}, v{t0}, 2, v{t1}")
        A(f"v_bfe_u32 v{t2}, v{lane}, 1, 1")
        A(f"v_xor_b32 v{t2}, v{t2}, v{t0}")
        A(f"v_and_b32 v{t3}, 1, v{lane}")
        A(f"v_lshl_add_u32 v{t2}, v{t2}, 1, v{t3}")
        A(f"v_lshrrev_b32 v{t3}, 5, v{lane}")
        A(f"v_lshl_add_u32 v{t2}, v{t3}, 2, v{t2}")
        A(f"v_lshlrev_b32 v{t2}, 4, v{t2}")
        A(f"v_lshl_add_u32 v{vDV}, v{t1}, 8, v{t2}")
        A(f"s_lshr_b32 s{sTmp64}, s{sWave}, 1")
        A(f"s_lshl_b32 s{sTmp64}, s{sTmp64}, 11")
        A(f"s_lshl_b32 s{sTmp64 + 1}, s{sP}, 7")
        A(f"s_add_u32 s{sTmp64}, s{sTmp64}, s{sTmp64 + 1}")
        A(f"v_add_u32 v{vDV}, s{sTmp64}, v{vDV}")
        issue('i1')
        self.stamp("iss17")
        srd(sO, sArg + 6, sT1, QBYTES)
        if cfg.stamps:
            A(f"s_and_b32 s{sW_ + 1}, s{sW_ + 1}, 0xffff")
            A(f"s_mov_b32 s{sW_ + 2}, 0x100000")
            A(f"s_mov_b32 s{sW_ + 3}, 0x20000")
        qa01, k5addr, plin, qa2 = vT + 4, vT + 5, vT + 8, vT + 9
        kaddr = vP + 4
        A(f"v_and_b32 v{t0}, 15, v{lane}")
        A(f"v_lshrrev_b32 v{t1}, 4, v{lane}")
        A(f"v_lshrrev_b32 v{t2}, 2, v{t0}")
        A(f"v_sub_u32 v{t2}, 0, v{t2}")
        A(f"v_and_b32 v{t2}, 3, v{t2}")
        A(f"v_xor_b32 v{t2}, v{t2}, v{t1}")
        A(f"v_lshlrev_b32 v{t2}, 4, v{t2}")
        A(f"v_and_b32 v{t3}, 7, v{t0}")
        A(f"v_lshl_add_u32 v{t2}, v{t3}, 6, v{t2}")
        A(f"v_lshrrev_b32 v{t3}, 3, v{t0}")
        A(f"v_lshl_add_u32 v{kaddr}, v{t3}, 10, v{t2}")
        sA, sB = sTmp64, sTmp64 + 1
        A(f"s_lshl_b32 s{sA}, s{sP}, 13")
        A(f"s_xor_b32 s{sB}, s{sA}, 8192")
        A(f"v_add_u32 v{vKA}, s{sA}, v{kaddr}")
        A(f"v_add_u32 v{vKA + 1}, s{sB}, v{kaddr}")
        A(f"v_add_u32 v{k5addr}, {PC}, v{kaddr}")
        A(f"v_add_u32 v{qa01}, s{sW13}, v{kaddr}")
        A(f"v_add_u32 v{qa01}, {LDS_SP}, v{qa01}")
        A(f"v_add_u32 v{qa2}, s{sW12}, v{kaddr}")
        A(f"v_add_u32 v{qa2}, {B2}, v{qa2}")
        A(f"v_lshrrev_b32 v{t2}, 1, v{t1}")
        A(f"v_lshlrev_b32 v{t2}, 11, v{t2}")
        A(f"v_and_b32 v{t3}, 1, v{t1}")
        A(f"v_lshl_add_u32 v{t2}, v{t3}, 8, v{t2}")
        A(f"v_lshrrev_b32 v{kaddr}, 2, v{t0}")
        A(f"v_lshl_add_u32 v{t2}, v{kaddr}, 6, v{t2}")
        A(f"v_and_b32 v{kaddr}, 3, v{t0}")
        A(f"v_lshl_add_u32 v{t2}, v{kaddr}, 3, v{t2}")
        A(f"v_add_u32 v{t2}, {LDS_V}, v{t2}")
        for pi in range(2):
            A(f"v_xor_b32 v{kaddr}, {pi}, v{t3}")
            A(f"v_lshl_add_u32 v{kaddr}, v{kaddr}, 5, v{t2}")
            A(f"v_add_u32 v{vVA + pi}, s{sA}, v{kaddr}")
            A(f"v_add_u32 v{vVA + 2 + pi}, s{sB}, v{kaddr}")
        A(f"v_lshlrev_b32 v{plin}, 4, v{lane}")
        A(f"v_add_u32 v{plin}, s{sSlot}, v{plin}")
        A(f"v_add_u32 v{plin}, {PC}, v{plin}")
        A(f"s_mov_b32 s{sC}, {f32hex(CSCALE)}")
        A(f"s_mov_b32 s{sC + 1}, {f32hex(CSCALE)}")
        A(f"s_mov_b32 s{sMask}, 0xffff0000")
        A(f"s_mov_b32 s{sThrLo}, {f32hex(cfg.lo_thr)}")
        A(f"s_mov_b32 s{sThrHi}, {f32hex(cfg.hi_thr)}")
        for i in range(4):
            A(f"v_mov_b32 v{vT + 10}, 0x3f803f80") if i == 0 else None
            A(f"v_accvgpr_write_b32 a{aOnes + i}, v{vT + 10}")
        for i in range(6):
            A(f"v_mov_b32 v{vL + i}, 0")
        for i in range(4):
            A(f"v_mov_b32 v{vC + i}, {f32hex(-float(cfg.coff))}")
        for i in range(8):
            A(f"v_accvgpr_write_b32 a{aStash + i}, v{vKA + i}")
        self.out_addr_setup()
        self.stamp("setup")
        issue('setup')
        S0 = slot_of(0)

        def kr(L, t, j):
            d = aKF + 32 * L + 16 * t + 4 * j
            return f"ds_read_b128 {self.ar(d)}, v{vKA + L} offset:{S0 * 16384 + t * 4096 + (j // 2) * 2048 + (j % 2) * 512}"

        def vrd(L, t, dt):
            d = aVF + 32 * L + 4 * dt + 2 * t
            return f"ds_read_b64_tr_b16 {self.ar(d, 2)}, v{vVA + 2 * L + (dt % 2)} offset:{S0 * 16384 + t * 4096 + (dt // 2) * 512}"
        self.vm_wait("K0")
        A("s_barrier")
        self.stamp("k0_bar")
        issue('k0')
        for L in range(2):
            for t in range(2):
                for j in range(4):
                    A(kr(L, t, j))

        def q_fetch(u, tq):
            sreg, base = stage[u]
            if base >= LDS_SP:
                reg, off = qa01, base - LDS_SP
            else:
                reg, off = qa2, 0
            for j in range(4):
                A(f"ds_read_b128 {self.vr(tq + 4 * j)}, v{reg} offset:{off + (j // 2) * 2048 + (j % 2) * 512}")
            A("s_waitcnt lgkmcnt(0)")

        def q_ready(u, after_read):
            f, b = self.qloc[u]
            tq = vO + 32 * u
            self.vm_wait(f"Q{u}")
            q_fetch(u, tq)
            after_read()
            self.q_scale(tq, b, 16, toacc=True)
            A("s_nop 1")
        a, b_, c, d_, e = qorder
        q_ready(a, lambda: issue('qa'))
        self.stamp("qa_done")
        self.emit_slot(qk=(a, 1, 0))
        A("s_nop 2")
        self.emit_slot(qk=(a, 2, 1), sm=(a, 1, 1))
        E, C, Ad = self.sm_items(a, 2, 2)
        for k in range(8):
            A(E[k])
            if k >= 1 and (k - 1) in C:
                A(C[k - 1])
            if k >= 1 and (k - 1) in Ad:
                A(Ad[k - 1])
        A("s_nop 0")
        A(C[7])
        if 7 in Ad:
            A(Ad[7])
        self.vm_wait("QP")
        A(f"ds_read_b128 {self.vr(vP)}, v{plin}")
        A("s_waitcnt lgkmcnt(0)")
        self.q_scale(vP, vP, 4)
        A(f"ds_write_b128 v{plin}, {self.vr(vP)}")
        self.vm_wait("V0", " lgkmcnt(0)")
        A("s_barrier")
        self.stamp("v0_bar")
        issue('v0')
        for L in range(2):
            for dt in range(8):
                for t in range(2):
                    A(vrd(L, t, dt))
            if L == 0:
                for j in range(4):
                    A(f"ds_read_b128 {self.q(5, j)}, v{k5addr} offset:{(j // 2) * 2048 + (j % 2) * 512}")
        A("s_waitcnt lgkmcnt(15)")
        self.emit_slot(pv=(a, 1, 0, True))
        A("s_waitcnt lgkmcnt(0)")
        self.emit_slot(pv=(a, 2, 1))
        A(f"s_cmp_ge_u32 s{sWave}, 2")
        A("s_cbranch_scc1 L_noshared0")
        self.emit_slot(qk=(5, 1, 0))
        E, C, Ad = self.sm_items(5, 1, 1)
        A("s_nop 7")
        for k in range(8):
            A(E[k])
            if k >= 1 and (k - 1) in C:
                A(C[k - 1])
        A("s_nop 0")
        A(C[7])
        A("s_nop 1")
        self.emit_slot(pv=(5, 1, 0))
        self.label("L_noshared0")
        self.stamp("a_done")

        def burst(u, last=False):
            self.emit_slot(qk=(u, 1, 0))
            A("s_nop 2")
            self.emit_slot(qk=(u, 2, 1), sm=(u, 1, 1))
            A("s_nop 1")
            self.emit_slot(pv=(u, 1, 0, True), sm=(u, 2, 2))
            if not last:
                A("s_nop 1")
                self.emit_slot(pv=(u, 2, 1))
        q_ready(b_, lambda: issue('qb'))
        burst(b_)
        q_ready(c, lambda: issue('qc'))
        burst(c)
        self.stamp("c_done")
        q_ready(d_, lambda: issue('qd'))
        burst(d_)
        q_ready(e, lambda: issue('qe'))
        burst(e, last=True)
        self.stamp("e_done")
        issue('end0')
        self.vm_wait("V1", " lgkmcnt(0)")
        A("s_barrier")
        self.stamp("bar0")
        for t in range(2):
            for j in range(4):
                A(self.k_read(0, 0, 0, t, j))
        for dt in range(8):
            for t in range(2):
                A(self.v_read(0, 0, 0, t, dt))
        issue('end1')
        nt_ = 3 + cfg.pf
        if cfg.pf:
            issue('end2')
            A(f"s_add_u32 s{sDead}, s{sSlot}, {3 * 16384}")
        if cfg.rot:
            A(f"s_add_u32 s{sGoff}, s6, {nt_ * 16384}")
            A(f"s_and_b32 s{sGoff}, s{sGoff}, {KBYTES - 1}")
        else:
            A(f"s_mov_b32 s{sGoff}, {nt_ * 16384}")
        A(f"s_add_u32 s{sSlot}, s{sSlot}, {slot_of(nt_) * 16384}")
        A("s_waitcnt lgkmcnt(15)")

    def zero_acc(self):
        for i in range(192):
            self.A(f"v_mov_b32 v{vO + i}, 0")
        for i in range(6):
            self.A(f"v_mov_b32 v{vL + i}, 0")

    def ub_list(self, cls):
        cfg = self.cfg
        out = []
        shared_beta = 2 if cls == 0 else 0
        for beta in range(4):
            units = list(cfg.order)
            if beta == shared_beta:
                units.insert(cfg.shared_pos, 5)
            for u in units:
                out.append((beta, u))
        return out

    def build_loop(self, cls):
        cfg = self.cfg
        ubs = self.ub_list(cls)
        N = len(ubs)
        assert N % 3 == 0
        gaps = []
        slot_first = []
        for n in range(N):
            nb, nu = ubs[(n + 1) % N]
            cb, cu = ubs[n]
            pb, pu = ubs[(n - 1) % N]
            mf = []
            for t in range(2):
                for j in range(4):
                    mf.append(self.qk_mfma(nu, (n + 1) % 3, nb % 2, t, j))
            for dt in range(8):
                mf.append(self.pv_mfma(pu, (n - 1) % 3, pb % 2, dt))
            if pu in self.ones:
                mf.append(self.ones_mfma(pu, (n - 1) % 3))
            slot_first.append(len(gaps))
            sb = vS + 8 * (n % 3)
            pbuf = vP + 4 * (n % 3)
            adds = cu not in self.ones
            for i, m in enumerate(mf):
                g = dict(mfma=m, shadow=[], mem=[], valu=[], slot=n, pos=i, pre=[])
                if i < 16:
                    k = i // 2
                    if i % 2 == 0:
                        g['valu'].append(('E', f"v_exp_f32 v{sb + k}, v{sb + k}"))
                    else:
                        if k % 2 == 1:
                            g['valu'].append(('C', f"v_cvt_pk_bf16_f32 v{pbuf + k // 2}, v{sb + k - 1}, v{sb + k}"))
                        if adds:
                            g['valu'].append(('A', f"v_add_f32 v{vL + cu}, v{vL + cu}, v{sb + k}"))
                gaps.append(g)
        slot_first.append(len(gaps))
        G = len(gaps)

        def used(g):
            if g.get('resv'):
                return 2
            c = 0
            for k, _ in g['valu']:
                c += 2 if k == 'E' else 1
            for k, _ in g['mem']:
                c += 2 if k == 'D' else 1
            c += len(g['pre'])
            return c

        def place(items, lo, hi, cost, key='mem', grp=None):
            free = []
            for gi in range(lo, hi):
                f = 2 - used(gaps[gi % G])
                if cost == 2:
                    if f >= 2:
                        free.append(gi)
                else:
                    free.extend([gi] * max(f, 0))
            n = len(items)
            if cost == 1 and cfg.single_first:
                uniq = []
                for gi in free:
                    if gi not in uniq and not gaps[gi % G]['mem']:
                        uniq.append(gi)
                if len(uniq) >= n:
                    free = uniq
            seed = cfg.jit.get((cls,) + grp) if grp else None
            if len(free) >= n and seed is not None:
                import random
                rnd = random.Random(seed)
                for _try in range(200):
                    if seed % 2:
                        sel = sorted(rnd.sample(free, n))
                    else:
                        sel = [free[rnd.randrange((i * len(free)) // n, max(((i + 1) * len(free)) // n, (i * len(free)) // n + 1))] for i in range(n)]
                    if cost == 1 or all(sel[i] + 3 <= sel[i + 1] for i in range(n - 1)):
                        break
                else:
                    raise ValueError("no placement")
            elif len(free) >= n:
                sel = [free[(i * len(free)) // n] for i in range(n)]
            else:
                sel = list(free)
                cand = [gi for gi in range(lo, hi) if not any(k == 'E' for k, _ in gaps[gi % G]['valu']) and not gaps[gi % G].get('resv')]
                cnt = {gi: used(gaps[gi % G]) + sel.count(gi) * cost for gi in cand}
                while len(sel) < n:
                    gi = min(cand, key=lambda x: (cnt[x], abs(x - (lo + hi) // 2)))
                    sel.append(gi)
                    cnt[gi] += cost
                sel.sort()
            for it, gi in zip(items, sel):
                gaps[gi % G][key].append(it)
            return sel

        bfirst = {}
        blast = {}
        for n, (b, u) in enumerate(ubs):
            bfirst.setdefault(b, n)
            blast[b] = n
        sh = cfg.bar_shift
        barpos = {}
        first = (cls == 1)
        for bb, sign in ((1, -1 if first else 1), (3, 1 if first else -1)):
            barpos[bb] = slot_first[bfirst[bb]] + sign * sh
        if cfg.barg:
            barpos = {1: cfg.barg[cls][0] + 1, 3: cfg.barg[cls][1] + 1}
        lg = " lgkmcnt(0)" if cfg.bar_lgkm else ""
        for bb in (1, 3):
            gi = barpos[bb] - 1
            if cfg.barg and cfg.bar_clear:
                g = gaps[gi]
                assert not any(k == 'E' for k, _ in g['valu']), (cls, bb, gi)
                mv = g['valu']
                g['valu'] = []
                gj = gi + 1
                while mv:
                    gj += 1
                    h = gaps[gj]
                    if any(k == 'E' for k, _ in h['valu']):
                        continue
                    if used(h) < 2:
                        h['valu'].insert(0, mv.pop(0))
                g['resv'] = True
                gaps[gi - 1]['shadow'].append(('BW', bb))
                g['shadow'].append(('B', "s_barrier"))
            else:
                gaps[gi - cfg.bar_wearly]['shadow'].append(('BW', bb))
                gaps[gi]['shadow'].append(('B', "s_barrier"))

        if cfg.br_gap:
            gi = cfg.br_gap[cls]
            g = gaps[gi]
            assert not any(k == 'E' for k, _ in g['valu']), (cls, gi)
            mv = g['valu']
            g['valu'] = []
            gj = gi + 1
            while mv:
                gj += 1
                h = gaps[gj]
                if any(k == 'E' for k, _ in h['valu']):
                    continue
                if used(h) < 2:
                    h['valu'].insert(0, mv.pop(0))
            g['resv'] = True
            g['norm_s'] = True
            gaps[gi - 1]['norm_s'] = True
            gaps[gi - 1]['shadow'].append(('L', f"s_sub_u32 s{sLoop}, s{sLoop}, 1"))
            gaps[gi - 1]['shadow'].append(('L', f"s_cmp_lg_u32 s{sLoop}, 0"))
            g['shadow'].append(('BR', f"s_cbranch_scc1 L_loop{cls}"))

        def dma_group(which, lo, hi, tag):
            base = LDS_K if which == 'K' else LDS_V
            items = [('D', self.dma(which)) for m in range(4)]
            sel = place(items, lo, hi, 2, grp=('D',) + tag)
            assert all(sel[i] + 3 <= sel[i + 1] for i in range(3)), sel
            prev = None
            for m, gi in enumerate(sel):
                gaps[gi - 1]['shadow'].append(('S', f"s_add_u32 m0, s{sSlot}, {base + m * 4096}"))
                gaps[gi - 2]['shadow'].append(('S', f"s_add_u32 s{sSoff}, s{sGoff}, {m * 4096}"))
                gaps[gi].setdefault('dtag', []).append(tag)
            return sel

        for bb in (1, 3):
            nxt = (bb + 1) % 4
            lo = max(barpos[bb] + 3, slot_first[bfirst[bb]] + 3)
            selk = dma_group('K', lo, slot_first[blast[bb] + 1], ('K', bb))
            lo2 = slot_first[bfirst[nxt]] + 3
            nb_bar = barpos[(nxt + 1) % 4]
            hi2 = min(slot_first[blast[nxt] + 1] - (sh + 2), nb_bar - 3)
            selv = dma_group('V', lo2, hi2, ('V', bb))
            gi = selv[-1] + 1
            adv = self.advance_tile()
            for i, x in enumerate(adv):
                for y in (x if isinstance(x, list) else [x]):
                    gaps[gi + i]['shadow'].append(('S', y))

        if cfg.spreadx:
            pass
        need_wait = {}
        xitems = {}
        for beta in range(4):
            nb = (beta + 1) % 4
            L = nb % 2
            slotpar = (nb // 2) if nb != 0 else 0
            lo = slot_first[bfirst[beta]]
            hi = slot_first[blast[beta] + 1]
            crosses = (beta % 2 == 1)
            loK = lo
            vl = cfg.vlate if beta != 3 else 0
            if crosses:
                lo = max(lo, barpos[beta])
                loK = lo
                hiK = slot_first[blast[beta]] - 4
                hiV = hi + vl
            else:
                hiK = slot_first[blast[beta]] - 4
                if beta != 0:
                    loK = lo - cfg.kearly
                if cfg.bar_lgkm and cfg.pf:
                    hiV = min(hi + vl, barpos[nb] - cfg.bar_wearly - 8)
                elif cfg.bar_lgkm:
                    endb = min(hi, barpos[nb])
                    hiV = endb - 8
                else:
                    hiV = hi + vl
            if beta == 3 and not cfg.spreadx:
                tog = [('X', f"v_xor_b32 v{r}, 0x8000, v{r}") for r in (vKA, vVA, vVA + 1)]
                for i, it in enumerate(tog):
                    gaps[lo - 0 + 0]['pre'].append(it)
                tog2 = [('X', f"v_xor_b32 v{r}, 0x8000, v{r}") for r in (vKA + 1, vVA + 2, vVA + 3)]
                for it in tog2:
                    gaps[lo]['pre'].append(it)
                lo += 1
                loK = lo
            kitems = [('R', self.k_read(nb % 2, L, slotpar, t, j), ('K', nb)) for t in range(2) for j in range(4)]
            kitems = [(k, txt) for k, txt, tag in kitems]
            selK = place(kitems, loK, hiK, 1, grp=('K', beta))
            loV = max(lo, slot_first[bfirst[beta] + 1] - cfg.vearly)
            vitems = [('T', self.v_read(nb % 2, L, slotpar, t, dt)) for dt in range(8) for t in range(2)]
            selV = place(vitems, loV, hiV, 1, grp=('V', beta))
            if cfg.vearly:
                s0 = slot_first[bfirst[beta]]
                for i, gi in enumerate(selV):
                    assert gi >= s0 + 8 + i // 2, (beta, i, gi, s0)
            xitems[beta] = (min(selK + selV), max(selK + selV))
            need_wait[slot_first[blast[beta]]] = ('K', nb % 2)
            sl = (bfirst[nb] + 1) % N
            need_wait[slot_first[sl] + 8] = ('V', nb % 2)
        if cfg.spreadx:
            w0 = (xitems[1][1] + 1, xitems[3][0])
            w1 = (xitems[2][1] + 1, min(G, G + xitems[0][0]))
            place([('X', f"v_xor_b32 v{r}, 0x8000, v{r}") for r in (vKA, vVA, vVA + 1)], w0[0], w0[1], 1, key='valu', grp=('X', 0))
            place([('X', f"v_xor_b32 v{r}, 0x8000, v{r}") for r in (vKA + 1, vVA + 2, vVA + 3)], w1[0], w1[1], 1, key='valu', grp=('X', 1))

        seq = []
        for gi, g in enumerate(gaps):
            if gi in need_wait:
                seq.append(('LW', need_wait[gi]))
            seq.append(('M', g['mfma']))
            if cfg.stamps and cfg.loop_stamps and g['pos'] == 0 and cfg.loop_stamps[0] <= g['slot'] < cfg.loop_stamps[1]:
                i = g['slot'] - cfg.loop_stamps[0]
                seq.append(('S', f"s_memtime s[{sPS + 2 * i}:{sPS + 2 * i + 1}]"))
                if cls == 0:
                    self.stamp_names.append(f"slot{g['slot']}")
            for it in g['shadow']:
                seq.append(it)
            for it in g['pre']:
                seq.append(it)
            for it in g['mem']:
                seq.append(it)
            for it in g['valu']:
                seq.append(it)
        out = []
        for it in seq:
            if it[0] == 'LW':
                idx = max(i for i, x in enumerate(out) if x[0] == 'M') if any(x[0] == 'M' for x in out) else None
                if idx is None:
                    out.append(it)
                else:
                    out.insert(idx + 1, it)
            else:
                out.append(it)
        seq = out
        if cfg.br_gap:
            ib = next(i for i, (k, x) in enumerate(seq) if k == 'BR')
            ic = next(i for i, (k, x) in enumerate(seq) if k == 'L' and x.startswith("s_cmp"))
            assert all(k not in ('S',) for k, x in seq[ic:ib]), seq[ic:ib]
            il = next(i for i, (k, x) in enumerate(seq) if k == 'L')
            assert all(i < il for i, (k, x) in enumerate(seq) if x is not None and isinstance(x, str) and x.startswith("s_cselect")), "tile advance behind the loop counter"
        dts = []
        for gi, g in enumerate(gaps):
            for t in g.get('dtag', []):
                dts.append(t)
        order = []
        di = 0
        for k, x in seq:
            if k == 'D':
                order.append(dts[di]); di += 1
            elif k == 'BW':
                order.append(('BW', x))
        two = order + order + order
        bwn = {}
        for i in range(2 * len(order), len(two)):
            if two[i][0] == 'BW':
                bb = two[i][1]
                vs = [jj for jj in range(i) if two[jj][0] == 'V']
                assert two[vs[-1]] == ('V', 4 - bb) and len([1 for jj in vs[-4:] if two[jj] == ('V', 4 - bb)]) == 4
                j = vs[-1 - 4 * (1 + cfg.pf)]
                bwn[bb] = sum(1 for jj in range(j + 1, i) if two[jj][0] in ('K', 'V'))
                assert bwn[bb] == 8 * (1 + cfg.pf), bwn
        seq = [(('W', f"s_waitcnt vmcnt({bwn[x]}){lg}") if k == 'BW' else (k, x)) for k, x in seq]
        self.bwn = bwn
        issued = 0
        last_write = {}
        res = {}
        for it_no in range(2):
            for i, (k, x) in enumerate(seq):
                if k in ('R', 'T'):
                    issued += 1
                    d = int(x.split('a[')[1].split(':')[0])
                    if aKF <= d < aKF + 64:
                        last_write[('K', (d - aKF) // 32)] = issued
                    else:
                        last_write[('V', (d - aVF) // 32)] = issued
                elif k == 'W':
                    pass
                elif k == 'LW' and it_no == 1:
                    n_out = issued - last_write[x]
                    res[i] = min(n_out, 15)
        final = []
        for i, (k, x) in enumerate(seq):
            if k == 'LW':
                final.append(('W', f"s_waitcnt lgkmcnt({res[i]})"))
            else:
                final.append((k, x))
        rd = [x for k, x in final if k in ('R', 'T')]
        self.last_rd = rd[-1]
        if cfg.x_drop:
            final = [(k, x) for k, x in final if k not in cfg.x_drop]
        lastd = int(rd[-1].split('a[')[1].split(':')[0])
        assert aVF <= lastd < aVF + 32, rd[-1]
        over = sum(max(0, used(g) - 2) for g in gaps)
        self.stats = dict(gaps=G, overflow=over, bwn=bwn, bar=barpos)
        return final

    def main_loop(self, cls):
        A = self.A
        seq = self.build_loop(cls)
        ubs = self.ub_list(cls)
        b0, u0 = ubs[0]
        for t in range(2):
            for j in range(4):
                A(self.qk_mfma(u0, 0, 0, t, j))
        A("s_nop 7")
        A(f"s_mov_b32 s{sLoop}, 15")
        if self.cfg.stamps:
            A(f"s_memtime s[{sStamp + 4}:{sStamp + 5}]")
        A("s_waitcnt lgkmcnt(0)") if self.cfg.stamps else None
        if self.cfg.stamps and self.cfg.iter_stamps:
            A(f"v_mov_b32 v245, 0")
            if self.cfg.iter_rt:
                A(f"s_memrealtime s[{sPS + 32}:{sPS + 33}]")
                A("s_waitcnt lgkmcnt(0)")
            else:
                A(f"s_mov_b32 s{sPS + 32}, s{sStamp + 4}")
        if self.cfg.br_gap:
            ib = next(i for i, (k, x) in enumerate(seq) if k == 'BR')
            part1, part2 = seq[:ib + 1], seq[ib + 1:]

            def emit2():
                for k, x in part2:
                    A(x)
                if self.cfg.stamps and self.cfg.iter_stamps:
                    A(f"s_add_u32 m0, s{sLoop}, 1")
                    A("s_nop 0")
                    A(f"v_writelane_b32 v245, s{sPS + 32}, m0")
                    A(f"{'s_memrealtime' if self.cfg.iter_rt else 's_memtime'} s[{sPS + 32}:{sPS + 33}]")
            A(f"s_branch L_mid{cls}")
            A(".p2align 6")
            self.label(f"L_loop{cls}")
            emit2()
            self.label(f"L_mid{cls}")
            for k, x in part1:
                A(x)
            emit2()
            if self.cfg.stamps:
                A(f"s_memtime s[{sStamp + 6}:{sStamp + 7}]")
            self.tail(cls, ubs)
            return
        A(".p2align 6")
        self.label(f"L_loop{cls}")
        for k, x in seq:
            A(x)
        if self.cfg.stamps and self.cfg.iter_stamps:
            A(f"s_mov_b32 m0, s{sLoop}")
            A("s_nop 0")
            A(f"v_writelane_b32 v245, s{sPS + 32}, m0")
            A(f"s_memtime s[{sPS + 32}:{sPS + 33}]")
        A(f"s_sub_u32 s{sLoop}, s{sLoop}, 1")
        A(f"s_cmp_lg_u32 s{sLoop}, 0")
        A(f"s_cbranch_scc1 L_loop{cls}")
        if self.cfg.stamps:
            A(f"s_memtime s[{sStamp + 6}:{sStamp + 7}]")
        self.tail(cls, ubs)

    vW, vR, vG, vX, vXS = 228, 230, 231, 234, 235
    STG = LDS_V
    vG16, vLmin, vLmax = vT, vT + 1, vT + 2
    KX = LDS_K + 16384
    sRowU = {u: sArg + u for u in range(6)}

    def out_addr_setup(self):
        A = self.A
        ln, t0, t1, r = vS, vS + 1, vS + 2, vS + 3
        A(f"v_mbcnt_lo_u32_b32 v{ln}, -1, 0")
        A(f"s_mul_i32 s{sArg}, s{sWave}, {80 * 256}")
        A(f"v_mbcnt_hi_u32_b32 v{ln}, -1, v{ln}")
        for u in range(1, 5):
            A(f"s_add_u32 s{sArg + u}, s{sArg}, {u * 4096}")
        A(f"s_mul_i32 s{sT2}, s{sWave}, 4608")
        A(f"s_add_u32 s{sT2}, s{sT2}, {self.STG}")
        A(f"v_and_b32 v{t0}, 15, v{ln}")
        A(f"v_lshrrev_b32 v{t1}, 4, v{ln}")
        A(f"v_mul_u32_u24 v{r}, 272, v{t0}")
        A(f"v_lshl_add_u32 v{r}, v{t1}, 3, v{r}")
        A(f"v_add_u32 v{r}, s{sT2}, v{r}")
        A(f"v_accvgpr_write_b32 a{aAddr}, v{r}")
        A(f"v_lshrrev_b32 v{t0}, 3, v{ln}")
        A(f"v_and_b32 v{t1}, 7, v{ln}")
        A(f"v_lshlrev_b32 v{t1}, 4, v{t1}")
        A(f"v_mul_u32_u24 v{r}, 272, v{t0}")
        A(f"v_add3_u32 v{r}, v{r}, v{t1}, s{sT2}")
        A(f"v_accvgpr_write_b32 a{aAddr + 1}, v{r}")
        A(f"v_lshl_add_u32 v{r}, v{t0}, 8, v{t1}")
        A(f"v_accvgpr_write_b32 a{aAddr + 2}, v{r}")
        A(f"v_lshlrev_b32 v{ln}, 4, v{ln}")
        A(f"v_accvgpr_write_b32 a{aAddr + 3}, v{ln}")

    def out_addr_items(self):
        o = [f"v_accvgpr_read_b32 v{self.vW}, a{aAddr}",
             f"v_accvgpr_read_b32 v{self.vR}, a{aAddr + 1}",
             f"v_accvgpr_read_b32 v{self.vG}, a{aAddr + 2}",
             f"v_accvgpr_read_b32 v{self.vG16}, a{aAddr + 3}",
             f"s_lshl_b32 s{sT1}, s{sWave}, 10",
             f"v_add_u32 v{self.vX}, s{sT1}, v{self.vG16}",
             f"v_add_u32 v{self.vXS}, {LDS_SP}, v{self.vX}"]
        return o

    def H_items(self, base, rinv, tag, stg_half):
        o = []
        pk = self.cfg.pkmul
        for jj in range(2):
            for j in (2 * jj, 2 * jj + 1):
                x = base + 4 * j
                if pk:
                    for r in (0, 2):
                        o.append(It(f"v_pk_mul_f32 v[{x + r}:{x + r + 1}], v[{x + r}:{x + r + 1}], v[{rinv & ~1}:{(rinv & ~1) + 1}] op_sel:[0,{rinv & 1}] op_sel_hi:[1,{rinv & 1}]"))
                else:
                    for r in range(4):
                        o.append(It(f"v_mul_f32 v{x + r}, v{x + r}, v{rinv}"))
            for j in (2 * jj, 2 * jj + 1):
                x = base + 4 * j
                o.append(It(f"v_cvt_pk_bf16_f32 v{x}, v{x}, v{x + 1}"))
                o.append(It(f"v_cvt_pk_bf16_f32 v{x + 1}, v{x + 2}, v{x + 3}"))
            x = base + 8 * jj
            d0 = 16 * stg_half + 8 * jj
            o.append(It(f"ds_write2_b64 v{self.vW}, v[{x}:{x + 1}], v[{x + 4}:{x + 5}] offset0:{d0} offset1:{d0 + 4}", ds=True))
        for i in range(2):
            o.append(It(f"ds_read_b128 v[{base + 4 * i}:{base + 4 * i + 3}], v{self.vR} offset:{i * 8 * 272 + stg_half * 128}", ds=(tag, i)))
        if self.cfg.x_nomul:
            o = [x for x in o if "mul_f32" not in x.txt]
        if self.cfg.x_nods:
            o = [x for x in o if not x.txt.startswith("ds_write")]
        return o

    def S_items(self, base, tag, srow, h):
        o = []
        nt = self.cfg.st_mod
        for i in range(2):
            r = base + 4 * i
            o.append(It(f"buffer_store_dwordx4 v[{r}:{r + 3}], v{self.vG}, s[{sO}:{sO + 3}], s{srow} offen offset:{i * 2048 + h * 128}{nt}", needs=[(tag, i)]))
        if self.cfg.x_nostore:
            o = [It("s_nop 0", needs=x.needs) for x in o]
        return o

    def lim_items(self, r):
        if not self.lim_started:
            self.lim_started = True
            return [It(f"v_mov_b32 v{self.vLmin}, v{r}"), It(f"v_mov_b32 v{self.vLmax}, v{r}")]
        return [It(f"v_min_f32 v{self.vLmin}, v{self.vLmin}, v{r}"), It(f"v_max_f32 v{self.vLmax}, v{self.vLmax}, v{r}")]

    def F1_items(self, u):
        r = vL + u
        tt = vT + 5
        o = []
        if u in self.ones:
            o.append(It(f"v_accvgpr_read_b32 v{r}, a{self.aLidx[u]}"))
        else:
            o += [It(f"v_mov_b32 v{tt}, v{r}"), None, None,
                  It(f"v_permlane16_swap_b32 v{r}, v{tt}"), None,
                  It(f"v_add_f32 v{r}, v{r}, v{tt}"),
                  It(f"v_mov_b32 v{tt}, v{r}"), None, None,
                  It(f"v_permlane32_swap_b32 v{r}, v{tt}"), None,
                  It(f"v_add_f32 v{r}, v{r}, v{tt}")]
        o += self.lim_items(r)
        o += [It(f"v_rcp_f32 v{r}, v{r}"), None]
        return o

    @staticmethod
    def weave(prim, fill):
        fill = list(fill)
        out = []
        for x in prim:
            if x is None:
                out.append(fill.pop(0) if fill else It("s_nop 0"))
            else:
                out.append(x)
        return out + fill

    def t_emit(self, items):
        for it in items:
            if isinstance(it, str):
                it = It(it)
            for tag in it.needs:
                idx = self.ds_tag[tag]
                if idx > self.ds_done:
                    n = min(self.ds_issued - idx, 15)
                    self.A(f"s_waitcnt lgkmcnt({n})")
                    self.ds_done = self.ds_issued - n
            for x in (it.txt if isinstance(it.txt, list) else [it.txt]):
                self.A(x)
            if it.ds is not None:
                self.ds_issued += 1
                if it.ds is not True:
                    self.ds_tag[it.ds] = self.ds_issued
            if it.txt == "s_waitcnt lgkmcnt(0)":
                self.ds_done = self.ds_issued

    def t_slot(self, qk=None, pv=None, sm=None, bg=(), pv_first=False, need_qk=(), need_pv=(), bg_lo=0, bg_hi=None, late=()):
        mq, mp = [], []
        if qk:
            u, sbuf, kbuf = qk
            mq = [It(self.qk_mfma(u, sbuf, kbuf, t, j)) for t in range(2) for j in range(4)]
            mq[0].needs = list(need_qk)
        if pv:
            u, pbuf, vbuf = pv
            mp = [It(self.pv_mfma(u, pbuf, vbuf, dt)) for dt in range(8)]
            mp[0].needs = list(need_pv)
            if u in self.ones:
                mp.append(It(self.ones_mfma(u, pbuf)))
        mf = mp + mq if pv_first else mq + mp
        n = len(mf)
        fill = [[] for _ in range(n + 1)]
        if sm:
            E, C, Ad = self.sm_items(*sm)
            if n >= 16:
                for k in range(8):
                    fill[2 * k].append(E[k])
                    if k in C:
                        fill[2 * k + 1].append(C[k])
                    if k in Ad:
                        fill[2 * k + 1].append(Ad[k])
            else:
                assert n >= 8
                for k in range(8):
                    fill[k].append(E[k])
                    nx = k + 1 if k + 1 < 8 else n
                    if k in C:
                        fill[nx].append(C[k])
                    if k in Ad:
                        fill[nx].append(Ad[k])
                if n == 8:
                    fill[8].insert(0, "s_nop 0")
        bg = list(bg)
        bgat = [[] for _ in range(n + 1)]
        hi = n if bg_hi is None else bg_hi
        for i, m in enumerate(bg):
            bgat[bg_lo + (i * (hi - bg_lo)) // len(bg)].append(m)
        bg = None
        for pos, its in late:
            bgat[pos] += its
        seq = []
        for i, m in enumerate(mf):
            seq.append(m)
            seq += fill[i]
            seq += bgat[i]
        seq += fill[n] + bgat[n]
        self.t_emit(seq)

    def tail(self, cls, ubs):
        A = self.A
        cfg = self.cfg
        N = len(ubs)
        assert cfg.delta == 5
        assert slot_of(31) == 2 and slot_of(30) == 1
        vX, vXS, vG16 = self.vX, self.vXS, self.vG16
        KX = self.KX
        sRowU = self.sRowU
        a = ubs[0][1]
        rest = [u for u in (0, 1, 2, 3, 4) if u != a]
        rest = [u for u in rest if u in self.ones] + [u for u in rest if u not in self.ones]
        b, c, d, e = rest
        assert e not in self.ones
        own = [a, b, c, d, e]
        self.own = own
        tl = [(u, L) for u in own for L in range(2)]
        if cls == 1:
            tl.insert(1, (5, 0))
        M = len(tl)
        idx = {ub: i for i, ub in enumerate(tl)}
        self.lim_started = False
        self.ds_issued, self.ds_done, self.ds_tag = 0, -1, {'V0': 0}

        bg = {i: [] for i in range(M + 2)}
        late = {i: [] for i in range(M + 2)}
        Hu = lambda u, h: self.H_items(vO + 32 * u + 16 * h, vL + u, (u, h), h)
        Su = lambda u, h: self.S_items(vO + 32 * u + 16 * h, (u, h), sRowU[u], h)

        kl1 = [It(self.k_read(1, 1, 0, t, j), ds=True) for t in range(2) for j in range(4)]
        kl1[-1].ds = 'K1'
        vl1 = [It(self.v_read(1, 1, 0, t, dt), ds=True) for dt in range(8) for t in range(2)]
        vl1[-1].ds = 'V1'
        self.t_emit(kl1)
        addr = [It(x) for x in self.out_addr_items()]
        O5 = vO + 160

        def shared_out():
            o = [It(f"ds_write_b128 v{vXS}, v[{O5 + 4 * i}:{O5 + 4 * i + 3}] offset:{i * 4096}", ds=True) for i in range(8)]
            o.insert(4, It(f"v_accvgpr_read_b32 v{vT + 6}, a{self.aLidx[5]}"))
            o.append(It(f"ds_write_b32 v{vX}, v{vT + 6} offset:{KX}", ds=True))
            return o
        bar = [It("s_waitcnt lgkmcnt(0)"), It("s_barrier")]

        for u in own:
            f = idx[(u, 1)] + 1
            f1 = self.F1_items(u)
            if u in self.ones:
                bg[f + 1].append(('F1', [x if x is not None else It("s_nop 0") for x in f1]))
            else:
                bg[f].append(('F', f1))
            if u != e:
                bg[f + 1].append(('H', Hu(u, 0)))
                bg[f + 2].append(('H', Hu(u, 1)))
                bg[f + 2].append(('S', Su(u, 0)))
                if f + 3 <= M:
                    bg[f + 3].append(('S', Su(u, 1)))
        fd = idx[(d, 1)] + 1
        assert fd + 2 == M

        def assemble(lst):
            F = [x for k, l in lst if k == 'F' for x in l]
            Hs = [x for k, l in lst if k == 'F1' for x in l] + [x for k, l in lst if k == 'H' for x in l]
            S_ = [x for k, l in lst if k == 'S' for x in l]
            X = [x for k, l in lst if k == 'X' for x in l]
            X0 = [x for k, l in lst if k == 'X0' for x in l]
            return F, Hs, S_, X, X0

        if cls == 0:
            bg[1].append(('X', addr))
            bg[2].append(('X', shared_out()))
            barslot, barpos = 3, cfg.barA
            ACC, TMP = O5, O5 + 16
            L5 = [vL + 5, vT + 7, vT + 8, vT + 9]
            vXR = vXS
            rd = lambda s_, dst: [It(f"ds_read_b128 v[{dst + 4 * j}:{dst + 4 * j + 3}], v{vXR} offset:{j * 4096 + s_ * 1024}", ds=('P', s_, j)) for j in range(4)]
            ad = lambda s_: [It(f"v_add_f32 v{ACC + k}, v{ACC + k}, v{TMP + k}", needs=([('P', s_, k // 4)] + ([('P', 0, 3)] if k == 0 else []))) for k in range(16)]
            pre = [It(f"s_lshl_b32 s{sT1}, s{sP}, 14"),
                   It(f"s_add_u32 s{sT1}, s{sT1}, {LDS_SP}"),
                   It(f"v_add_u32 v{vXR}, s{sT1}, v{vG16}"),
                   It(f"s_lshl_b32 s{sRowU[5]}, s{sP}, 7"),
                   It(f"s_add_u32 s{sRowU[5]}, s{sRowU[5]}, {320 * 256}")]
            lrd = [It(f"ds_read_b32 v{L5[ww]}, v{vG16} offset:{KX + ww * 1024}", ds=('L5', ww)) for ww in range(4)]
            bg[4].append(('X0', pre + rd(0, ACC) + rd(1, TMP) + lrd))
            bg[4].append(('X', ad(1)))
            bg[5].append(('X0', rd(2, TMP)))
            lsum = [It(f"v_add_f32 v{L5[0]}, v{L5[0]}, v{L5[1]}", needs=[('L5', 3)]),
                    It(f"v_add_f32 v{L5[2]}, v{L5[2]}, v{L5[3]}"),
                    It(f"v_add_f32 v{L5[0]}, v{L5[0]}, v{L5[2]}")]
            bg[5].append(('X', ad(2) + lsum))
            bg[6].append(('X0', rd(3, TMP)))
            bg[6].append(('X', self.lim_items(L5[0]) + [It(f"v_rcp_f32 v{L5[0]}, v{L5[0]}")] + ad(3)))
            bg[7].append(('X', self.H_items(ACC, L5[0], (5, 0), 0)))
            bg[8].append(('X', self.S_items(ACC, (5, 0), sRowU[5], 0)))
        else:
            bg[1].append(('X', addr))
            bg[3].append(('X0', shared_out()))
            barslot, barpos = 3, cfg.barB

        for n in range(M + 1):
            qk = None
            if n + 1 < M:
                u1, L1 = tl[n + 1]
                qk = (u1, (n + 1) % 3, L1)
            if n == 0:
                pb, pu = ubs[N - 1]
                pv = (pu, (N - 1) % 3, pb % 2)
            else:
                u0, L0 = tl[n - 1]
                pv = (u0, (n - 1) % 3, L0)
            sm = None
            if n < M:
                u, L = tl[n]
                sm = (u, n % 3, n % 3)
            need_qk = ['K1'] if (qk and tl[n + 1] == (a, 1)) else []
            need_pv = []
            if n >= 1 and tl[n - 1] == (a, 0):
                need_pv = ['V0']
            if n >= 1 and tl[n - 1] == (a, 1):
                need_pv = ['V1']
            F, Hs, S_, X, X0 = assemble(bg[n])
            head = self.weave(F, Hs) if F else Hs
            half = len(head) // 2
            lst = X0 + head[:half] + S_ + head[half:] + X
            lt = []
            pvf = False
            if n == 0:
                if cls == 0:
                    pvf = True
                    nm = 8 + (1 if pv[0] in self.ones else 0)
                    lt.append((nm, vl1[:8]))
                    lt.append((nm + 4, vl1[8:]))
                else:
                    nm = 16 + (1 if pv[0] in self.ones else 0)
                    lt.append((nm, vl1))
            if n == barslot and not (cfg.block and cls == 0):
                lt.append((barpos, bar))
            if qk is None:
                self.t_emit(["s_nop 1"])
            lo, hi = 0, None
            if any(k == 'F1' for k, l in bg[n]):
                lo = 4
            if cls == 1 and n == barslot:
                hi = 10
            if cfg.block and n >= 3 and not (cls == 1 and n == barslot):
                nm = (8 if qk else 0) + 8 + (1 if pv[0] in self.ones else 0)
                lt.append((0, X0))
                if n == barslot:
                    k = cfg.barA_blk
                    blk = S_ + head + X
                    lt.append((nm, blk[:k] + bar + blk[k:]))
                else:
                    lt.append((nm, S_ + head + X))
                lst = []
            self.t_slot(qk=qk, pv=pv, sm=sm, bg=lst, pv_first=pvf, need_qk=need_qk, need_pv=need_pv, bg_lo=lo, bg_hi=hi, late=lt)
            if cls == cfg.stamp_cls and n in (0, 2, 3, 4, 5, 6, 7, 8, 9, 10): self.stamp(f"T_s{n}")
        self.stamp(f"tpv_{cls}") if cls == cfg.stamp_cls else None
        h0, h1 = Hu(e, 0), Hu(e, 1)
        sd = Su(d, 1)
        self.t_emit(h0[:6] + sd + h0[6:] + h1 + Su(e, 0) + Su(e, 1))
        self.stamp(f"tst_{cls}") if cls == cfg.stamp_cls else None
        A("s_branch L_epi")

    def rowsum_reduce(self, reg, tmp):
        A = self.A
        A(f"v_mov_b32 v{tmp}, v{reg}")
        A("s_nop 1")
        A(f"v_permlane16_swap_b32 v{reg}, v{tmp}")
        A("s_nop 1")
        A(f"v_add_f32 v{reg}, v{reg}, v{tmp}")
        A(f"v_mov_b32 v{tmp}, v{reg}")
        A("s_nop 1")
        A(f"v_permlane32_swap_b32 v{reg}, v{tmp}")
        A("s_nop 1")
        A(f"v_add_f32 v{reg}, v{reg}, v{tmp}")

    def rowmax_reduce(self, reg, tmp):
        A = self.A
        A(f"v_mov_b32 v{tmp}, v{reg}")
        A("s_nop 1")
        A(f"v_permlane16_swap_b32 v{reg}, v{tmp}")
        A("s_nop 1")
        A(f"v_max_f32 v{reg}, v{reg}, v{tmp}")
        A(f"v_mov_b32 v{tmp}, v{reg}")
        A("s_nop 1")
        A(f"v_permlane32_swap_b32 v{reg}, v{tmp}")
        A("s_nop 1")
        A(f"v_max_f32 v{reg}, v{reg}, v{tmp}")

    def epilogue(self):
        A = self.A
        cfg = self.cfg
        KX, vX, vG16 = self.KX, self.vX, self.vG16
        t0 = vT + 4
        self.label("L_epi")
        A(f"v_cmp_nge_f32 vcc, v{self.vLmin}, s{sThrLo}")
        A(f"s_mov_b64 s[{sBad}:{sBad + 1}], vcc")
        A(f"v_cmp_nle_f32 vcc, v{self.vLmax}, s{sThrHi}")
        A(f"s_or_b64 s[{sBad}:{sBad + 1}], s[{sBad}:{sBad + 1}], vcc")
        if cfg.force_fallback:
            A(f"s_mov_b64 s[{sBad}:{sBad + 1}], -1")
        if cfg.fallback:
            A(f"s_cmp_lg_u64 s[{sBad}:{sBad + 1}], 0")
            A(f"s_cselect_b32 s{sT2}, 1, 0")
            A(f"v_mov_b32 v{t0}, s{sT2}")
            A(f"ds_write_b32 v{vX}, v{t0} offset:{KX + 4096}")
            A("s_waitcnt lgkmcnt(0)")
            A("s_barrier")
            for ww in range(4):
                A(f"ds_read_b32 v{t0 + 1 + ww}, v{vG16} offset:{KX + 4096 + ww * 1024}")
            A("s_waitcnt lgkmcnt(0)")
            A(f"v_or_b32 v{t0 + 1}, v{t0 + 1}, v{t0 + 2}")
            A(f"v_or3_b32 v{t0 + 1}, v{t0 + 1}, v{t0 + 3}, v{t0 + 4}")
            A(f"v_cmp_ne_u32 vcc, 0, v{t0 + 1}")
            A("s_nop 1")
            A("s_cmp_lg_u64 vcc, 0")
            A("s_cbranch_scc1 L_fallback")
        self.finish()

    def finish(self):
        A = self.A
        if self.cfg.stamps:
            A("s_waitcnt vmcnt(0)")
            A(f"s_memrealtime s[{sArg}:{sArg + 1}]")
            A(f"s_memtime s[{sArg + 2}:{sArg + 3}]")
            A("s_waitcnt lgkmcnt(0)")
            A(f"s_sub_u32 s{sArg + 2}, s{sArg + 2}, s{sStamp + 2}")
            A(f"s_sub_u32 s{sArg + 4}, s{sStamp + 4}, s{sStamp + 2}")
            A(f"s_sub_u32 s{sArg + 5}, s{sStamp + 6}, s{sStamp + 4}")
            A(f"v_mov_b32 v64, s{sStamp}")
            A(f"v_mov_b32 v65, s{sArg}")
            A(f"v_mov_b32 v66, s{sArg + 2}")
            A(f"v_mov_b32 v67, s{sArg + 4}")
            A(f"v_mov_b32 v68, s{sArg + 5}")
            A(f"v_mov_b32 v69, s{sWave}")
            A(f"v_mov_b32 v70, 0")
            A(f"v_mov_b32 v71, 0")
            for i in range(len(self.stamp_names)):
                A(f"s_sub_u32 s{sPS + 2 * i}, s{sPS + 2 * i}, s{sStamp + 2}")
                A(f"v_mov_b32 v{76 + i}, s{sPS + 2 * i}")
            for i in range(len(self.stamp_names), 24):
                A(f"v_mov_b32 v{76 + i}, 0")
            if self.cfg.iter_stamps:
                A(f"v_writelane_b32 v245, s{sPS + 32}, 0")
                A(f"v_subrev_u32 v245, s{sStamp + (0 if self.cfg.iter_rt else 2)}, v245")
                A(f"v_mbcnt_lo_u32_b32 v73, -1, 0")
                A(f"v_mbcnt_hi_u32_b32 v73, -1, v73")
                A(f"v_lshlrev_b32 v73, 2, v73")
                A(f"s_lshl_b32 s{sT1}, {self.wg}, 8")
                A(f"s_lshl_b32 s{sT2}, s{sWave}, 16")
                A(f"s_add_u32 s{sT1}, s{sT1}, s{sT2}")
                A(f"s_add_u32 s{sT1}, s{sT1}, 0x40000")
                A(f"buffer_store_dword v245, v73, s[{sW_}:{sW_ + 3}], s{sT1} offen")
            A(f"s_lshl_b32 s{sT1}, {self.wg}, 7")
            A(f"s_lshl_b32 s{sT2}, s{sWave}, 15")
            A(f"s_add_u32 s{sT1}, s{sT1}, s{sT2}")
            A(f"v_mov_b32 v72, s{sT1}")
            A(f"v_mbcnt_lo_u32_b32 v73, -1, 0")
            A(f"v_mbcnt_hi_u32_b32 v73, -1, v73")
            A(f"v_cmp_eq_u32 vcc, 0, v73")
            A(f"s_and_saveexec_b64 s[{sTmp64}:{sTmp64 + 1}], vcc")
            A(f"buffer_store_dwordx4 v[64:67], v72, s[{sW_}:{sW_ + 3}], 0 offen")
            A(f"buffer_store_dwordx4 v[68:71], v72, s[{sW_}:{sW_ + 3}], 0 offen offset:16")
            for i in range(6):
                A(f"buffer_store_dwordx4 v[{76 + 4 * i}:{79 + 4 * i}], v72, s[{sW_}:{sW_ + 3}], 0 offen offset:{32 + 16 * i}")
        A("s_branch L_end")

    def fallback(self):
        A = self.A
        lane = vT + 8
        vM = vS + 8
        self.label("L_fallback")
        A("s_waitcnt vmcnt(0) lgkmcnt(0)")
        A("s_barrier")
        for i in range(8):
            A(f"v_accvgpr_read_b32 v{vKA + i}, a{aStash + i}")
        A(f"v_mbcnt_lo_u32_b32 v{lane}, -1, 0")
        A(f"v_mbcnt_hi_u32_b32 v{lane}, -1, v{lane}")
        A(f"v_and_b32 v{vT}, 15, v{lane}")
        A(f"v_lshrrev_b32 v{vT + 1}, 4, v{lane}")
        A(f"v_lshlrev_b32 v{vT}, 8, v{vT}")
        A(f"v_lshl_add_u32 v{vT}, v{vT + 1}, 4, v{vT}")
        A(f"s_mul_i32 s{sT3}, s{sWave}, {80 * 256}")
        for u in range(6):
            if u < 5:
                A(f"s_add_u32 s{sSoff}, s{sT3}, {u * 4096}")
            else:
                A(f"s_mov_b32 s{sSoff}, {320 * 256}")
            for j in range(4):
                A(f"buffer_load_dwordx4 {self.vr(vO + 4 * j)}, v{vT}, s[{sQ}:{sQ + 3}], s{sSoff} offen offset:{j * 64}")
            A("s_waitcnt vmcnt(0)")
            f, b = self.qloc[u]
            self.q_scale(vO, b, 16, toacc=True)
        for u in range(6):
            A(f"v_mov_b32 v{vM + u}, 0xff800000")
        self.zero_acc()
        for ps in range(2):
            A(f"s_lshl_b32 s{sSlot}, s{sWave}, 10")
            A(f"s_mov_b32 s{sGoff}, 0")
            A(f"s_mov_b32 s{sLoop}, {NTILES}")
            self.label(f"L_fb{ps}")
            A("s_barrier")
            self.dma_tile_simple('K')
            if ps == 1:
                self.dma_tile_simple('V')
            A(f"s_add_u32 s{sGoff}, s{sGoff}, 16384")
            A("s_waitcnt vmcnt(0)")
            A("s_barrier")
            for L in range(2):
                for t in range(2):
                    for j in range(4):
                        A(self.k_read(0, L, 0, t, j))
                if ps == 1:
                    for dt in range(8):
                        for t in range(2):
                            A(self.v_read(0, L, 0, t, dt))
                A("s_waitcnt lgkmcnt(0)")
                for u in range(6):
                    for t in range(2):
                        for j in range(4):
                            A(self.qk_mfma(u, 0, 0, t, j))
                    A("s_nop 7")
                    A("s_nop 3")
                    if ps == 0:
                        for k in range(8):
                            A(f"v_max_f32 v{vM + u}, v{vM + u}, v{vS + k}")
                    else:
                        for k in range(8):
                            A(f"v_sub_f32 v{vS + k}, v{vS + k}, v{vM + u}")
                        for k in range(8):
                            A(f"v_exp_f32 v{vS + k}, v{vS + k}")
                        A("s_nop 0")
                        for k in range(8):
                            A(f"v_add_f32 v{vL + u}, v{vL + u}, v{vS + k}")
                        for k in range(4):
                            A(f"v_cvt_pk_bf16_f32 v{vP + k}, v{vS + 2 * k}, v{vS + 2 * k + 1}")
                        A("s_nop 1")
                        for dt in range(8):
                            A(self.pv_mfma(u, 0, 0, dt))
                    A("s_nop 3")
            A("s_waitcnt lgkmcnt(0)")
            A(f"s_sub_u32 s{sLoop}, s{sLoop}, 1")
            A(f"s_cmp_lg_u32 s{sLoop}, 0")
            A(f"s_cbranch_scc1 L_fb{ps}")
            if ps == 0:
                for u in range(6):
                    self.rowmax_reduce(vM + u, vT + 1)
        A("s_nop 7")
        A("s_nop 7")
        A("s_barrier")
        for u in range(6):
            self.rowsum_reduce(vL + u, vT + 1)
        self.t_emit(self.out_addr_items())
        A(f"s_mov_b32 s{self.sRowU[5]}, {320 * 256}")
        self.ds_issued, self.ds_done, self.ds_tag = 0, 0, {}
        for u in range(6):
            if u == 5:
                A(f"s_cmp_lg_u32 s{sWave}, 0")
                A("s_cbranch_scc1 L_fb_done")
            A(f"v_rcp_f32 v{vL + u}, v{vL + u}")
            A("s_nop 0")
            for h in range(2):
                base = vO + 32 * u + 16 * h
                self.t_emit(self.H_items(base, vL + u, ('fb', u, h), h))
                self.t_emit(self.S_items(base, ('fb', u, h), self.sRowU[u], h))
        self.label("L_fb_done")
        self.finish()

    def generate(self):
        A = self.A
        self.prologue()
        A(f"s_cmp_ge_u32 s{sWave}, 2")
        A("s_cbranch_scc1 L_cls1")
        self.main_loop(0)
        st0 = dict(self.stats)
        A("s_branch L_epi")
        self.label("L_cls1")
        self.main_loop(1)
        st1 = dict(self.stats)
        self.epilogue()
        if self.cfg.fallback:
            self.fallback()
        self.label("L_end")
        A("s_endpgm")
        hdr = open("standalone__gqa_softmax__near_ridge.s.ref").read().split("; Override")[0]
        txt = hdr
        txt += "; Override launch geometry by editing the next line.\n"
        txt += f"; @launch grid=(256,1,1) block=(256,1,1) lds={LDS_TOTAL}\n"
        txt += '.amdgcn_target "amdgcn-amd-amdhsa--gfx950"\n.text\n'
        txt += f".globl {NAME}\n.p2align 8\n.type {NAME},@function\n{NAME}:\n"
        for x in self.L:
            txt += (x if x.endswith(":") else "    " + x) + "\n"
        txt += '.section .rodata,"a"\n.p2align 6\n'
        txt += f""".amdhsa_kernel {NAME}
  .amdhsa_next_free_vgpr 512
  .amdhsa_next_free_sgpr 102
  .amdhsa_accum_offset 256
  .amdhsa_group_segment_fixed_size 0
  .amdhsa_kernarg_size 48
  .amdhsa_user_sgpr_count 2
  .amdhsa_user_sgpr_kernarg_segment_ptr 1
  .amdhsa_system_sgpr_workgroup_id_x 1
.end_amdhsa_kernel
"""
        return txt, st0, st1


if __name__ == "__main__":
    ap = argparse.ArgumentParser()
    ap.add_argument("-o", default="k.s")
    ap.add_argument("--stamps", action="store_true")
    ap.add_argument("--ones", default="0")
    ap.add_argument("--force-fallback", action="store_true")
    ap.add_argument("--set", action="append", default=[])
    ap.add_argument("--cfg", action="append", default=[], help="file holding a dict of settings")
    a = ap.parse_args()
    kw = dict(stamps=a.stamps, force_fallback=a.force_fallback,
              ones_units=tuple(int(x) for x in a.ones.split(",") if x != ""))
    for f in a.cfg:
        kw.update(eval(open(f).read()))
    for s in a.set:
        k, v = s.split("=", 1)
        kw[k] = eval(v)
    g = Gen(Cfg(**kw))
    txt, st0, st1 = g.generate()
    open(a.o, "w").write(txt)
    print("generated", a.o, st0, st1, "lines", txt.count("\n"), "stamps", g.stamp_names, file=sys.stderr)
```

```python
import sys, math, argparse

NAME = "standalone__gqa_softmax__near_ridge_kernel"
SQ, SK, D = 336, 2048, 128
NTILES = SK // 64
QBYTES = SQ * D * 2
KBYTES = SK * D * 2
LDS_K = 0
LDS_V = 65536
LDS_SP = 131072
LDS_TOTAL = 163840
CSCALE = math.log2(math.e) / math.sqrt(D)


def f32hex(x):
    import struct
    return "0x%08x" % struct.unpack("<I", struct.pack("<f", x))[0]


def slot_of(tile):
    return (tile + 3) % 4


class Cfg:
    def __init__(self, **kw):
        self.ones_units = (0,)
        self.stamps = False
        self.nt = True
        self.order = (1, 0, 2, 3, 4)
        self.shared_pos = 2
        self.fallback = True
        self.force_fallback = False
        self.bar_shift = 4
        self.coff = 40
        self.lo_thr = 2.0 ** -50
        self.hi_thr = 0.5
        self.st_nt = True
        self.st_mod = " nt"
        self.delta = 5
        self.qorder = (0, 1, 2, 3, 4)
        self.iter_stamps = False
        self.loop_stamps = None
        self.barg = None
        self.single_first = False
        self.rot = None
        self.x_sm = None
        self.sm = False
        self.dot2 = False
        self.code_pf = 0
        self.iter_rt = False
        self.headmap = None
        self.pf = 0
        self.jit = {}
        self.br_gap = None
        self.x_drop = ""
        self.bar_clear = True
        self.bar_wearly = 0
        self.spreadx = False
        self.bar_lgkm = True
        self.kearly = 0
        self.vearly = 0
        self.vlate = 0
        self.tail_stamps = False
        self.exp_noepi = False
        self.exp_noq = False
        self.pkmul = True
        self.block = True
        self.sched = {'i1': ['V0', 'Qb'], 'setup': ['Qc'], 'k0': [], 'qa': ['Qd'], 'v0': [], 'qb': ['Qe'], 'qc': ['K1'],
                      'qd': ['V1'], 'qe': ['K2'], 'end0': ['V2'], 'end1': ['K3']}
        self.barA_blk = 99
        self.stamp_cls = 0
        self.w2 = True
        self.x_nochk = False
        self.x_nostore = False
        self.x_nomul = False
        self.x_nods = False
        self.barA = 8
        self.barB = 16
        for k, v in kw.items():
            assert hasattr(self, k), k
            setattr(self, k, v)


sQ, sK, sV, sO, sW_ = 8, 12, 16, 20, 24
sWave = 28
sLoop = 29
sGoff = 30
sSlot = 31
sT0, sT1, sT2, sT3 = 32, 33, 34, 35
sArg = 36
sBad = 44
sTmp64 = 46
sSoff = 48
sStamp = 50
sP = 58
sDead = 59
sC = 60
sThrLo, sThrHi = 62, 63
sMask = 64
sPass = 65
sPS = 66
sHi = 42

vO = 0
vS = 192
vP = 216
vKA = 228
vVA = 230
vDK = 234
vDV = 235
vL = 236
vT = 242
vC = 252

aKF = 0
aVF = 64
aQ = 128
aL = 224
aOnes = 236
aStash = 240
aAddr = 248
aSP = 252
vIDX = 243
vDab, vDcd = 244, 248


class It:
    def __init__(self, txt, ds=None, needs=()):
        self.txt, self.ds, self.needs = txt, ds, list(needs)


class Gen:
    def __init__(self, cfg):
        self.cfg = cfg
        self.L = []
        self.uid = 0
        self.stamp_names = []
        ones = list(cfg.ones_units) + [5]
        self.ones = ones
        assert len(ones) <= 3
        self.aLidx = {u: aL + 4 * i for i, u in enumerate(ones)}
        self.qloc = {u: ('a', aQ + 16 * u) for u in range(6)}
        self.in_fb = False
        self.vst = 242 if cfg.sm else 245
        self.vm = []

    def A(self, s):
        self.L.append(s)

    def label(self, s):
        self.L.append(s + ":")

    def q(self, u, j):
        f, b = self.qloc[u]
        return f"{f}[{b + 4 * j}:{b + 4 * j + 3}]"

    @staticmethod
    def vr(b, n=4):
        return f"v[{b}:{b + n - 1}]"

    @staticmethod
    def ar(b, n=4):
        return f"a[{b}:{b + n - 1}]"

    def stamp(self, name):
        if not self.cfg.stamps:
            return
        if self.cfg.loop_stamps:
            return
        if self.cfg.tail_stamps != name.startswith("T_") and not name.startswith("t"):
            return
        i = len(self.stamp_names)
        assert i < 17
        self.stamp_names.append(name)
        self.A(f"s_memtime s[{sPS + 2 * i}:{sPS + 2 * i + 1}]")

    def qk_mfma(self, u, sbuf, kbuf, t, j):
        d = vS + 8 * sbuf + 4 * t
        a = aKF + 32 * kbuf + 16 * t + 4 * j
        c = self.vr(vC) if j == 0 else self.vr(d)
        return f"v_mfma_f32_16x16x32_bf16 {self.vr(d)}, {self.ar(a)}, {self.q(u, j)}, {c}"

    def pv_mfma(self, u, pbuf, vbuf, dt, first=False):
        d = vO + 32 * u + 4 * dt
        a = aVF + 32 * vbuf + 4 * dt
        b = vP + 4 * pbuf
        c = "0" if first else self.vr(d)
        return f"v_mfma_f32_16x16x32_bf16 {self.vr(d)}, {self.ar(a)}, {self.vr(b)}, {c}"

    def ones_mfma(self, u, pbuf):
        d = self.aLidx[u]
        b = vP + 4 * pbuf
        return f"v_mfma_f32_16x16x32_bf16 {self.ar(d)}, {self.ar(aOnes)}, {self.vr(b)}, {self.ar(d)}"

    def k_read(self, kbuf, L, slotpar, t, j):
        d = aKF + 32 * kbuf + 16 * t + 4 * j
        off = slotpar * 16384 + t * 4096 + (j // 2) * 2048 + (j % 2) * 512
        return f"ds_read_b128 {self.ar(d)}, v{vKA + L} offset:{off}"

    def v_read(self, vbuf, L, slotpar, t, dt):
        d = aVF + 32 * vbuf + 4 * dt + 2 * t
        off = slotpar * 16384 + t * 4096 + (dt // 2) * 512
        return f"ds_read_b64_tr_b16 {self.ar(d, 2)}, v{vVA + 2 * L + (dt % 2)} offset:{off}"

    def dma(self, which):
        nt = " nt" if self.cfg.nt else ""
        if which == 'K':
            return f"buffer_load_dwordx4 v{vDK}, s[{sK}:{sK + 3}], s{sSoff} offen{nt} lds"
        return f"buffer_load_dwordx4 v{vDV}, s[{sV}:{sV + 3}], s{sSoff} offen{nt} lds"

    def dma_tile_simple(self, which):
        base = LDS_K if which == 'K' else LDS_V
        for m in range(4):
            self.A(f"s_add_u32 m0, s{sSlot}, {base + m * 4096}")
            self.A(f"s_add_u32 s{sSoff}, s{sGoff}, {m * 4096}")
            self.A(self.dma(which))

    def advance_tile(self):
        o = [f"s_add_u32 s{sGoff}, s{sGoff}, 16384",
             f"s_add_u32 s{sSlot}, s{sSlot}, 16384",
             f"s_and_b32 s{sSlot}, s{sSlot}, 0xffff"]
        if self.cfg.pf:
            o[2] = [o[2], f"s_cmp_ge_u32 s{sGoff}, {KBYTES}", f"s_cselect_b32 s{sSlot}, s{sDead}, s{sSlot}"]
        if self.cfg.rot:
            assert not self.cfg.pf
            o = [o[0], [f"s_and_b32 s{sGoff}, s{sGoff}, {KBYTES - 1}", o[1]],
                 [f"s_cmp_eq_u32 s{sLoop}, 1", f"s_cselect_b32 s{sGoff}, {KBYTES}, s{sGoff}", o[2]]]
        return o

    def sm_items(self, u, sbuf, pbuf):
        sb = vS + 8 * sbuf
        pb = vP + 4 * pbuf
        E = [f"v_exp_f32 v{sb + k}, v{sb + k}" for k in range(8)]
        C = {k: f"v_cvt_pk_bf16_f32 v{pb + k // 2}, v{sb + k - 1}, v{sb + k}" for k in (1, 3, 5, 7)}
        Ad = {k: f"v_add_f32 v{vL + u}, v{vL + u}, v{sb + k}" for k in range(8)} if u not in self.ones else {}
        return E, C, Ad

    def emit_slot(self, qk=None, pv=None, sm=None, mem=()):
        A = self.A
        mf = []
        if qk:
            u, sbuf, kbuf = qk
            mf += [self.qk_mfma(u, sbuf, kbuf, t, j) for t in range(2) for j in range(4)]
        if pv:
            u, pbuf, vbuf = pv[:3]
            first = len(pv) > 3 and pv[3]
            mf += [self.pv_mfma(u, pbuf, vbuf, dt, first) for dt in range(8)]
            if u in self.ones:
                mf.append(self.ones_mfma(u, pbuf))
        fill = [[] for _ in range(len(mf) + 1)]
        if sm:
            E, C, Ad = self.sm_items(*sm)
            if len(mf) >= 16:
                for k in range(8):
                    fill[2 * k].append(E[k])
                    if k in C:
                        fill[2 * k + 1].append(C[k])
                    if k in Ad:
                        fill[2 * k + 1].append(Ad[k])
            else:
                assert len(mf) >= 8
                for k in range(8):
                    fill[k].append(E[k])
                    nx = k + 1 if k + 1 < 8 else len(mf)
                    if k in C:
                        fill[nx].append(C[k])
                    if k in Ad:
                        fill[nx].append(Ad[k])
                if len(mf) == 8:
                    fill[8].insert(0, "s_nop 0")
        mem = list(mem)
        n = len(mf)
        memat = [[] for _ in range(n + 1)]
        for i, m in enumerate(mem):
            memat[min(n - 1, (i * n) // max(len(mem), 1))].append(m)
        for i, m in enumerate(mf):
            A(m)
            for x in memat[i]:
                A(x)
            for x in fill[i]:
                A(x)
        for x in fill[n]:
            A(x)

    def vm_issue(self, tag):
        self.vm.append(tag)

    def vm_wait(self, tag, extra=""):
        last = max(i for i, t in enumerate(self.vm) if t == tag)
        n = len(self.vm) - 1 - last
        self.A(f"s_waitcnt vmcnt({n}){extra}")

    def q_scale(self, src, dst, n, toacc=False):
        A = self.A
        tmp = vS
        for r0 in range(0, n, 4):
            for r in range(4):
                A(f"v_lshlrev_b32 v{tmp + 2 * r}, 16, v{src + r0 + r}")
                A(f"v_and_b32 v{tmp + 2 * r + 1}, s{sMask}, v{src + r0 + r}")
            for r in range(4):
                A(f"v_pk_mul_f32 v[{tmp + 2 * r}:{tmp + 2 * r + 1}], v[{tmp + 2 * r}:{tmp + 2 * r + 1}], s[{sC}:{sC + 1}]")
            for r in range(4):
                d = src if toacc else dst
                A(f"v_cvt_pk_bf16_f32 v{d + r0 + r}, v{tmp + 2 * r}, v{tmp + 2 * r + 1}")
            if toacc:
                for r in range(4):
                    A(f"v_accvgpr_write_b32 a{dst + r0 + r}, v{src + r0 + r}")

    def prologue(self):
        A = self.A
        cfg = self.cfg
        nt = " nt" if cfg.nt else ""
        A("s_cmp_ge_u32 s2, 256")
        A("s_cbranch_scc1 L_end")
        self.wg = "s2"
        if cfg.headmap:
            A("s_mov_b32 s3, s2")
            self.wg = "s3"
            for x in cfg.headmap:
                A(x)
        A(f"s_load_dwordx8 s[{sArg}:{sArg + 7}], s[0:1], 0")
        if cfg.rot:
            for x in cfg.rot:
                A(x)
            A("s_and_b32 s6, s6, 31")
            A("s_lshl_b32 s6, s6, 14")
        if cfg.stamps:
            A(f"s_load_dwordx2 s[{sW_}:{sW_ + 1}], s[0:1], 40")
            A(f"s_memrealtime s[{sStamp}:{sStamp + 1}]")
            A(f"s_memtime s[{sStamp + 2}:{sStamp + 3}]")
        t0, t1, t2, t3, t4 = vT, vT + 1, vT + 2, vT + 3, vT + 4
        lane = vT + 8
        if cfg.code_pf:
            A("s_getpc_b64 s[4:5]")
            self.label("L_pc0")
            A(f"s_sub_u32 s4, s4, L_pc0-{NAME}")
            A("s_subb_u32 s5, s5, 0")
            A(f"v_lshlrev_b32 v{vS}, 7, v0")
            A(f"v_mov_b32 v{vS + 1}, s5")
            A(f"v_add_co_u32 v{vS}, vcc, s4, v{vS}")
            A(f"v_addc_co_u32 v{vS + 1}, vcc, 0, v{vS + 1}, vcc")
            A(f"global_load_dword v100, v[{vS}:{vS + 1}], off")
            self.vm_issue("CP")
        for i in range(4):
            A(f"v_mov_b32 v{vP + i}, 0")
        zlist = [f"v_mfma_f32_32x32x16_bf16 v[{vO + 160 + 16 * i}:{vO + 175 + 16 * i}], v[{vP}:{vP + 3}], v[{vP}:{vP + 3}], 0"
                 for i in range(2)]
        zlist.append(f"v_mfma_f32_32x32x16_bf16 a[{aL}:{aL + 15}], v[{vP}:{vP + 3}], v[{vP}:{vP + 3}], 0")
        pre = []
        P = pre.append
        P(f"v_and_b32 v{lane}, 63, v0")
        P(f"v_lshrrev_b32 v{t0}, 6, v0")
        P(f"v_lshrrev_b32 v{t1}, 5, v{lane}")
        P(f"v_readfirstlane_b32 s{sWave}, v{t0}")
        P(f"v_lshlrev_b32 v{t0}, 6, v{t1}")
        P(f"v_bfe_u32 v{t1}, v{lane}, 2, 3")
        P(f"v_and_b32 v{t2}, 3, v{lane}")
        P(f"v_lshl_add_u32 v{t0}, v{t1}, 8, v{t0}")
        P(f"v_lshrrev_b32 v{t3}, 2, v{t1}")
        for rh in range(2):
            P(f"v_add_u32 v{t4}, {2 * rh}, v{t3}")
            P(f"v_sub_u32 v{t4}, 0, v{t4}")
            P(f"v_and_b32 v{t4}, 3, v{t4}")
            P(f"v_xor_b32 v{t4}, v{t4}, v{t2}")
            P(f"v_lshl_add_u32 v{t4}, v{t4}, 4, v{t0}")
            P(f"v_add_u32 v{vT + 6 + rh}, {rh * 2048}, v{t4}")
        P(f"s_and_b32 s{sP}, s{sWave}, 1")
        P(f"s_lshr_b32 s{sT0}, s{sWave}, 1")
        P(f"s_cmp_eq_u32 s{sP}, 0")
        P(f"s_cselect_b64 s[{sTmp64}:{sTmp64 + 1}], -1, 0")
        P(f"v_cndmask_b32 v{t3}, v{vT + 7}, v{vT + 6}, s[{sTmp64}:{sTmp64 + 1}]")
        P(f"s_lshl_b32 s{sT1}, s{sT0}, 7")
        P(f"v_add_u32 v{vDK}, s{sT1}, v{t3}")
        P(f"s_lshl_b32 s{sSlot}, s{sWave}, 10")
        P(f"s_mul_i32 s{sT1}, s2, {QBYTES}")
        P(f"s_lshl_b32 s{sT2}, s2, 19")
        zi = 0
        for i, x in enumerate(pre):
            A(x)
            if i % 3 == 2 and zi < len(zlist):
                A(zlist[zi]); zi += 1
        while zi < len(zlist):
            A(zlist[zi]); zi += 1

        def srd(reg, arg, off, size):
            A(f"s_add_u32 s{reg}, s{arg}, s{off}")
            A(f"s_addc_u32 s{reg + 1}, s{arg + 1}, 0")
            A(f"s_and_b32 s{reg + 1}, s{reg + 1}, 0xffff")
            A(f"s_mov_b32 s{reg + 2}, {size}")
            A(f"s_mov_b32 s{reg + 3}, 0x20000")

        def kv_group(which, tile):
            base = LDS_K if which == 'K' else LDS_V
            if cfg.rot and tile:
                A(f"s_add_u32 s7, s6, {tile * 16384}")
                A(f"s_and_b32 s7, s7, {KBYTES - 1}")
            for m in range(4):
                A(f"s_add_u32 m0, s{sSlot}, {base + slot_of(tile) * 16384 + m * 4096}")
                if cfg.rot:
                    A(f"s_add_u32 s{sSoff}, s{7 if tile else 6}, {m * 4096}")
                else:
                    A(f"s_mov_b32 s{sSoff}, {tile * 16384 + m * 4096}")
                A(self.dma(which))
                self.vm_issue(f"{which}{tile}")
        sW13, sW12, sRow = sT0, sT3, sPass
        B2 = LDS_K + slot_of(3) * 16384
        PC = LDS_V + slot_of(3) * 16384
        qorder = cfg.qorder
        stage = {qorder[0]: (sW13, LDS_SP), qorder[1]: (sW13, LDS_SP + 4096), qorder[2]: (sW12, B2),
                 qorder[3]: (sW13, LDS_SP), qorder[4]: (sW13, LDS_SP + 4096)}

        def q_dma(u):
            sreg, base = stage[u]
            for jp in range(2):
                for rh in range(2):
                    A(f"s_add_u32 m0, s{sreg}, {base + jp * 2048 + rh * 1024}")
                    A(f"s_add_u32 s{sSoff}, s{sRow}, {u * 4096 + jp * 128}")
                    A(f"buffer_load_dwordx4 v{vT + 6 + rh}, s[{sQ}:{sQ + 3}], s{sSoff} offen{nt} lds")
                    self.vm_issue(f"Q{u}")
        def issue(ev):
            for g in cfg.sched.get(ev, []):
                if g[0] == 'Q':
                    q_dma(qorder["abcde".index(g[1])])
                else:
                    kv_group(g[0], int(g[1]))
        A("s_waitcnt lgkmcnt(0)")
        self.stamp("karg")
        srd(sK, sArg + 2, sT2, KBYTES)
        kv_group('K', 0)
        srd(sQ, sArg, sT1, QBYTES)
        A(f"s_lshl_b32 s{sW13}, s{sWave}, 13")
        A(f"s_lshl_b32 s{sW12}, s{sWave}, 12")
        A(f"s_mul_i32 s{sRow}, s{sWave}, {80 * 256}")
        q_dma(qorder[0])
        A(f"s_add_u32 m0, s{sSlot}, {PC}")
        A(f"s_lshr_b32 s{sSoff}, s{sWave}, 1")
        A(f"s_lshl_b32 s{sSoff}, s{sSoff}, 7")
        A(f"s_add_u32 s{sSoff}, s{sSoff}, {320 * 256}")
        A(f"buffer_load_dwordx4 v{t3}, s[{sQ}:{sQ + 3}], s{sSoff} offen{nt} lds")
        self.vm_issue("QP")
        self.stamp("iss9")
        srd(sV, sArg + 4, sT2, KBYTES)
        A(f"v_bfe_u32 v{t0}, v{lane}, 4, 1")
        A(f"v_bfe_u32 v{t1}, v{lane}, 2, 2")
        A(f"v_lshl_add_u32 v{t1}, v{t0}, 2, v{t1}")
        A(f"v_bfe_u32 v{t2}, v{lane}, 1, 1")
        A(f"v_xor_b32 v{t2}, v{t2}, v{t0}")
        A(f"v_and_b32 v{t3}, 1, v{lane}")
        A(f"v_lshl_add_u32 v{t2}, v{t2}, 1, v{t3}")
        A(f"v_lshrrev_b32 v{t3}, 5, v{lane}")
        A(f"v_lshl_add_u32 v{t2}, v{t3}, 2, v{t2}")
        A(f"v_lshlrev_b32 v{t2}, 4, v{t2}")
        A(f"v_lshl_add_u32 v{vDV}, v{t1}, 8, v{t2}")
        A(f"s_lshr_b32 s{sTmp64}, s{sWave}, 1")
        A(f"s_lshl_b32 s{sTmp64}, s{sTmp64}, 11")
        A(f"s_lshl_b32 s{sTmp64 + 1}, s{sP}, 7")
        A(f"s_add_u32 s{sTmp64}, s{sTmp64}, s{sTmp64 + 1}")
        A(f"v_add_u32 v{vDV}, s{sTmp64}, v{vDV}")
        issue('i1')
        self.stamp("iss17")
        srd(sO, sArg + 6, sT1, QBYTES)
        if cfg.stamps:
            A(f"s_and_b32 s{sW_ + 1}, s{sW_ + 1}, 0xffff")
            A(f"s_mov_b32 s{sW_ + 2}, 0x100000")
            A(f"s_mov_b32 s{sW_ + 3}, 0x20000")
        qa01, k5addr, plin, qa2 = vT + 4, vT + 5, vT + 8, vT + 9
        kaddr = vP + 4
        A(f"v_and_b32 v{t0}, 15, v{lane}")
        A(f"v_lshrrev_b32 v{t1}, 4, v{lane}")
        A(f"v_lshrrev_b32 v{t2}, 2, v{t0}")
        A(f"v_sub_u32 v{t2}, 0, v{t2}")
        A(f"v_and_b32 v{t2}, 3, v{t2}")
        A(f"v_xor_b32 v{t2}, v{t2}, v{t1}")
        A(f"v_lshlrev_b32 v{t2}, 4, v{t2}")
        A(f"v_and_b32 v{t3}, 7, v{t0}")
        A(f"v_lshl_add_u32 v{t2}, v{t3}, 6, v{t2}")
        A(f"v_lshrrev_b32 v{t3}, 3, v{t0}")
        A(f"v_lshl_add_u32 v{kaddr}, v{t3}, 10, v{t2}")
        sA, sB = sTmp64, sTmp64 + 1
        A(f"s_lshl_b32 s{sA}, s{sP}, 13")
        A(f"s_xor_b32 s{sB}, s{sA}, 8192")
        A(f"v_add_u32 v{vKA}, s{sA}, v{kaddr}")
        A(f"v_add_u32 v{vKA + 1}, s{sB}, v{kaddr}")
        A(f"v_add_u32 v{k5addr}, {PC}, v{kaddr}")
        A(f"v_add_u32 v{qa01}, s{sW13}, v{kaddr}")
        A(f"v_add_u32 v{qa01}, {LDS_SP}, v{qa01}")
        A(f"v_add_u32 v{qa2}, s{sW12}, v{kaddr}")
        A(f"v_add_u32 v{qa2}, {B2}, v{qa2}")
        A(f"v_lshrrev_b32 v{t2}, 1, v{t1}")
        A(f"v_lshlrev_b32 v{t2}, 11, v{t2}")
        A(f"v_and_b32 v{t3}, 1, v{t1}")
        A(f"v_lshl_add_u32 v{t2}, v{t3}, 8, v{t2}")
        A(f"v_lshrrev_b32 v{kaddr}, 2, v{t0}")
        A(f"v_lshl_add_u32 v{t2}, v{kaddr}, 6, v{t2}")
        A(f"v_and_b32 v{kaddr}, 3, v{t0}")
        A(f"v_lshl_add_u32 v{t2}, v{kaddr}, 3, v{t2}")
        A(f"v_add_u32 v{t2}, {LDS_V}, v{t2}")
        for pi in range(2):
            A(f"v_xor_b32 v{kaddr}, {pi}, v{t3}")
            A(f"v_lshl_add_u32 v{kaddr}, v{kaddr}, 5, v{t2}")
            A(f"v_add_u32 v{vVA + pi}, s{sA}, v{kaddr}")
            A(f"v_add_u32 v{vVA + 2 + pi}, s{sB}, v{kaddr}")
        A(f"v_lshlrev_b32 v{plin}, 4, v{lane}")
        A(f"v_add_u32 v{plin}, s{sSlot}, v{plin}")
        A(f"v_add_u32 v{plin}, {PC}, v{plin}")
        A(f"s_mov_b32 s{sC}, {f32hex(CSCALE)}")
        A(f"s_mov_b32 s{sC + 1}, {f32hex(CSCALE)}")
        A(f"s_mov_b32 s{sMask}, 0xffff0000")
        A(f"s_mov_b32 s{sThrLo}, {f32hex(cfg.lo_thr)}")
        A(f"s_mov_b32 s{sThrHi}, {f32hex(cfg.hi_thr)}")
        for i in range(4):
            A(f"v_mov_b32 v{vT + 10}, 0x3f803f80") if i == 0 else None
            A(f"v_accvgpr_write_b32 a{aOnes + i}, v{vT + 10}")
        if cfg.sm:
            ln, x0, x1 = vS, vS + 1, vS + 2
            A(f"v_mbcnt_lo_u32_b32 v{ln}, -1, 0")
            A(f"v_mbcnt_hi_u32_b32 v{ln}, -1, v{ln}")
            A(f"v_bfe_u32 v{x0}, v{ln}, 1, 1")
            A(f"v_lshrrev_b32 v{x1}, 5, v{ln}")
            A(f"v_cmp_eq_u32 vcc, v{x0}, v{x1}")
            A(f"v_and_b32 v{x1}, 1, v{ln}")
            A(f"v_mul_u32_u24 v{vIDX}, 0xaaaa, v{x1}")
            A(f"v_cndmask_b32 v{x0}, 0, v{vT + 10}, vcc")
            A(f"v_add_u32 v{vIDX}, 0x4444, v{vIDX}")
            for i in range(4):
                A(f"v_accvgpr_write_b32 a{aSP + i}, v{x0}")
        for i in range(6):
            A(f"v_mov_b32 v{vL + i}, 0")
        for i in range(4):
            A(f"v_mov_b32 v{vC + i}, {f32hex(-float(cfg.coff))}")
        for i in range(8):
            A(f"v_accvgpr_write_b32 a{aStash + i}, v{vKA + i}")
        self.out_addr_setup()
        self.stamp("setup")
        issue('setup')
        S0 = slot_of(0)

        def kr(L, t, j):
            d = aKF + 32 * L + 16 * t + 4 * j
            return f"ds_read_b128 {self.ar(d)}, v{vKA + L} offset:{S0 * 16384 + t * 4096 + (j // 2) * 2048 + (j % 2) * 512}"

        def vrd(L, t, dt):
            d = aVF + 32 * L + 4 * dt + 2 * t
            return f"ds_read_b64_tr_b16 {self.ar(d, 2)}, v{vVA + 2 * L + (dt % 2)} offset:{S0 * 16384 + t * 4096 + (dt // 2) * 512}"
        self.vm_wait("K0")
        A("s_barrier")
        self.stamp("k0_bar")
        issue('k0')
        for L in range(2):
            for t in range(2):
                for j in range(4):
                    A(kr(L, t, j))

        def q_fetch(u, tq):
            sreg, base = stage[u]
            if base >= LDS_SP:
                reg, off = qa01, base - LDS_SP
            else:
                reg, off = qa2, 0
            for j in range(4):
                A(f"ds_read_b128 {self.vr(tq + 4 * j)}, v{reg} offset:{off + (j // 2) * 2048 + (j % 2) * 512}")
            A("s_waitcnt lgkmcnt(0)")

        def q_ready(u, after_read):
            f, b = self.qloc[u]
            tq = vO + 32 * u
            self.vm_wait(f"Q{u}")
            q_fetch(u, tq)
            after_read()
            self.q_scale(tq, b, 16, toacc=True)
            A("s_nop 1")
        a, b_, c, d_, e = qorder
        q_ready(a, lambda: issue('qa'))
        self.stamp("qa_done")
        self.emit_slot(qk=(a, 1, 0))
        A("s_nop 2")
        self.emit_slot(qk=(a, 2, 1), sm=(a, 1, 1))
        E, C, Ad = self.sm_items(a, 2, 2)
        for k in range(8):
            A(E[k])
            if k >= 1 and (k - 1) in C:
                A(C[k - 1])
            if k >= 1 and (k - 1) in Ad:
                A(Ad[k - 1])
        A("s_nop 0")
        A(C[7])
        if 7 in Ad:
            A(Ad[7])
        self.vm_wait("QP")
        A(f"ds_read_b128 {self.vr(vP)}, v{plin}")
        A("s_waitcnt lgkmcnt(0)")
        self.q_scale(vP, vP, 4)
        A(f"ds_write_b128 v{plin}, {self.vr(vP)}")
        self.vm_wait("V0", " lgkmcnt(0)")
        A("s_barrier")
        self.stamp("v0_bar")
        issue('v0')
        for L in range(2):
            for dt in range(8):
                for t in range(2):
                    A(vrd(L, t, dt))
            if L == 0:
                for j in range(4):
                    A(f"ds_read_b128 {self.q(5, j)}, v{k5addr} offset:{(j // 2) * 2048 + (j % 2) * 512}")
        A("s_waitcnt lgkmcnt(15)")
        self.emit_slot(pv=(a, 1, 0, True))
        A("s_waitcnt lgkmcnt(0)")
        self.emit_slot(pv=(a, 2, 1))
        A(f"s_cmp_ge_u32 s{sWave}, 2")
        A("s_cbranch_scc1 L_noshared0")
        self.emit_slot(qk=(5, 1, 0))
        E, C, Ad = self.sm_items(5, 1, 1)
        A("s_nop 7")
        for k in range(8):
            A(E[k])
            if k >= 1 and (k - 1) in C:
                A(C[k - 1])
        A("s_nop 0")
        A(C[7])
        A("s_nop 1")
        self.emit_slot(pv=(5, 1, 0))
        self.label("L_noshared0")
        self.stamp("a_done")

        def burst(u, last=False):
            self.emit_slot(qk=(u, 1, 0))
            A("s_nop 2")
            self.emit_slot(qk=(u, 2, 1), sm=(u, 1, 1))
            A("s_nop 1")
            self.emit_slot(pv=(u, 1, 0, True), sm=(u, 2, self.pbufs(0)[-1] if last else 2))
            if not last:
                A("s_nop 1")
                self.emit_slot(pv=(u, 2, 1))
        q_ready(b_, lambda: issue('qb'))
        burst(b_)
        q_ready(c, lambda: issue('qc'))
        burst(c)
        self.stamp("c_done")
        q_ready(d_, lambda: issue('qd'))
        burst(d_)
        q_ready(e, lambda: issue('qe'))
        burst(e, last=True)
        self.stamp("e_done")
        issue('end0')
        if cfg.sm:
            assert self.pbufs(0)[-1] == self.pbufs(1)[-1] == 0
            for i in range(4):
                A(f"v_mov_b32 v{vDab + i}, 0")
                A(f"v_mov_b32 v{vDcd + i}, 0")
        self.vm_wait("V1", " lgkmcnt(0)")
        A("s_barrier")
        self.stamp("bar0")
        for t in range(2):
            for j in range(4):
                A(self.k_read(0, 0, 0, t, j))
        for dt in range(8):
            for t in range(2):
                A(self.v_read(0, 0, 0, t, dt))
        issue('end1')
        nt_ = 3 + cfg.pf
        if cfg.pf:
            issue('end2')
            A(f"s_add_u32 s{sDead}, s{sSlot}, {3 * 16384}")
        if cfg.rot:
            A(f"s_add_u32 s{sGoff}, s6, {nt_ * 16384}")
            A(f"s_and_b32 s{sGoff}, s{sGoff}, {KBYTES - 1}")
        else:
            A(f"s_mov_b32 s{sGoff}, {nt_ * 16384}")
        A(f"s_add_u32 s{sSlot}, s{sSlot}, {slot_of(nt_) * 16384}")
        A("s_waitcnt lgkmcnt(15)")

    def zero_acc(self):
        for i in range(192):
            self.A(f"v_mov_b32 v{vO + i}, 0")
        for i in range(6):
            self.A(f"v_mov_b32 v{vL + i}, 0")

    def ub_list(self, cls):
        cfg = self.cfg
        out = []
        shared_beta = 2 if cls == 0 else 0
        for beta in range(4):
            units = list(cfg.order)
            if beta == shared_beta:
                units.insert(cfg.shared_pos, 5)
            for u in units:
                out.append((beta, u))
        return out

    def pbufs(self, cls):
        ubs = self.ub_list(cls)
        if not self.cfg.sm:
            return [n % 3 for n in range(len(ubs))]
        a, b, c, d, e = self.cfg.order
        out = []
        for beta in range(4):
            units = [u for (bb, u) in ubs if bb == beta]
            if 5 in units:
                assert units == [a, b, 5, c, d, e], units
                out += [1, 0, 2, 1, 0, 2]
            else:
                out += [1, 0, 2, 1, 0]
        n = len(out)
        assert all(out[i] != out[(i + 1) % n] for i in range(n))
        return out

    def sm_mfma(self, acc, lo):
        return f"v_smfmac_f32_16x16x64_bf16 v[{acc}:{acc + 3}], {self.ar(aSP)}, v[{vP + 4 * lo}:{vP + 4 * lo + 7}], v{vIDX}"

    def build_loop(self, cls):
        cfg = self.cfg
        ubs = self.ub_list(cls)
        PB = self.pbufs(cls)
        N = len(ubs)
        assert N % 3 == 0
        gaps = []
        slot_first = []
        later = []
        for n in range(N):
            nb, nu = ubs[(n + 1) % N]
            cb, cu = ubs[n]
            pb, pu = ubs[(n - 1) % N]
            mf = []
            for t in range(2):
                for j in range(4):
                    mf.append(self.qk_mfma(nu, (n + 1) % 3, nb % 2, t, j))
            for dt in range(8):
                mf.append(self.pv_mfma(pu, PB[(n - 1) % N], pb % 2, dt))
            if cfg.sm:
                ua, ub_, uc, ud, ue = cfg.order
                if pu == 5:
                    mf.append(self.ones_mfma(5, PB[(n - 1) % N]))
                elif pu in (ub_, ud):
                    up, lo_b = PB[(n - 2) % N], PB[(n - 1) % N]
                    assert up == lo_b + 1 and PB[n] not in (up, lo_b) and ubs[(n - 2) % N][1] == (ua if pu == ub_ else uc)
                    mf.append(self.sm_mfma(vDab if pu == ub_ else vDcd, lo_b))
            elif cfg.x_sm and pu in cfg.x_sm[1]:
                lo_b = vP + 4 * min((n - 2) % 3, (n - 1) % 3) if abs((n - 2) % 3 - (n - 1) % 3) == 1 else vP
                acc = aL + 4 * (cfg.x_sm[1].index(pu))
                mf.append(f"v_smfmac_f32_16x16x64_bf16 a[{acc}:{acc + 3}], {self.ar(aOnes)}, v[{lo_b}:{lo_b + 7}], v{vT + 9}")
            elif cfg.x_sm and pu in cfg.x_sm[0]:
                pass
            elif pu in self.ones:
                mf.append(self.ones_mfma(pu, (n - 1) % 3))
            slot_first.append(len(gaps))
            sb = vS + 8 * (n % 3)
            pbuf = vP + 4 * PB[n]
            adds = cu not in self.ones
            if cfg.sm:
                adds = (cu == cfg.order[4])
            if cfg.x_sm and (cu in cfg.x_sm[0] or cu in cfg.x_sm[1]):
                adds = False
            for i, m in enumerate(mf):
                g = dict(mfma=m, shadow=[], mem=[], valu=[], slot=n, pos=i, pre=[])
                if i < 16:
                    k = i // 2
                    if i % 2 == 0:
                        g['valu'].append(('E', f"v_exp_f32 v{sb + k}, v{sb + k}"))
                    else:
                        if k % 2 == 1:
                            g['valu'].append(('C', f"v_cvt_pk_bf16_f32 v{pbuf + k // 2}, v{sb + k - 1}, v{sb + k}"))
                        if adds and not cfg.dot2:
                            g['valu'].append(('A', f"v_add_f32 v{vL + cu}, v{vL + cu}, v{sb + k}"))
                        if adds and cfg.dot2 and k % 2 == 1:
                            later.append((len(gaps) + (2 if k < 7 else len(mf) - i + 1), ('A', f"v_dot2c_f32_bf16 v{vL + cu}, 0x3f803f80, v{pbuf + k // 2}")))
                gaps.append(g)
        slot_first.append(len(gaps))
        G = len(gaps)
        for gi, it in later:
            gaps[gi % G]['valu'].append(it)

        def used(g):
            if g.get('resv'):
                return 2
            c = 0
            for k, _ in g['valu']:
                c += 2 if k == 'E' else 1
            for k, _ in g['mem']:
                c += 2 if k == 'D' else 1
            c += len(g['pre'])
            return c

        def place(items, lo, hi, cost, key='mem', grp=None):
            free = []
            for gi in range(lo, hi):
                f = 2 - used(gaps[gi % G])
                if cost == 2:
                    if f >= 2:
                        free.append(gi)
                else:
                    free.extend([gi] * max(f, 0))
            n = len(items)
            if cost == 1 and cfg.single_first:
                uniq = []
                for gi in free:
                    if gi not in uniq and not gaps[gi % G]['mem']:
                        uniq.append(gi)
                if len(uniq) >= n:
                    free = uniq
            seed = cfg.jit.get((cls,) + grp) if grp else None
            if len(free) >= n and seed is not None:
                import random
                rnd = random.Random(seed)
                for _try in range(200):
                    if seed % 2:
                        sel = sorted(rnd.sample(free, n))
                    else:
                        sel = [free[rnd.randrange((i * len(free)) // n, max(((i + 1) * len(free)) // n, (i * len(free)) // n + 1))] for i in range(n)]
                    if cost == 1 or all(sel[i] + 3 <= sel[i + 1] for i in range(n - 1)):
                        break
                else:
                    raise ValueError("no placement")
            elif len(free) >= n:
                sel = [free[(i * len(free)) // n] for i in range(n)]
            else:
                sel = list(free)
                cand = [gi for gi in range(lo, hi) if not any(k == 'E' for k, _ in gaps[gi % G]['valu']) and not gaps[gi % G].get('resv')]
                cnt = {gi: used(gaps[gi % G]) + sel.count(gi) * cost for gi in cand}
                while len(sel) < n:
                    gi = min(cand, key=lambda x: (cnt[x], abs(x - (lo + hi) // 2)))
                    sel.append(gi)
                    cnt[gi] += cost
                sel.sort()
            for it, gi in zip(items, sel):
                gaps[gi % G][key].append(it)
            return sel

        bfirst = {}
        blast = {}
        for n, (b, u) in enumerate(ubs):
            bfirst.setdefault(b, n)
            blast[b] = n
        sh = cfg.bar_shift
        barpos = {}
        first = (cls == 1)
        for bb, sign in ((1, -1 if first else 1), (3, 1 if first else -1)):
            barpos[bb] = slot_first[bfirst[bb]] + sign * sh
        if cfg.barg:
            barpos = {1: cfg.barg[cls][0] + 1, 3: cfg.barg[cls][1] + 1}
        lg = " lgkmcnt(0)" if cfg.bar_lgkm else ""
        for bb in (1, 3):
            gi = barpos[bb] - 1
            if cfg.barg and cfg.bar_clear:
                g = gaps[gi]
                assert not any(k == 'E' for k, _ in g['valu']), (cls, bb, gi)
                mv = g['valu']
                g['valu'] = []
                gj = gi + 1
                while mv:
                    gj += 1
                    h = gaps[gj]
                    if any(k == 'E' for k, _ in h['valu']):
                        continue
                    if used(h) < 2:
                        h['valu'].insert(0, mv.pop(0))
                g['resv'] = True
                gaps[gi - 1]['shadow'].append(('BW', bb))
                g['shadow'].append(('B', "s_barrier"))
            else:
                gaps[gi - cfg.bar_wearly]['shadow'].append(('BW', bb))
                gaps[gi]['shadow'].append(('B', "s_barrier"))

        if cfg.br_gap:
            gi = cfg.br_gap[cls]
            g = gaps[gi]
            assert not any(k == 'E' for k, _ in g['valu']), (cls, gi)
            mv = g['valu']
            g['valu'] = []
            gj = gi + 1
            while mv:
                gj += 1
                h = gaps[gj]
                if any(k == 'E' for k, _ in h['valu']):
                    continue
                if used(h) < 2:
                    h['valu'].insert(0, mv.pop(0))
            g['resv'] = True
            g['norm_s'] = True
            gaps[gi - 1]['norm_s'] = True
            gaps[gi - 1]['shadow'].append(('L', f"s_sub_u32 s{sLoop}, s{sLoop}, 1"))
            gaps[gi - 1]['shadow'].append(('L', f"s_cmp_lg_u32 s{sLoop}, 0"))
            g['shadow'].append(('BR', f"s_cbranch_scc1 L_loop{cls}"))

        def dma_group(which, lo, hi, tag):
            base = LDS_K if which == 'K' else LDS_V
            items = [('D', self.dma(which)) for m in range(4)]
            sel = place(items, lo, hi, 2, grp=('D',) + tag)
            assert all(sel[i] + 3 <= sel[i + 1] for i in range(3)), sel
            prev = None
            for m, gi in enumerate(sel):
                gaps[gi - 1]['shadow'].append(('S', f"s_add_u32 m0, s{sSlot}, {base + m * 4096}"))
                gaps[gi - 2]['shadow'].append(('S', f"s_add_u32 s{sSoff}, s{sGoff}, {m * 4096}"))
                gaps[gi].setdefault('dtag', []).append(tag)
            return sel

        for bb in (1, 3):
            nxt = (bb + 1) % 4
            lo = max(barpos[bb] + 3, slot_first[bfirst[bb]] + 3)
            selk = dma_group('K', lo, slot_first[blast[bb] + 1], ('K', bb))
            lo2 = slot_first[bfirst[nxt]] + 3
            nb_bar = barpos[(nxt + 1) % 4]
            hi2 = min(slot_first[blast[nxt] + 1] - (sh + 2), nb_bar - 3)
            selv = dma_group('V', lo2, hi2, ('V', bb))
            gi = selv[-1] + 1
            adv = self.advance_tile()
            for i, x in enumerate(adv):
                for y in (x if isinstance(x, list) else [x]):
                    gaps[gi + i]['shadow'].append(('S', y))

        if cfg.spreadx:
            pass
        need_wait = {}
        xitems = {}
        for beta in range(4):
            nb = (beta + 1) % 4
            L = nb % 2
            slotpar = (nb // 2) if nb != 0 else 0
            lo = slot_first[bfirst[beta]]
            hi = slot_first[blast[beta] + 1]
            crosses = (beta % 2 == 1)
            loK = lo
            vl = cfg.vlate if beta != 3 else 0
            if crosses:
                lo = max(lo, barpos[beta])
                loK = lo
                hiK = slot_first[blast[beta]] - 4
                hiV = hi + vl
            else:
                hiK = slot_first[blast[beta]] - 4
                if beta != 0:
                    loK = lo - cfg.kearly
                if cfg.bar_lgkm and cfg.pf:
                    hiV = min(hi + vl, barpos[nb] - cfg.bar_wearly - 8)
                elif cfg.bar_lgkm:
                    endb = min(hi, barpos[nb])
                    hiV = endb - 8
                else:
                    hiV = hi + vl
            if beta == 3 and not cfg.spreadx:
                tog = [('X', f"v_xor_b32 v{r}, 0x8000, v{r}") for r in (vKA, vVA, vVA + 1)]
                for i, it in enumerate(tog):
                    gaps[lo - 0 + 0]['pre'].append(it)
                tog2 = [('X', f"v_xor_b32 v{r}, 0x8000, v{r}") for r in (vKA + 1, vVA + 2, vVA + 3)]
                for it in tog2:
                    gaps[lo]['pre'].append(it)
                lo += 1
                loK = lo
            kitems = [('R', self.k_read(nb % 2, L, slotpar, t, j), ('K', nb)) for t in range(2) for j in range(4)]
            kitems = [(k, txt) for k, txt, tag in kitems]
            selK = place(kitems, loK, hiK, 1, grp=('K', beta))
            loV = max(lo, slot_first[bfirst[beta] + 1] - cfg.vearly)
            vitems = [('T', self.v_read(nb % 2, L, slotpar, t, dt)) for dt in range(8) for t in range(2)]
            selV = place(vitems, loV, hiV, 1, grp=('V', beta))
            if cfg.vearly:
                s0 = slot_first[bfirst[beta]]
                for i, gi in enumerate(selV):
                    assert gi >= s0 + 8 + i // 2, (beta, i, gi, s0)
            xitems[beta] = (min(selK + selV), max(selK + selV))
            need_wait[slot_first[blast[beta]]] = ('K', nb % 2)
            sl = (bfirst[nb] + 1) % N
            need_wait[slot_first[sl] + 8] = ('V', nb % 2)
        if cfg.spreadx:
            w0 = (xitems[1][1] + 1, xitems[3][0])
            w1 = (xitems[2][1] + 1, min(G, G + xitems[0][0]))
            place([('X', f"v_xor_b32 v{r}, 0x8000, v{r}") for r in (vKA, vVA, vVA + 1)], w0[0], w0[1], 1, key='valu', grp=('X', 0))
            place([('X', f"v_xor_b32 v{r}, 0x8000, v{r}") for r in (vKA + 1, vVA + 2, vVA + 3)], w1[0], w1[1], 1, key='valu', grp=('X', 1))

        seq = []
        for gi, g in enumerate(gaps):
            if gi in need_wait:
                seq.append(('LW', need_wait[gi]))
            seq.append(('M', g['mfma']))
            if cfg.stamps and cfg.loop_stamps and g['pos'] == 0 and cfg.loop_stamps[0] <= g['slot'] < cfg.loop_stamps[1]:
                i = g['slot'] - cfg.loop_stamps[0]
                seq.append(('S', f"s_memtime s[{sPS + 2 * i}:{sPS + 2 * i + 1}]"))
                if cls == 0:
                    self.stamp_names.append(f"slot{g['slot']}")
            for it in g['shadow']:
                seq.append(it)
            for it in g['pre']:
                seq.append(it)
            for it in g['mem']:
                seq.append(it)
            for it in g['valu']:
                seq.append(it)
        out = []
        for it in seq:
            if it[0] == 'LW':
                idx = max(i for i, x in enumerate(out) if x[0] == 'M') if any(x[0] == 'M' for x in out) else None
                if idx is None:
                    out.append(it)
                else:
                    out.insert(idx + 1, it)
            else:
                out.append(it)
        seq = out
        if cfg.br_gap:
            ib = next(i for i, (k, x) in enumerate(seq) if k == 'BR')
            ic = next(i for i, (k, x) in enumerate(seq) if k == 'L' and x.startswith("s_cmp"))
            assert all(k not in ('S',) for k, x in seq[ic:ib]), seq[ic:ib]
            il = next(i for i, (k, x) in enumerate(seq) if k == 'L')
            assert all(i < il for i, (k, x) in enumerate(seq) if x is not None and isinstance(x, str) and x.startswith("s_cselect")), "tile advance behind the loop counter"
        dts = []
        for gi, g in enumerate(gaps):
            for t in g.get('dtag', []):
                dts.append(t)
        order = []
        di = 0
        for k, x in seq:
            if k == 'D':
                order.append(dts[di]); di += 1
            elif k == 'BW':
                order.append(('BW', x))
        two = order + order + order
        bwn = {}
        for i in range(2 * len(order), len(two)):
            if two[i][0] == 'BW':
                bb = two[i][1]
                vs = [jj for jj in range(i) if two[jj][0] == 'V']
                assert two[vs[-1]] == ('V', 4 - bb) and len([1 for jj in vs[-4:] if two[jj] == ('V', 4 - bb)]) == 4
                j = vs[-1 - 4 * (1 + cfg.pf)]
                bwn[bb] = sum(1 for jj in range(j + 1, i) if two[jj][0] in ('K', 'V'))
                assert bwn[bb] == 8 * (1 + cfg.pf), bwn
        seq = [(('W', f"s_waitcnt vmcnt({bwn[x]}){lg}") if k == 'BW' else (k, x)) for k, x in seq]
        self.bwn = bwn
        issued = 0
        last_write = {}
        res = {}
        for it_no in range(2):
            for i, (k, x) in enumerate(seq):
                if k in ('R', 'T'):
                    issued += 1
                    d = int(x.split('a[')[1].split(':')[0])
                    if aKF <= d < aKF + 64:
                        last_write[('K', (d - aKF) // 32)] = issued
                    else:
                        last_write[('V', (d - aVF) // 32)] = issued
                elif k == 'W':
                    pass
                elif k == 'LW' and it_no == 1:
                    n_out = issued - last_write[x]
                    res[i] = min(n_out, 15)
        final = []
        for i, (k, x) in enumerate(seq):
            if k == 'LW':
                final.append(('W', f"s_waitcnt lgkmcnt({res[i]})"))
            else:
                final.append((k, x))
        rd = [x for k, x in final if k in ('R', 'T')]
        self.last_rd = rd[-1]
        if cfg.x_drop:
            final = [(k, x) for k, x in final if k not in cfg.x_drop]
        lastd = int(rd[-1].split('a[')[1].split(':')[0])
        assert aVF <= lastd < aVF + 32, rd[-1]
        over = sum(max(0, used(g) - 2) for g in gaps)
        self.stats = dict(gaps=G, overflow=over, bwn=bwn, bar=barpos)
        return final

    def main_loop(self, cls):
        A = self.A
        seq = self.build_loop(cls)
        ubs = self.ub_list(cls)
        b0, u0 = ubs[0]
        for t in range(2):
            for j in range(4):
                A(self.qk_mfma(u0, 0, 0, t, j))
        A("s_nop 7")
        A(f"s_mov_b32 s{sLoop}, 15")
        if self.cfg.stamps:
            A(f"s_memtime s[{sStamp + 4}:{sStamp + 5}]")
        A("s_waitcnt lgkmcnt(0)") if self.cfg.stamps else None
        if self.cfg.stamps and self.cfg.iter_stamps:
            A(f"v_mov_b32 v{self.vst}, 0")
            if self.cfg.iter_rt:
                A(f"s_memrealtime s[{sPS + 32}:{sPS + 33}]")
                A("s_waitcnt lgkmcnt(0)")
            else:
                A(f"s_mov_b32 s{sPS + 32}, s{sStamp + 4}")
        if self.cfg.br_gap:
            ib = next(i for i, (k, x) in enumerate(seq) if k == 'BR')
            part1, part2 = seq[:ib + 1], seq[ib + 1:]

            def emit2():
                for k, x in part2:
                    A(x)
                if self.cfg.stamps and self.cfg.iter_stamps:
                    A(f"s_add_u32 m0, s{sLoop}, 1")
                    A("s_nop 0")
                    A(f"v_writelane_b32 v{self.vst}, s{sPS + 32}, m0")
                    A(f"{'s_memrealtime' if self.cfg.iter_rt else 's_memtime'} s[{sPS + 32}:{sPS + 33}]")
            A(f"s_branch L_mid{cls}")
            A(".p2align 6")
            self.label(f"L_loop{cls}")
            emit2()
            self.label(f"L_mid{cls}")
            for k, x in part1:
                A(x)
            emit2()
            if self.cfg.stamps:
                A(f"s_memtime s[{sStamp + 6}:{sStamp + 7}]")
            self.tail(cls, ubs)
            return
        A(".p2align 6")
        self.label(f"L_loop{cls}")
        for k, x in seq:
            A(x)
        if self.cfg.stamps and self.cfg.iter_stamps:
            A(f"s_mov_b32 m0, s{sLoop}")
            A("s_nop 0")
            A(f"v_writelane_b32 v{self.vst}, s{sPS + 32}, m0")
            A(f"s_memtime s[{sPS + 32}:{sPS + 33}]")
        A(f"s_sub_u32 s{sLoop}, s{sLoop}, 1")
        A(f"s_cmp_lg_u32 s{sLoop}, 0")
        A(f"s_cbranch_scc1 L_loop{cls}")
        if self.cfg.stamps:
            A(f"s_memtime s[{sStamp + 6}:{sStamp + 7}]")
        self.tail(cls, ubs)

    vW, vR, vG, vX, vXS = 228, 230, 231, 234, 235
    STG = LDS_V
    vG16, vLmin, vLmax = vT, vT + 1, vT + 2
    KX = LDS_K + 16384
    sRowU = {u: sArg + u for u in range(6)}

    def out_addr_setup(self):
        A = self.A
        ln, t0, t1, r = vS, vS + 1, vS + 2, vS + 3
        A(f"v_mbcnt_lo_u32_b32 v{ln}, -1, 0")
        A(f"s_mul_i32 s{sArg}, s{sWave}, {80 * 256}")
        A(f"v_mbcnt_hi_u32_b32 v{ln}, -1, v{ln}")
        for u in range(1, 5):
            A(f"s_add_u32 s{sArg + u}, s{sArg}, {u * 4096}")
        A(f"s_mul_i32 s{sT2}, s{sWave}, 4608")
        A(f"s_add_u32 s{sT2}, s{sT2}, {self.STG}")
        A(f"v_and_b32 v{t0}, 15, v{ln}")
        A(f"v_lshrrev_b32 v{t1}, 4, v{ln}")
        A(f"v_mul_u32_u24 v{r}, 272, v{t0}")
        A(f"v_lshl_add_u32 v{r}, v{t1}, 3, v{r}")
        A(f"v_add_u32 v{r}, s{sT2}, v{r}")
        A(f"v_accvgpr_write_b32 a{aAddr}, v{r}")
        A(f"v_lshrrev_b32 v{t0}, 3, v{ln}")
        A(f"v_and_b32 v{t1}, 7, v{ln}")
        A(f"v_lshlrev_b32 v{t1}, 4, v{t1}")
        A(f"v_mul_u32_u24 v{r}, 272, v{t0}")
        A(f"v_add3_u32 v{r}, v{r}, v{t1}, s{sT2}")
        A(f"v_accvgpr_write_b32 a{aAddr + 1}, v{r}")
        A(f"v_lshl_add_u32 v{r}, v{t0}, 8, v{t1}")
        A(f"v_accvgpr_write_b32 a{aAddr + 2}, v{r}")
        A(f"v_lshlrev_b32 v{ln}, 4, v{ln}")
        A(f"v_accvgpr_write_b32 a{aAddr + 3}, v{ln}")

    def out_addr_items(self):
        o = [f"v_accvgpr_read_b32 v{self.vW}, a{aAddr}",
             f"v_accvgpr_read_b32 v{self.vR}, a{aAddr + 1}",
             f"v_accvgpr_read_b32 v{self.vG}, a{aAddr + 2}",
             f"v_accvgpr_read_b32 v{self.vG16}, a{aAddr + 3}",
             f"s_lshl_b32 s{sT1}, s{sWave}, 10",
             f"v_add_u32 v{self.vX}, s{sT1}, v{self.vG16}",
             f"v_add_u32 v{self.vXS}, {LDS_SP}, v{self.vX}"]
        return o

    def H_items(self, base, rinv, tag, stg_half):
        o = []
        pk = self.cfg.pkmul
        for jj in range(2):
            for j in (2 * jj, 2 * jj + 1):
                x = base + 4 * j
                if pk:
                    for r in (0, 2):
                        o.append(It(f"v_pk_mul_f32 v[{x + r}:{x + r + 1}], v[{x + r}:{x + r + 1}], v[{rinv & ~1}:{(rinv & ~1) + 1}] op_sel:[0,{rinv & 1}] op_sel_hi:[1,{rinv & 1}]"))
                else:
                    for r in range(4):
                        o.append(It(f"v_mul_f32 v{x + r}, v{x + r}, v{rinv}"))
            for j in (2 * jj, 2 * jj + 1):
                x = base + 4 * j
                o.append(It(f"v_cvt_pk_bf16_f32 v{x}, v{x}, v{x + 1}"))
                o.append(It(f"v_cvt_pk_bf16_f32 v{x + 1}, v{x + 2}, v{x + 3}"))
            x = base + 8 * jj
            d0 = 16 * stg_half + 8 * jj
            o.append(It(f"ds_write2_b64 v{self.vW}, v[{x}:{x + 1}], v[{x + 4}:{x + 5}] offset0:{d0} offset1:{d0 + 4}", ds=True))
        for i in range(2):
            o.append(It(f"ds_read_b128 v[{base + 4 * i}:{base + 4 * i + 3}], v{self.vR} offset:{i * 8 * 272 + stg_half * 128}", ds=(tag, i)))
        if self.cfg.x_nomul:
            o = [x for x in o if "mul_f32" not in x.txt]
        if self.cfg.x_nods:
            o = [x for x in o if not x.txt.startswith("ds_write")]
        return o

    def S_items(self, base, tag, srow, h):
        o = []
        nt = self.cfg.st_mod
        for i in range(2):
            r = base + 4 * i
            o.append(It(f"buffer_store_dwordx4 v[{r}:{r + 3}], v{self.vG}, s[{sO}:{sO + 3}], s{srow} offen offset:{i * 2048 + h * 128}{nt}", needs=[(tag, i)]))
        if self.cfg.x_nostore:
            o = [It("s_nop 0", needs=x.needs) for x in o]
        return o

    def lim_items(self, r):
        if not self.lim_started:
            self.lim_started = True
            return [It(f"v_mov_b32 v{self.vLmin}, v{r}"), It(f"v_mov_b32 v{self.vLmax}, v{r}")]
        return [It(f"v_min_f32 v{self.vLmin}, v{self.vLmin}, v{r}"), It(f"v_max_f32 v{self.vLmax}, v{self.vLmax}, v{r}")]

    def F1_items(self, u):
        r = vL + u
        tt = vT + 5
        o = []
        if u in self.ones and self.cfg.sm and not self.in_fb:
            o.append(It(f"v_accvgpr_read_b32 v{vT + 4}, a{self.aLidx[u]}"))
            o.append(It(f"v_add_f32 v{r}, v{r}, v{vT + 4}"))
        elif u in self.ones:
            o.append(It(f"v_accvgpr_read_b32 v{r}, a{self.aLidx[u]}"))
        else:
            o += [It(f"v_mov_b32 v{tt}, v{r}"), None, None,
                  It(f"v_permlane16_swap_b32 v{r}, v{tt}"), None,
                  It(f"v_add_f32 v{r}, v{r}, v{tt}"),
                  It(f"v_mov_b32 v{tt}, v{r}"), None, None,
                  It(f"v_permlane32_swap_b32 v{r}, v{tt}"), None,
                  It(f"v_add_f32 v{r}, v{r}, v{tt}")]
        o += self.lim_items(r)
        o += [It(f"v_rcp_f32 v{r}, v{r}"), None]
        return o

    @staticmethod
    def weave(prim, fill):
        fill = list(fill)
        out = []
        for x in prim:
            if x is None:
                out.append(fill.pop(0) if fill else It("s_nop 0"))
            else:
                out.append(x)
        return out + fill

    def t_emit(self, items):
        for it in items:
            if isinstance(it, str):
                it = It(it)
            for tag in it.needs:
                idx = self.ds_tag[tag]
                if idx > self.ds_done:
                    n = min(self.ds_issued - idx, 15)
                    self.A(f"s_waitcnt lgkmcnt({n})")
                    self.ds_done = self.ds_issued - n
            for x in (it.txt if isinstance(it.txt, list) else [it.txt]):
                self.A(x)
            if it.ds is not None:
                self.ds_issued += 1
                if it.ds is not True:
                    self.ds_tag[it.ds] = self.ds_issued
            if it.txt == "s_waitcnt lgkmcnt(0)":
                self.ds_done = self.ds_issued

    def t_slot(self, qk=None, pv=None, sm=None, bg=(), pv_first=False, need_qk=(), need_pv=(), bg_lo=0, bg_hi=None, late=()):
        mq, mp = [], []
        if qk:
            u, sbuf, kbuf = qk
            mq = [It(self.qk_mfma(u, sbuf, kbuf, t, j)) for t in range(2) for j in range(4)]
            mq[0].needs = list(need_qk)
        if pv:
            u, pbuf, vbuf = pv
            mp = [It(self.pv_mfma(u, pbuf, vbuf, dt)) for dt in range(8)]
            mp[0].needs = list(need_pv)
            if u in self.ones:
                mp.append(It(self.ones_mfma(u, pbuf)))
        mf = mp + mq if pv_first else mq + mp
        n = len(mf)
        fill = [[] for _ in range(n + 1)]
        if sm:
            E, C, Ad = self.sm_items(*sm)
            if n >= 16:
                for k in range(8):
                    fill[2 * k].append(E[k])
                    if k in C:
                        fill[2 * k + 1].append(C[k])
                    if k in Ad:
                        fill[2 * k + 1].append(Ad[k])
            else:
                assert n >= 8
                for k in range(8):
                    fill[k].append(E[k])
                    nx = k + 1 if k + 1 < 8 else n
                    if k in C:
                        fill[nx].append(C[k])
                    if k in Ad:
                        fill[nx].append(Ad[k])
                if n == 8:
                    fill[8].insert(0, "s_nop 0")
        bg = list(bg)
        bgat = [[] for _ in range(n + 1)]
        hi = n if bg_hi is None else bg_hi
        for i, m in enumerate(bg):
            bgat[bg_lo + (i * (hi - bg_lo)) // len(bg)].append(m)
        bg = None
        for pos, its in late:
            bgat[pos] += its
        seq = []
        for i, m in enumerate(mf):
            seq.append(m)
            seq += fill[i]
            seq += bgat[i]
        seq += fill[n] + bgat[n]
        self.t_emit(seq)

    def tail(self, cls, ubs):
        A = self.A
        cfg = self.cfg
        N = len(ubs)
        assert cfg.delta == 5
        assert slot_of(31) == 2 and slot_of(30) == 1
        vX, vXS, vG16 = self.vX, self.vXS, self.vG16
        KX = self.KX
        sRowU = self.sRowU
        a = ubs[0][1]
        rest = [u for u in (0, 1, 2, 3, 4) if u != a]
        rest = [u for u in rest if u in self.ones] + [u for u in rest if u not in self.ones]
        b, c, d, e = rest
        assert e not in self.ones
        own = [a, b, c, d, e]
        self.own = own
        tl = [(u, L) for u in own for L in range(2)]
        if cls == 1:
            tl.insert(1, (5, 0))
        M = len(tl)
        idx = {ub: i for i, ub in enumerate(tl)}
        self.lim_started = False
        self.ds_issued, self.ds_done, self.ds_tag = 0, -1, {'V0': 0}

        bg = {i: [] for i in range(M + 2)}
        late = {i: [] for i in range(M + 2)}
        Hu = lambda u, h: self.H_items(vO + 32 * u + 16 * h, vL + u, (u, h), h)
        Su = lambda u, h: self.S_items(vO + 32 * u + 16 * h, (u, h), sRowU[u], h)

        kl1 = [It(self.k_read(1, 1, 0, t, j), ds=True) for t in range(2) for j in range(4)]
        kl1[-1].ds = 'K1'
        vl1 = [It(self.v_read(1, 1, 0, t, dt), ds=True) for dt in range(8) for t in range(2)]
        vl1[-1].ds = 'V1'
        self.t_emit(kl1)
        addr = [It(x) for x in self.out_addr_items()]
        O5 = vO + 160

        def shared_out():
            o = [It(f"ds_write_b128 v{vXS}, v[{O5 + 4 * i}:{O5 + 4 * i + 3}] offset:{i * 4096}", ds=True) for i in range(8)]
            o.insert(4, It(f"v_accvgpr_read_b32 v{vT + 6}, a{self.aLidx[5]}"))
            o.append(It(f"ds_write_b32 v{vX}, v{vT + 6} offset:{KX}", ds=True))
            return o
        bar = [It("s_waitcnt lgkmcnt(0)"), It("s_barrier")]

        for u in own:
            f = idx[(u, 1)] + 1
            f1 = self.F1_items(u)
            if u in self.ones:
                bg[f + 1].append(('F1', [x if x is not None else It("s_nop 0") for x in f1]))
            else:
                bg[f].append(('F', f1))
            if u != e:
                bg[f + 1].append(('H', Hu(u, 0)))
                bg[f + 2].append(('H', Hu(u, 1)))
                bg[f + 2].append(('S', Su(u, 0)))
                if f + 3 <= M:
                    bg[f + 3].append(('S', Su(u, 1)))
        fd = idx[(d, 1)] + 1
        assert fd + 2 == M

        def assemble(lst):
            F = [x for k, l in lst if k == 'F' for x in l]
            Hs = [x for k, l in lst if k == 'F1' for x in l] + [x for k, l in lst if k == 'H' for x in l]
            S_ = [x for k, l in lst if k == 'S' for x in l]
            X = [x for k, l in lst if k == 'X' for x in l]
            X0 = [x for k, l in lst if k == 'X0' for x in l]
            return F, Hs, S_, X, X0

        if cfg.sm:
            ua, ub_, uc, ud, ue = cfg.order
            assert ua in self.ones and ub_ in self.ones and uc not in self.ones and ud not in self.ones
            mg = [It(f"v_add_f32 v{vL + ub_}, v{vDab}, v{vDab + 1}"),
                  It(f"v_add_f32 v{vL + ua}, v{vDab + 2}, v{vDab + 3}"),
                  It(f"v_add_f32 v{vDcd}, v{vDcd}, v{vDcd + 1}"),
                  It(f"v_add_f32 v{vDcd + 2}, v{vDcd + 2}, v{vDcd + 3}"),
                  It(f"v_fmac_f32 v{vL + ud}, 0x3e800000, v{vDcd}"),
                  It(f"v_fmac_f32 v{vL + uc}, 0x3e800000, v{vDcd + 2}")]
            if cfg.stamps and cfg.iter_stamps:
                mg.append(It(f"v_mov_b32 v245, v{self.vst}"))
            late[0].append(mg)
        if cls == 0:
            bg[1].append(('X', addr))
            bg[2].append(('X', shared_out()))
            barslot, barpos = 3, cfg.barA
            ACC, TMP = O5, O5 + 16
            L5 = [vL + 5, vT + 7, vT + 8, vT + 9]
            vXR = vXS
            rd = lambda s_, dst: [It(f"ds_read_b128 v[{dst + 4 * j}:{dst + 4 * j + 3}], v{vXR} offset:{j * 4096 + s_ * 1024}", ds=('P', s_, j)) for j in range(4)]
            ad = lambda s_: [It(f"v_add_f32 v{ACC + k}, v{ACC + k}, v{TMP + k}", needs=([('P', s_, k // 4)] + ([('P', 0, 3)] if k == 0 else []))) for k in range(16)]
            pre = [It(f"s_lshl_b32 s{sT1}, s{sP}, 14"),
                   It(f"s_add_u32 s{sT1}, s{sT1}, {LDS_SP}"),
                   It(f"v_add_u32 v{vXR}, s{sT1}, v{vG16}"),
                   It(f"s_lshl_b32 s{sRowU[5]}, s{sP}, 7"),
                   It(f"s_add_u32 s{sRowU[5]}, s{sRowU[5]}, {320 * 256}")]
            lrd = [It(f"ds_read_b32 v{L5[ww]}, v{vG16} offset:{KX + ww * 1024}", ds=('L5', ww)) for ww in range(4)]
            bg[4].append(('X0', pre + rd(0, ACC) + rd(1, TMP) + lrd))
            bg[4].append(('X', ad(1)))
            bg[5].append(('X0', rd(2, TMP)))
            lsum = [It(f"v_add_f32 v{L5[0]}, v{L5[0]}, v{L5[1]}", needs=[('L5', 3)]),
                    It(f"v_add_f32 v{L5[2]}, v{L5[2]}, v{L5[3]}"),
                    It(f"v_add_f32 v{L5[0]}, v{L5[0]}, v{L5[2]}")]
            bg[5].append(('X', ad(2) + lsum))
            bg[6].append(('X0', rd(3, TMP)))
            bg[6].append(('X', self.lim_items(L5[0]) + [It(f"v_rcp_f32 v{L5[0]}, v{L5[0]}")] + ad(3)))
            bg[7].append(('X', self.H_items(ACC, L5[0], (5, 0), 0)))
            bg[8].append(('X', self.S_items(ACC, (5, 0), sRowU[5], 0)))
        else:
            bg[1].append(('X', addr))
            bg[3].append(('X0', shared_out()))
            barslot, barpos = 3, cfg.barB

        for n in range(M + 1):
            qk = None
            if n + 1 < M:
                u1, L1 = tl[n + 1]
                qk = (u1, (n + 1) % 3, L1)
            psh = 1 if cfg.sm else 0
            if n == 0:
                pb, pu = ubs[N - 1]
                pv = (pu, self.pbufs(cls)[-1], pb % 2)
                assert pv[1] == (psh - 1) % 3
            else:
                u0, L0 = tl[n - 1]
                pv = (u0, (n - 1 + psh) % 3, L0)
            sm = None
            if n < M:
                u, L = tl[n]
                sm = (u, n % 3, (n + psh) % 3)
            need_qk = ['K1'] if (qk and tl[n + 1] == (a, 1)) else []
            need_pv = []
            if n >= 1 and tl[n - 1] == (a, 0):
                need_pv = ['V0']
            if n >= 1 and tl[n - 1] == (a, 1):
                need_pv = ['V1']
            F, Hs, S_, X, X0 = assemble(bg[n])
            head = self.weave(F, Hs) if F else Hs
            half = len(head) // 2
            lst = X0 + head[:half] + S_ + head[half:] + X
            lt = []
            pvf = False
            if n == 0:
                if cls == 0:
                    pvf = True
                    nm = 8 + (1 if pv[0] in self.ones else 0)
                    lt.append((nm, vl1[:8]))
                    lt.append((nm + 4, vl1[8:]))
                else:
                    nm = 16 + (1 if pv[0] in self.ones else 0)
                    lt.append((nm, vl1))
            for mg in late[n]:
                lt.append((6, mg))
            if n == barslot and not (cfg.block and cls == 0):
                lt.append((barpos, bar))
            if qk is None:
                self.t_emit(["s_nop 1"])
            lo, hi = 0, None
            if any(k == 'F1' for k, l in bg[n]):
                lo = 4
            if cls == 1 and n == barslot:
                hi = 10
            if cfg.block and n >= 3 and not (cls == 1 and n == barslot):
                nm = (8 if qk else 0) + 8 + (1 if pv[0] in self.ones else 0)
                lt.append((0, X0))
                if n == barslot:
                    k = cfg.barA_blk
                    blk = S_ + head + X
                    lt.append((nm, blk[:k] + bar + blk[k:]))
                else:
                    lt.append((nm, S_ + head + X))
                lst = []
            self.t_slot(qk=qk, pv=pv, sm=sm, bg=lst, pv_first=pvf, need_qk=need_qk, need_pv=need_pv, bg_lo=lo, bg_hi=hi, late=lt)
            if cls == cfg.stamp_cls and n in (0, 2, 3, 4, 5, 6, 7, 8, 9, 10): self.stamp(f"T_s{n}")
        self.stamp(f"tpv_{cls}") if cls == cfg.stamp_cls else None
        h0, h1 = Hu(e, 0), Hu(e, 1)
        sd = Su(d, 1)
        self.t_emit(h0[:6] + sd + h0[6:] + h1 + Su(e, 0) + Su(e, 1))
        self.stamp(f"tst_{cls}") if cls == cfg.stamp_cls else None
        A("s_branch L_epi")

    def rowsum_reduce(self, reg, tmp):
        A = self.A
        A(f"v_mov_b32 v{tmp}, v{reg}")
        A("s_nop 1")
        A(f"v_permlane16_swap_b32 v{reg}, v{tmp}")
        A("s_nop 1")
        A(f"v_add_f32 v{reg}, v{reg}, v{tmp}")
        A(f"v_mov_b32 v{tmp}, v{reg}")
        A("s_nop 1")
        A(f"v_permlane32_swap_b32 v{reg}, v{tmp}")
        A("s_nop 1")
        A(f"v_add_f32 v{reg}, v{reg}, v{tmp}")

    def rowmax_reduce(self, reg, tmp):
        A = self.A
        A(f"v_mov_b32 v{tmp}, v{reg}")
        A("s_nop 1")
        A(f"v_permlane16_swap_b32 v{reg}, v{tmp}")
        A("s_nop 1")
        A(f"v_max_f32 v{reg}, v{reg}, v{tmp}")
        A(f"v_mov_b32 v{tmp}, v{reg}")
        A("s_nop 1")
        A(f"v_permlane32_swap_b32 v{reg}, v{tmp}")
        A("s_nop 1")
        A(f"v_max_f32 v{reg}, v{reg}, v{tmp}")

    def epilogue(self):
        A = self.A
        cfg = self.cfg
        KX, vX, vG16 = self.KX, self.vX, self.vG16
        t0 = vT + 4
        self.label("L_epi")
        A(f"v_cmp_nge_f32 vcc, v{self.vLmin}, s{sThrLo}")
        A(f"s_mov_b64 s[{sBad}:{sBad + 1}], vcc")
        A(f"v_cmp_nle_f32 vcc, v{self.vLmax}, s{sThrHi}")
        A(f"s_or_b64 s[{sBad}:{sBad + 1}], s[{sBad}:{sBad + 1}], vcc")
        if cfg.force_fallback:
            A(f"s_mov_b64 s[{sBad}:{sBad + 1}], -1")
        if cfg.fallback:
            A(f"s_cmp_lg_u64 s[{sBad}:{sBad + 1}], 0")
            A(f"s_cselect_b32 s{sT2}, 1, 0")
            A(f"v_mov_b32 v{t0}, s{sT2}")
            A(f"ds_write_b32 v{vX}, v{t0} offset:{KX + 4096}")
            A("s_waitcnt lgkmcnt(0)")
            A("s_barrier")
            for ww in range(4):
                A(f"ds_read_b32 v{t0 + 1 + ww}, v{vG16} offset:{KX + 4096 + ww * 1024}")
            A("s_waitcnt lgkmcnt(0)")
            A(f"v_or_b32 v{t0 + 1}, v{t0 + 1}, v{t0 + 2}")
            A(f"v_or3_b32 v{t0 + 1}, v{t0 + 1}, v{t0 + 3}, v{t0 + 4}")
            A(f"v_cmp_ne_u32 vcc, 0, v{t0 + 1}")
            A("s_nop 1")
            A("s_cmp_lg_u64 vcc, 0")
            A("s_cbranch_scc1 L_fallback")
        self.finish()

    def finish(self):
        A = self.A
        if self.cfg.stamps:
            A("s_waitcnt vmcnt(0)")
            A(f"s_memrealtime s[{sArg}:{sArg + 1}]")
            A(f"s_memtime s[{sArg + 2}:{sArg + 3}]")
            A("s_waitcnt lgkmcnt(0)")
            A(f"s_sub_u32 s{sArg + 2}, s{sArg + 2}, s{sStamp + 2}")
            A(f"s_sub_u32 s{sArg + 4}, s{sStamp + 4}, s{sStamp + 2}")
            A(f"s_sub_u32 s{sArg + 5}, s{sStamp + 6}, s{sStamp + 4}")
            A(f"v_mov_b32 v64, s{sStamp}")
            A(f"v_mov_b32 v65, s{sArg}")
            A(f"v_mov_b32 v66, s{sArg + 2}")
            A(f"v_mov_b32 v67, s{sArg + 4}")
            A(f"v_mov_b32 v68, s{sArg + 5}")
            A(f"v_mov_b32 v69, s{sWave}")
            A(f"v_mov_b32 v70, 0")
            A(f"v_mov_b32 v71, 0")
            for i in range(len(self.stamp_names)):
                A(f"s_sub_u32 s{sPS + 2 * i}, s{sPS + 2 * i}, s{sStamp + 2}")
                A(f"v_mov_b32 v{76 + i}, s{sPS + 2 * i}")
            for i in range(len(self.stamp_names), 24):
                A(f"v_mov_b32 v{76 + i}, 0")
            if self.cfg.iter_stamps:
                A(f"v_writelane_b32 v245, s{sPS + 32}, 0")
                A(f"v_subrev_u32 v245, s{sStamp + (0 if self.cfg.iter_rt else 2)}, v245")
                A(f"v_mbcnt_lo_u32_b32 v73, -1, 0")
                A(f"v_mbcnt_hi_u32_b32 v73, -1, v73")
                A(f"v_lshlrev_b32 v73, 2, v73")
                A(f"s_lshl_b32 s{sT1}, {self.wg}, 8")
                A(f"s_lshl_b32 s{sT2}, s{sWave}, 16")
                A(f"s_add_u32 s{sT1}, s{sT1}, s{sT2}")
                A(f"s_add_u32 s{sT1}, s{sT1}, 0x40000")
                A(f"buffer_store_dword v245, v73, s[{sW_}:{sW_ + 3}], s{sT1} offen")
            A(f"s_lshl_b32 s{sT1}, {self.wg}, 7")
            A(f"s_lshl_b32 s{sT2}, s{sWave}, 15")
            A(f"s_add_u32 s{sT1}, s{sT1}, s{sT2}")
            A(f"v_mov_b32 v72, s{sT1}")
            A(f"v_mbcnt_lo_u32_b32 v73, -1, 0")
            A(f"v_mbcnt_hi_u32_b32 v73, -1, v73")
            A(f"v_cmp_eq_u32 vcc, 0, v73")
            A(f"s_and_saveexec_b64 s[{sTmp64}:{sTmp64 + 1}], vcc")
            A(f"buffer_store_dwordx4 v[64:67], v72, s[{sW_}:{sW_ + 3}], 0 offen")
            A(f"buffer_store_dwordx4 v[68:71], v72, s[{sW_}:{sW_ + 3}], 0 offen offset:16")
            for i in range(6):
                A(f"buffer_store_dwordx4 v[{76 + 4 * i}:{79 + 4 * i}], v72, s[{sW_}:{sW_ + 3}], 0 offen offset:{32 + 16 * i}")
        A("s_branch L_end")

    def fallback(self):
        A = self.A
        lane = vT + 8
        vM = vS + 8
        self.label("L_fallback")
        A("s_waitcnt vmcnt(0) lgkmcnt(0)")
        A("s_barrier")
        for i in range(8):
            A(f"v_accvgpr_read_b32 v{vKA + i}, a{aStash + i}")
        A(f"v_mbcnt_lo_u32_b32 v{lane}, -1, 0")
        A(f"v_mbcnt_hi_u32_b32 v{lane}, -1, v{lane}")
        A(f"v_and_b32 v{vT}, 15, v{lane}")
        A(f"v_lshrrev_b32 v{vT + 1}, 4, v{lane}")
        A(f"v_lshlrev_b32 v{vT}, 8, v{vT}")
        A(f"v_lshl_add_u32 v{vT}, v{vT + 1}, 4, v{vT}")
        A(f"s_mul_i32 s{sT3}, s{sWave}, {80 * 256}")
        for u in range(6):
            if u < 5:
                A(f"s_add_u32 s{sSoff}, s{sT3}, {u * 4096}")
            else:
                A(f"s_mov_b32 s{sSoff}, {320 * 256}")
            for j in range(4):
                A(f"buffer_load_dwordx4 {self.vr(vO + 4 * j)}, v{vT}, s[{sQ}:{sQ + 3}], s{sSoff} offen offset:{j * 64}")
            A("s_waitcnt vmcnt(0)")
            f, b = self.qloc[u]
            self.q_scale(vO, b, 16, toacc=True)
        for u in range(6):
            A(f"v_mov_b32 v{vM + u}, 0xff800000")
        self.zero_acc()
        for ps in range(2):
            A(f"s_lshl_b32 s{sSlot}, s{sWave}, 10")
            A(f"s_mov_b32 s{sGoff}, 0")
            A(f"s_mov_b32 s{sLoop}, {NTILES}")
            self.label(f"L_fb{ps}")
            A("s_barrier")
            self.dma_tile_simple('K')
            if ps == 1:
                self.dma_tile_simple('V')
            A(f"s_add_u32 s{sGoff}, s{sGoff}, 16384")
            A("s_waitcnt vmcnt(0)")
            A("s_barrier")
            for L in range(2):
                for t in range(2):
                    for j in range(4):
                        A(self.k_read(0, L, 0, t, j))
                if ps == 1:
                    for dt in range(8):
                        for t in range(2):
                            A(self.v_read(0, L, 0, t, dt))
                A("s_waitcnt lgkmcnt(0)")
                for u in range(6):
                    for t in range(2):
                        for j in range(4):
                            A(self.qk_mfma(u, 0, 0, t, j))
                    A("s_nop 7")
                    A("s_nop 3")
                    if ps == 0:
                        for k in range(8):
                            A(f"v_max_f32 v{vM + u}, v{vM + u}, v{vS + k}")
                    else:
                        for k in range(8):
                            A(f"v_sub_f32 v{vS + k}, v{vS + k}, v{vM + u}")
                        for k in range(8):
                            A(f"v_exp_f32 v{vS + k}, v{vS + k}")
                        A("s_nop 0")
                        for k in range(8):
                            A(f"v_add_f32 v{vL + u}, v{vL + u}, v{vS + k}")
                        for k in range(4):
                            A(f"v_cvt_pk_bf16_f32 v{vP + k}, v{vS + 2 * k}, v{vS + 2 * k + 1}")
                        A("s_nop 1")
                        for dt in range(8):
                            A(self.pv_mfma(u, 0, 0, dt))
                    A("s_nop 3")
            A("s_waitcnt lgkmcnt(0)")
            A(f"s_sub_u32 s{sLoop}, s{sLoop}, 1")
            A(f"s_cmp_lg_u32 s{sLoop}, 0")
            A(f"s_cbranch_scc1 L_fb{ps}")
            if ps == 0:
                for u in range(6):
                    self.rowmax_reduce(vM + u, vT + 1)
        A("s_nop 7")
        A("s_nop 7")
        A("s_barrier")
        for u in range(6):
            self.rowsum_reduce(vL + u, vT + 1)
        self.t_emit(self.out_addr_items())
        A(f"s_mov_b32 s{self.sRowU[5]}, {320 * 256}")
        self.ds_issued, self.ds_done, self.ds_tag = 0, 0, {}
        for u in range(6):
            if u == 5:
                A(f"s_cmp_lg_u32 s{sWave}, 0")
                A("s_cbranch_scc1 L_fb_done")
            A(f"v_rcp_f32 v{vL + u}, v{vL + u}")
            A("s_nop 0")
            for h in range(2):
                base = vO + 32 * u + 16 * h
                self.t_emit(self.H_items(base, vL + u, ('fb', u, h), h))
                self.t_emit(self.S_items(base, ('fb', u, h), self.sRowU[u], h))
        self.label("L_fb_done")
        self.finish()

    def generate(self):
        A = self.A
        self.prologue()
        A(f"s_cmp_ge_u32 s{sWave}, 2")
        A("s_cbranch_scc1 L_cls1")
        self.main_loop(0)
        st0 = dict(self.stats)
        A("s_branch L_epi")
        self.label("L_cls1")
        self.main_loop(1)
        st1 = dict(self.stats)
        self.epilogue()
        if self.cfg.fallback:
            self.fallback()
        self.label("L_end")
        A("s_endpgm")
        hdr = open("standalone__gqa_softmax__near_ridge.s.ref").read().split("; Override")[0]
        txt = hdr
        txt += "; Override launch geometry by editing the next line.\n"
        txt += f"; @launch grid=(256,1,1) block=(256,1,1) lds={LDS_TOTAL}\n"
        txt += '.amdgcn_target "amdgcn-amd-amdhsa--gfx950"\n.text\n'
        txt += f".globl {NAME}\n.p2align 8\n.type {NAME},@function\n{NAME}:\n"
        for x in self.L:
            txt += (x if x.endswith(":") else "    " + x) + "\n"
        txt += '.section .rodata,"a"\n.p2align 6\n'
        txt += f""".amdhsa_kernel {NAME}
  .amdhsa_next_free_vgpr 512
  .amdhsa_next_free_sgpr 102
  .amdhsa_accum_offset 256
  .amdhsa_group_segment_fixed_size 0
  .amdhsa_kernarg_size 48
  .amdhsa_user_sgpr_count 2
  .amdhsa_user_sgpr_kernarg_segment_ptr 1
  .amdhsa_system_sgpr_workgroup_id_x 1
.end_amdhsa_kernel
"""
        return txt, st0, st1


if __name__ == "__main__":
    ap = argparse.ArgumentParser()
    ap.add_argument("-o", default="k.s")
    ap.add_argument("--stamps", action="store_true")
    ap.add_argument("--ones", default="0")
    ap.add_argument("--force-fallback", action="store_true")
    ap.add_argument("--set", action="append", default=[])
    ap.add_argument("--cfg", action="append", default=[], help="file holding a dict of settings")
    a = ap.parse_args()
    kw = dict(stamps=a.stamps, force_fallback=a.force_fallback,
              ones_units=tuple(int(x) for x in a.ones.split(",") if x != ""))
    for f in a.cfg:
        kw.update(eval(open(f).read()))
    for s in a.set:
        k, v = s.split("=", 1)
        kw[k] = eval(v)
    g = Gen(Cfg(**kw))
    txt, st0, st1 = g.generate()
    open(a.o, "w").write(txt)
    print("generated", a.o, st0, st1, "lines", txt.count("\n"), "stamps", g.stamp_names, file=sys.stderr)
```

```python
import sys, math, argparse

NAME = "standalone__gqa_softmax__near_ridge_kernel"
SQ, SK, D = 336, 2048, 128
NTILES = SK // 64
QBYTES = SQ * D * 2
KBYTES = SK * D * 2
LDS_K = 0
LDS_V = 65536
LDS_SP = 131072
LDS_TOTAL = 163840
CSCALE = math.log2(math.e) / math.sqrt(D)


def f32hex(x):
    import struct
    return "0x%08x" % struct.unpack("<I", struct.pack("<f", x))[0]


def slot_of(tile):
    return (tile + 3) % 4


class Cfg:
    def __init__(self, **kw):
        self.ones_units = (0,)
        self.stamps = False
        self.nt = True
        self.order = (1, 0, 2, 3, 4)
        self.shared_pos = 2
        self.fallback = True
        self.force_fallback = False
        self.bar_shift = 4
        self.coff = 40
        self.lo_thr = 2.0 ** -50
        self.hi_thr = 0.5
        self.st_nt = True
        self.st_mod = " nt"
        self.delta = 5
        self.qorder = (0, 1, 2, 3, 4)
        self.iter_stamps = False
        self.loop_stamps = None
        self.barg = None
        self.single_first = False
        self.rot = None
        self.x_sm = None
        self.sm = False
        self.rush = 0
        self.rush_units = 5
        self.x_tna = False
        self.direct = False
        self.fullrow = False
        self.ld_mod = None
        self.dot2 = False
        self.code_pf = 0
        self.iter_rt = False
        self.headmap = None
        self.pf = 0
        self.jit = {}
        self.br_gap = None
        self.x_drop = ""
        self.bar_clear = True
        self.bar_wearly = 0
        self.spreadx = False
        self.bar_lgkm = True
        self.kearly = 0
        self.vearly = 0
        self.vlate = 0
        self.tail_stamps = False
        self.exp_noepi = False
        self.exp_noq = False
        self.pkmul = True
        self.block = True
        self.sched = {'i1': ['V0', 'Qb'], 'setup': ['Qc'], 'k0': [], 'qa': ['Qd'], 'v0': [], 'qb': ['Qe'], 'qc': ['K1'],
                      'qd': ['V1'], 'qe': ['K2'], 'end0': ['V2'], 'end1': ['K3']}
        self.barA_blk = 99
        self.stamp_cls = 0
        self.w2 = True
        self.x_nochk = False
        self.x_nostore = False
        self.x_nomul = False
        self.x_nods = False
        self.barA = 8
        self.barB = 16
        for k, v in kw.items():
            assert hasattr(self, k), k
            setattr(self, k, v)


sQ, sK, sV, sO, sW_ = 8, 12, 16, 20, 24
sWave = 28
sLoop = 29
sGoff = 30
sSlot = 31
sT0, sT1, sT2, sT3 = 32, 33, 34, 35
sArg = 36
sBad = 44
sTmp64 = 46
sSoff = 48
sStamp = 50
sP = 58
sDead = 59
sC = 60
sThrLo, sThrHi = 62, 63
sMask = 64
sPass = 65
sPS = 66
sHi = 42

vO = 0
vS = 192
vP = 216
vKA = 228
vVA = 230
vDK = 234
vDV = 235
vL = 236
vT = 242
vC = 252

aKF = 0
aVF = 64
aQ = 128
aL = 224
aOnes = 236
aStash = 240
aAddr = 248
aSP = 252
vIDX = 243
vDab, vDcd = 244, 248


class It:
    def __init__(self, txt, ds=None, needs=()):
        self.txt, self.ds, self.needs = txt, ds, list(needs)


class Gen:
    def __init__(self, cfg):
        self.cfg = cfg
        self.L = []
        self.uid = 0
        self.stamp_names = []
        ones = list(cfg.ones_units) + [5]
        self.ones = ones
        assert len(ones) <= 3
        self.aLidx = {u: aL + 4 * i for i, u in enumerate(ones)}
        self.qloc = {u: ('a', aQ + 16 * u) for u in range(6)}
        self.in_fb = False
        self.in_tail = False
        self.vst = 242 if cfg.sm else 245
        self.vm = []

    def A(self, s):
        self.L.append(s)

    def label(self, s):
        self.L.append(s + ":")

    def q(self, u, j):
        f, b = self.qloc[u]
        return f"{f}[{b + 4 * j}:{b + 4 * j + 3}]"

    @staticmethod
    def vr(b, n=4):
        return f"v[{b}:{b + n - 1}]"

    @staticmethod
    def ar(b, n=4):
        return f"a[{b}:{b + n - 1}]"

    def stamp(self, name):
        if not self.cfg.stamps:
            return
        if self.cfg.loop_stamps:
            return
        if self.cfg.tail_stamps != name.startswith("T_") and not name.startswith("t"):
            return
        i = len(self.stamp_names)
        assert i < 17
        self.stamp_names.append(name)
        self.A(f"s_memtime s[{sPS + 2 * i}:{sPS + 2 * i + 1}]")

    def qk_mfma(self, u, sbuf, kbuf, t, j):
        d = vS + 8 * sbuf + 4 * t
        a = aKF + 32 * kbuf + 16 * t + 4 * j
        c = self.vr(vC) if j == 0 else self.vr(d)
        return f"v_mfma_f32_16x16x32_bf16 {self.vr(d)}, {self.ar(a)}, {self.q(u, j)}, {c}"

    def pv_mfma(self, u, pbuf, vbuf, dt, first=False):
        d = vO + 32 * u + 4 * dt
        a = aVF + 32 * vbuf + 4 * dt
        b = vP + 4 * pbuf
        c = "0" if first else self.vr(d)
        return f"v_mfma_f32_16x16x32_bf16 {self.vr(d)}, {self.ar(a)}, {self.vr(b)}, {c}"

    def ones_mfma(self, u, pbuf):
        d = self.aLidx[u]
        b = vP + 4 * pbuf
        return f"v_mfma_f32_16x16x32_bf16 {self.ar(d)}, {self.ar(aOnes)}, {self.vr(b)}, {self.ar(d)}"

    def k_read(self, kbuf, L, slotpar, t, j):
        d = aKF + 32 * kbuf + 16 * t + 4 * j
        off = slotpar * 16384 + t * 4096 + (j // 2) * 2048 + (j % 2) * 512
        return f"ds_read_b128 {self.ar(d)}, v{vKA + L} offset:{off}"

    def v_read(self, vbuf, L, slotpar, t, dt):
        d = aVF + 32 * vbuf + 4 * dt + 2 * t
        off = slotpar * 16384 + t * 4096 + (dt // 2) * 512
        return f"ds_read_b64_tr_b16 {self.ar(d, 2)}, v{vVA + 2 * L + (dt % 2)} offset:{off}"

    def dma(self, which):
        nt = " nt" if self.cfg.nt else ""
        if self.cfg.ld_mod is not None:
            nt = self.cfg.ld_mod
        if which == 'K':
            return f"buffer_load_dwordx4 v{vDK}, s[{sK}:{sK + 3}], s{sSoff} offen{nt} lds"
        return f"buffer_load_dwordx4 v{vDV}, s[{sV}:{sV + 3}], s{sSoff} offen{nt} lds"

    def dma_tile_simple(self, which):
        base = LDS_K if which == 'K' else LDS_V
        for m in range(4):
            self.A(f"s_add_u32 m0, s{sSlot}, {base + m * 4096}")
            self.A(f"s_add_u32 s{sSoff}, s{sGoff}, {m * 4096}")
            self.A(self.dma(which))

    def advance_tile(self):
        o = [f"s_add_u32 s{sGoff}, s{sGoff}, 16384",
             f"s_add_u32 s{sSlot}, s{sSlot}, 16384",
             f"s_and_b32 s{sSlot}, s{sSlot}, 0xffff"]
        if self.cfg.pf:
            o[2] = [o[2], f"s_cmp_ge_u32 s{sGoff}, {KBYTES}", f"s_cselect_b32 s{sSlot}, s{sDead}, s{sSlot}"]
        if self.cfg.rot:
            assert not self.cfg.pf
            o = [o[0], [f"s_and_b32 s{sGoff}, s{sGoff}, {KBYTES - 1}", o[1]],
                 [f"s_cmp_eq_u32 s{sLoop}, 1", f"s_cselect_b32 s{sGoff}, {KBYTES}, s{sGoff}", o[2]]]
        return o

    def sm_items(self, u, sbuf, pbuf):
        sb = vS + 8 * sbuf
        pb = vP + 4 * pbuf
        E = [f"v_exp_f32 v{sb + k}, v{sb + k}" for k in range(8)]
        C = {k: f"v_cvt_pk_bf16_f32 v{pb + k // 2}, v{sb + k - 1}, v{sb + k}" for k in (1, 3, 5, 7)}
        Ad = {k: f"v_add_f32 v{vL + u}, v{vL + u}, v{sb + k}" for k in range(8)} if u not in self.ones else {}
        if self.cfg.x_tna and self.in_tail:
            Ad = {}
        return E, C, Ad

    def emit_slot(self, qk=None, pv=None, sm=None, mem=()):
        A = self.A
        mf = []
        if qk:
            u, sbuf, kbuf = qk
            mf += [self.qk_mfma(u, sbuf, kbuf, t, j) for t in range(2) for j in range(4)]
        if pv:
            u, pbuf, vbuf = pv[:3]
            first = len(pv) > 3 and pv[3]
            mf += [self.pv_mfma(u, pbuf, vbuf, dt, first) for dt in range(8)]
            if u in self.ones:
                mf.append(self.ones_mfma(u, pbuf))
        fill = [[] for _ in range(len(mf) + 1)]
        if sm:
            E, C, Ad = self.sm_items(*sm)
            if len(mf) >= 16:
                for k in range(8):
                    fill[2 * k].append(E[k])
                    if k in C:
                        fill[2 * k + 1].append(C[k])
                    if k in Ad:
                        fill[2 * k + 1].append(Ad[k])
            else:
                assert len(mf) >= 8
                for k in range(8):
                    fill[k].append(E[k])
                    nx = k + 1 if k + 1 < 8 else len(mf)
                    if k in C:
                        fill[nx].append(C[k])
                    if k in Ad:
                        fill[nx].append(Ad[k])
                if len(mf) == 8:
                    fill[8].insert(0, "s_nop 0")
        mem = list(mem)
        n = len(mf)
        memat = [[] for _ in range(n + 1)]
        for i, m in enumerate(mem):
            memat[min(n - 1, (i * n) // max(len(mem), 1))].append(m)
        for i, m in enumerate(mf):
            A(m)
            for x in memat[i]:
                A(x)
            for x in fill[i]:
                A(x)
        for x in fill[n]:
            A(x)

    def vm_issue(self, tag):
        self.vm.append(tag)

    def vm_wait(self, tag, extra=""):
        last = max(i for i, t in enumerate(self.vm) if t == tag)
        n = len(self.vm) - 1 - last
        self.A(f"s_waitcnt vmcnt({n}){extra}")

    def q_scale(self, src, dst, n, toacc=False):
        A = self.A
        tmp = vS
        for r0 in range(0, n, 4):
            for r in range(4):
                A(f"v_lshlrev_b32 v{tmp + 2 * r}, 16, v{src + r0 + r}")
                A(f"v_and_b32 v{tmp + 2 * r + 1}, s{sMask}, v{src + r0 + r}")
            for r in range(4):
                A(f"v_pk_mul_f32 v[{tmp + 2 * r}:{tmp + 2 * r + 1}], v[{tmp + 2 * r}:{tmp + 2 * r + 1}], s[{sC}:{sC + 1}]")
            for r in range(4):
                d = src if toacc else dst
                A(f"v_cvt_pk_bf16_f32 v{d + r0 + r}, v{tmp + 2 * r}, v{tmp + 2 * r + 1}")
            if toacc:
                for r in range(4):
                    A(f"v_accvgpr_write_b32 a{dst + r0 + r}, v{src + r0 + r}")

    def prologue(self):
        A = self.A
        cfg = self.cfg
        nt = " nt" if cfg.nt else ""
        if cfg.ld_mod is not None:
            nt = cfg.ld_mod
        A("s_cmp_ge_u32 s2, 256")
        A("s_cbranch_scc1 L_end")
        self.wg = "s2"
        if cfg.headmap:
            A("s_mov_b32 s3, s2")
            self.wg = "s3"
            for x in cfg.headmap:
                A(x)
        A(f"s_load_dwordx8 s[{sArg}:{sArg + 7}], s[0:1], 0")
        if cfg.rot:
            for x in cfg.rot:
                A(x)
            A("s_and_b32 s6, s6, 31")
            A("s_lshl_b32 s6, s6, 14")
        if cfg.stamps:
            A(f"s_load_dwordx2 s[{sW_}:{sW_ + 1}], s[0:1], 40")
            A(f"s_memrealtime s[{sStamp}:{sStamp + 1}]")
            A(f"s_memtime s[{sStamp + 2}:{sStamp + 3}]")
        t0, t1, t2, t3, t4 = vT, vT + 1, vT + 2, vT + 3, vT + 4
        lane = vT + 8
        if cfg.code_pf:
            A("s_getpc_b64 s[4:5]")
            self.label("L_pc0")
            A(f"s_sub_u32 s4, s4, L_pc0-{NAME}")
            A("s_subb_u32 s5, s5, 0")
            A(f"v_lshlrev_b32 v{vS}, 7, v0")
            A(f"v_mov_b32 v{vS + 1}, s5")
            A(f"v_add_co_u32 v{vS}, vcc, s4, v{vS}")
            A(f"v_addc_co_u32 v{vS + 1}, vcc, 0, v{vS + 1}, vcc")
            A(f"global_load_dword v100, v[{vS}:{vS + 1}], off")
            self.vm_issue("CP")
        for i in range(4):
            A(f"v_mov_b32 v{vP + i}, 0")
        zlist = [f"v_mfma_f32_32x32x16_bf16 v[{vO + 160 + 16 * i}:{vO + 175 + 16 * i}], v[{vP}:{vP + 3}], v[{vP}:{vP + 3}], 0"
                 for i in range(2)]
        zlist.append(f"v_mfma_f32_32x32x16_bf16 a[{aL}:{aL + 15}], v[{vP}:{vP + 3}], v[{vP}:{vP + 3}], 0")
        pre = []
        P = pre.append
        P(f"v_and_b32 v{lane}, 63, v0")
        P(f"v_lshrrev_b32 v{t0}, 6, v0")
        P(f"v_lshrrev_b32 v{t1}, 5, v{lane}")
        P(f"v_readfirstlane_b32 s{sWave}, v{t0}")
        P(f"v_lshlrev_b32 v{t0}, 6, v{t1}")
        P(f"v_bfe_u32 v{t1}, v{lane}, 2, 3")
        P(f"v_and_b32 v{t2}, 3, v{lane}")
        P(f"v_lshl_add_u32 v{t0}, v{t1}, 8, v{t0}")
        P(f"v_lshrrev_b32 v{t3}, 2, v{t1}")
        for rh in range(2):
            P(f"v_add_u32 v{t4}, {2 * rh}, v{t3}")
            P(f"v_sub_u32 v{t4}, 0, v{t4}")
            P(f"v_and_b32 v{t4}, 3, v{t4}")
            P(f"v_xor_b32 v{t4}, v{t4}, v{t2}")
            P(f"v_lshl_add_u32 v{t4}, v{t4}, 4, v{t0}")
            P(f"v_add_u32 v{vT + 6 + rh}, {rh * 2048}, v{t4}")
        P(f"s_and_b32 s{sP}, s{sWave}, 1")
        P(f"s_lshr_b32 s{sT0}, s{sWave}, 1")
        P(f"s_cmp_eq_u32 s{sP}, 0")
        P(f"s_cselect_b64 s[{sTmp64}:{sTmp64 + 1}], -1, 0")
        P(f"v_cndmask_b32 v{t3}, v{vT + 7}, v{vT + 6}, s[{sTmp64}:{sTmp64 + 1}]")
        P(f"s_lshl_b32 s{sT1}, s{sT0}, 7")
        P(f"v_add_u32 v{vDK}, s{sT1}, v{t3}")
        P(f"s_lshl_b32 s{sSlot}, s{sWave}, 10")
        P(f"s_mul_i32 s{sT1}, s2, {QBYTES}")
        P(f"s_lshl_b32 s{sT2}, s2, 19")
        zi = 0
        for i, x in enumerate(pre):
            A(x)
            if i % 3 == 2 and zi < len(zlist):
                A(zlist[zi]); zi += 1
        while zi < len(zlist):
            A(zlist[zi]); zi += 1

        def srd(reg, arg, off, size):
            A(f"s_add_u32 s{reg}, s{arg}, s{off}")
            A(f"s_addc_u32 s{reg + 1}, s{arg + 1}, 0")
            A(f"s_and_b32 s{reg + 1}, s{reg + 1}, 0xffff")
            A(f"s_mov_b32 s{reg + 2}, {size}")
            A(f"s_mov_b32 s{reg + 3}, 0x20000")

        def kv_group(which, tile):
            base = LDS_K if which == 'K' else LDS_V
            if cfg.rot and tile:
                A(f"s_add_u32 s7, s6, {tile * 16384}")
                A(f"s_and_b32 s7, s7, {KBYTES - 1}")
            for m in range(4):
                A(f"s_add_u32 m0, s{sSlot}, {base + slot_of(tile) * 16384 + m * 4096}")
                if cfg.rot:
                    A(f"s_add_u32 s{sSoff}, s{7 if tile else 6}, {m * 4096}")
                else:
                    A(f"s_mov_b32 s{sSoff}, {tile * 16384 + m * 4096}")
                A(self.dma(which))
                self.vm_issue(f"{which}{tile}")
        sW13, sW12, sRow = sT0, sT3, sPass
        B2 = LDS_K + slot_of(3) * 16384
        PC = LDS_V + slot_of(3) * 16384
        qorder = cfg.qorder
        stage = {qorder[0]: (sW13, LDS_SP), qorder[1]: (sW13, LDS_SP + 4096), qorder[2]: (sW12, B2),
                 qorder[3]: (sW13, LDS_SP), qorder[4]: (sW13, LDS_SP + 4096)}

        def q_dma(u):
            sreg, base = stage[u]
            for jp in range(2):
                for rh in range(2):
                    A(f"s_add_u32 m0, s{sreg}, {base + jp * 2048 + rh * 1024}")
                    A(f"s_add_u32 s{sSoff}, s{sRow}, {u * 4096 + jp * 128}")
                    A(f"buffer_load_dwordx4 v{vT + 6 + rh}, s[{sQ}:{sQ + 3}], s{sSoff} offen{nt} lds")
                    self.vm_issue(f"Q{u}")
        def issue(ev):
            for g in cfg.sched.get(ev, []):
                if g[0] == 'Q':
                    q_dma(qorder["abcde".index(g[1])])
                else:
                    kv_group(g[0], int(g[1]))
        A("s_waitcnt lgkmcnt(0)")
        self.stamp("karg")
        srd(sK, sArg + 2, sT2, KBYTES)
        kv_group('K', 0)
        srd(sQ, sArg, sT1, QBYTES)
        A(f"s_lshl_b32 s{sW13}, s{sWave}, 13")
        A(f"s_lshl_b32 s{sW12}, s{sWave}, 12")
        A(f"s_mul_i32 s{sRow}, s{sWave}, {80 * 256}")
        q_dma(qorder[0])
        A(f"s_add_u32 m0, s{sSlot}, {PC}")
        A(f"s_lshr_b32 s{sSoff}, s{sWave}, 1")
        A(f"s_lshl_b32 s{sSoff}, s{sSoff}, 7")
        A(f"s_add_u32 s{sSoff}, s{sSoff}, {320 * 256}")
        A(f"buffer_load_dwordx4 v{t3}, s[{sQ}:{sQ + 3}], s{sSoff} offen{nt} lds")
        self.vm_issue("QP")
        self.stamp("iss9")
        srd(sV, sArg + 4, sT2, KBYTES)
        A(f"v_bfe_u32 v{t0}, v{lane}, 4, 1")
        A(f"v_bfe_u32 v{t1}, v{lane}, 2, 2")
        A(f"v_lshl_add_u32 v{t1}, v{t0}, 2, v{t1}")
        A(f"v_bfe_u32 v{t2}, v{lane}, 1, 1")
        A(f"v_xor_b32 v{t2}, v{t2}, v{t0}")
        A(f"v_and_b32 v{t3}, 1, v{lane}")
        A(f"v_lshl_add_u32 v{t2}, v{t2}, 1, v{t3}")
        A(f"v_lshrrev_b32 v{t3}, 5, v{lane}")
        A(f"v_lshl_add_u32 v{t2}, v{t3}, 2, v{t2}")
        A(f"v_lshlrev_b32 v{t2}, 4, v{t2}")
        A(f"v_lshl_add_u32 v{vDV}, v{t1}, 8, v{t2}")
        A(f"s_lshr_b32 s{sTmp64}, s{sWave}, 1")
        A(f"s_lshl_b32 s{sTmp64}, s{sTmp64}, 11")
        A(f"s_lshl_b32 s{sTmp64 + 1}, s{sP}, 7")
        A(f"s_add_u32 s{sTmp64}, s{sTmp64}, s{sTmp64 + 1}")
        A(f"v_add_u32 v{vDV}, s{sTmp64}, v{vDV}")
        issue('i1')
        self.stamp("iss17")
        srd(sO, sArg + 6, sT1, QBYTES)
        if cfg.stamps:
            A(f"s_and_b32 s{sW_ + 1}, s{sW_ + 1}, 0xffff")
            A(f"s_mov_b32 s{sW_ + 2}, 0x100000")
            A(f"s_mov_b32 s{sW_ + 3}, 0x20000")
        qa01, k5addr, plin, qa2 = vT + 4, vT + 5, vT + 8, vT + 9
        kaddr = vP + 4
        A(f"v_and_b32 v{t0}, 15, v{lane}")
        A(f"v_lshrrev_b32 v{t1}, 4, v{lane}")
        A(f"v_lshrrev_b32 v{t2}, 2, v{t0}")
        A(f"v_sub_u32 v{t2}, 0, v{t2}")
        A(f"v_and_b32 v{t2}, 3, v{t2}")
        A(f"v_xor_b32 v{t2}, v{t2}, v{t1}")
        A(f"v_lshlrev_b32 v{t2}, 4, v{t2}")
        A(f"v_and_b32 v{t3}, 7, v{t0}")
        A(f"v_lshl_add_u32 v{t2}, v{t3}, 6, v{t2}")
        A(f"v_lshrrev_b32 v{t3}, 3, v{t0}")
        A(f"v_lshl_add_u32 v{kaddr}, v{t3}, 10, v{t2}")
        sA, sB = sTmp64, sTmp64 + 1
        A(f"s_lshl_b32 s{sA}, s{sP}, 13")
        A(f"s_xor_b32 s{sB}, s{sA}, 8192")
        A(f"v_add_u32 v{vKA}, s{sA}, v{kaddr}")
        A(f"v_add_u32 v{vKA + 1}, s{sB}, v{kaddr}")
        A(f"v_add_u32 v{k5addr}, {PC}, v{kaddr}")
        A(f"v_add_u32 v{qa01}, s{sW13}, v{kaddr}")
        A(f"v_add_u32 v{qa01}, {LDS_SP}, v{qa01}")
        A(f"v_add_u32 v{qa2}, s{sW12}, v{kaddr}")
        A(f"v_add_u32 v{qa2}, {B2}, v{qa2}")
        A(f"v_lshrrev_b32 v{t2}, 1, v{t1}")
        A(f"v_lshlrev_b32 v{t2}, 11, v{t2}")
        A(f"v_and_b32 v{t3}, 1, v{t1}")
        A(f"v_lshl_add_u32 v{t2}, v{t3}, 8, v{t2}")
        A(f"v_lshrrev_b32 v{kaddr}, 2, v{t0}")
        A(f"v_lshl_add_u32 v{t2}, v{kaddr}, 6, v{t2}")
        A(f"v_and_b32 v{kaddr}, 3, v{t0}")
        A(f"v_lshl_add_u32 v{t2}, v{kaddr}, 3, v{t2}")
        A(f"v_add_u32 v{t2}, {LDS_V}, v{t2}")
        for pi in range(2):
            A(f"v_xor_b32 v{kaddr}, {pi}, v{t3}")
            A(f"v_lshl_add_u32 v{kaddr}, v{kaddr}, 5, v{t2}")
            A(f"v_add_u32 v{vVA + pi}, s{sA}, v{kaddr}")
            A(f"v_add_u32 v{vVA + 2 + pi}, s{sB}, v{kaddr}")
        A(f"v_lshlrev_b32 v{plin}, 4, v{lane}")
        A(f"v_add_u32 v{plin}, s{sSlot}, v{plin}")
        A(f"v_add_u32 v{plin}, {PC}, v{plin}")
        A(f"s_mov_b32 s{sC}, {f32hex(CSCALE)}")
        A(f"s_mov_b32 s{sC + 1}, {f32hex(CSCALE)}")
        A(f"s_mov_b32 s{sMask}, 0xffff0000")
        A(f"s_mov_b32 s{sThrLo}, {f32hex(cfg.lo_thr)}")
        A(f"s_mov_b32 s{sThrHi}, {f32hex(cfg.hi_thr)}")
        for i in range(4):
            A(f"v_mov_b32 v{vT + 10}, 0x3f803f80") if i == 0 else None
            A(f"v_accvgpr_write_b32 a{aOnes + i}, v{vT + 10}")
        if cfg.sm:
            ln, x0, x1 = vS, vS + 1, vS + 2
            A(f"v_mbcnt_lo_u32_b32 v{ln}, -1, 0")
            A(f"v_mbcnt_hi_u32_b32 v{ln}, -1, v{ln}")
            A(f"v_bfe_u32 v{x0}, v{ln}, 1, 1")
            A(f"v_lshrrev_b32 v{x1}, 5, v{ln}")
            A(f"v_cmp_eq_u32 vcc, v{x0}, v{x1}")
            A(f"v_and_b32 v{x1}, 1, v{ln}")
            A(f"v_mul_u32_u24 v{vIDX}, 0xaaaa, v{x1}")
            A(f"v_cndmask_b32 v{x0}, 0, v{vT + 10}, vcc")
            A(f"v_add_u32 v{vIDX}, 0x4444, v{vIDX}")
            for i in range(4):
                A(f"v_accvgpr_write_b32 a{aSP + i}, v{x0}")
        for i in range(6):
            A(f"v_mov_b32 v{vL + i}, 0")
        for i in range(4):
            A(f"v_mov_b32 v{vC + i}, {f32hex(-float(cfg.coff))}")
        for i in range(8):
            A(f"v_accvgpr_write_b32 a{aStash + i}, v{vKA + i}")
        self.out_addr_setup()
        self.stamp("setup")
        issue('setup')
        S0 = slot_of(0)

        def kr(L, t, j):
            d = aKF + 32 * L + 16 * t + 4 * j
            return f"ds_read_b128 {self.ar(d)}, v{vKA + L} offset:{S0 * 16384 + t * 4096 + (j // 2) * 2048 + (j % 2) * 512}"

        def vrd(L, t, dt):
            d = aVF + 32 * L + 4 * dt + 2 * t
            return f"ds_read_b64_tr_b16 {self.ar(d, 2)}, v{vVA + 2 * L + (dt % 2)} offset:{S0 * 16384 + t * 4096 + (dt // 2) * 512}"
        self.vm_wait("K0")
        A("s_barrier")
        self.stamp("k0_bar")
        issue('k0')
        for L in range(2):
            for t in range(2):
                for j in range(4):
                    A(kr(L, t, j))

        def q_fetch(u, tq):
            sreg, base = stage[u]
            if base >= LDS_SP:
                reg, off = qa01, base - LDS_SP
            else:
                reg, off = qa2, 0
            for j in range(4):
                A(f"ds_read_b128 {self.vr(tq + 4 * j)}, v{reg} offset:{off + (j // 2) * 2048 + (j % 2) * 512}")
            A("s_waitcnt lgkmcnt(0)")

        def q_ready(u, after_read):
            f, b = self.qloc[u]
            tq = vO + 32 * u
            self.vm_wait(f"Q{u}")
            q_fetch(u, tq)
            after_read()
            self.q_scale(tq, b, 16, toacc=True)
            A("s_nop 1")
        a, b_, c, d_, e = qorder
        q_ready(a, lambda: issue('qa'))
        self.stamp("qa_done")
        self.emit_slot(qk=(a, 1, 0))
        A("s_nop 2")
        self.emit_slot(qk=(a, 2, 1), sm=(a, 1, 1))
        E, C, Ad = self.sm_items(a, 2, 2)
        for k in range(8):
            A(E[k])
            if k >= 1 and (k - 1) in C:
                A(C[k - 1])
            if k >= 1 and (k - 1) in Ad:
                A(Ad[k - 1])
        A("s_nop 0")
        A(C[7])
        if 7 in Ad:
            A(Ad[7])
        self.vm_wait("QP")
        A(f"ds_read_b128 {self.vr(vP)}, v{plin}")
        A("s_waitcnt lgkmcnt(0)")
        self.q_scale(vP, vP, 4)
        A(f"ds_write_b128 v{plin}, {self.vr(vP)}")
        self.vm_wait("V0", " lgkmcnt(0)")
        A("s_barrier")
        self.stamp("v0_bar")
        issue('v0')
        for L in range(2):
            for dt in range(8):
                for t in range(2):
                    A(vrd(L, t, dt))
            if L == 0:
                for j in range(4):
                    A(f"ds_read_b128 {self.q(5, j)}, v{k5addr} offset:{(j // 2) * 2048 + (j % 2) * 512}")
        A("s_waitcnt lgkmcnt(15)")
        self.emit_slot(pv=(a, 1, 0, True))
        A("s_waitcnt lgkmcnt(0)")
        self.emit_slot(pv=(a, 2, 1))
        A(f"s_cmp_ge_u32 s{sWave}, 2")
        A("s_cbranch_scc1 L_noshared0")
        self.emit_slot(qk=(5, 1, 0))
        E, C, Ad = self.sm_items(5, 1, 1)
        A("s_nop 7")
        for k in range(8):
            A(E[k])
            if k >= 1 and (k - 1) in C:
                A(C[k - 1])
        A("s_nop 0")
        A(C[7])
        A("s_nop 1")
        self.emit_slot(pv=(5, 1, 0))
        self.label("L_noshared0")
        self.stamp("a_done")

        def burst(u, last=False):
            self.emit_slot(qk=(u, 1, 0))
            A("s_nop 2")
            self.emit_slot(qk=(u, 2, 1), sm=(u, 1, 1))
            A("s_nop 1")
            self.emit_slot(pv=(u, 1, 0, True), sm=(u, 2, self.pbufs(0)[-1] if last else 2))
            if not last:
                A("s_nop 1")
                self.emit_slot(pv=(u, 2, 1))
        q_ready(b_, lambda: issue('qb'))
        burst(b_)
        q_ready(c, lambda: issue('qc'))
        burst(c)
        self.stamp("c_done")
        q_ready(d_, lambda: issue('qd'))
        burst(d_)
        q_ready(e, lambda: issue('qe'))
        burst(e, last=True)
        self.stamp("e_done")
        issue('end0')
        if cfg.sm:
            assert self.pbufs(0)[-1] == self.pbufs(1)[-1] == 0
            for i in range(4):
                A(f"v_mov_b32 v{vDab + i}, 0")
                A(f"v_mov_b32 v{vDcd + i}, 0")
        self.vm_wait("V1", " lgkmcnt(0)")
        A("s_barrier")
        self.stamp("bar0")
        for t in range(2):
            for j in range(4):
                A(self.k_read(0, 0, 0, t, j))
        for dt in range(8):
            for t in range(2):
                A(self.v_read(0, 0, 0, t, dt))
        issue('end1')
        nt_ = 3 + cfg.pf
        if cfg.pf:
            issue('end2')
            A(f"s_add_u32 s{sDead}, s{sSlot}, {3 * 16384}")
        if cfg.rot:
            A(f"s_add_u32 s{sGoff}, s6, {nt_ * 16384}")
            A(f"s_and_b32 s{sGoff}, s{sGoff}, {KBYTES - 1}")
        else:
            A(f"s_mov_b32 s{sGoff}, {nt_ * 16384}")
        A(f"s_add_u32 s{sSlot}, s{sSlot}, {slot_of(nt_) * 16384}")
        A("s_waitcnt lgkmcnt(15)")

    def zero_acc(self):
        for i in range(192):
            self.A(f"v_mov_b32 v{vO + i}, 0")
        for i in range(6):
            self.A(f"v_mov_b32 v{vL + i}, 0")

    def ub_list(self, cls):
        cfg = self.cfg
        out = []
        shared_beta = 2 if cls == 0 else 0
        for beta in range(4):
            units = list(cfg.order)
            if beta == shared_beta:
                units.insert(cfg.shared_pos, 5)
            for u in units:
                out.append((beta, u))
        return out

    def pbufs(self, cls):
        ubs = self.ub_list(cls)
        if not self.cfg.sm:
            return [n % 3 for n in range(len(ubs))]
        a, b, c, d, e = self.cfg.order
        out = []
        for beta in range(4):
            units = [u for (bb, u) in ubs if bb == beta]
            if 5 in units:
                assert units == [a, b, 5, c, d, e], units
                out += [1, 0, 2, 1, 0, 2]
            else:
                out += [1, 0, 2, 1, 0]
        n = len(out)
        assert all(out[i] != out[(i + 1) % n] for i in range(n))
        return out

    def sm_mfma(self, acc, lo):
        return f"v_smfmac_f32_16x16x64_bf16 v[{acc}:{acc + 3}], {self.ar(aSP)}, v[{vP + 4 * lo}:{vP + 4 * lo + 7}], v{vIDX}"

    def build_loop(self, cls):
        cfg = self.cfg
        ubs = self.ub_list(cls)
        PB = self.pbufs(cls)
        N = len(ubs)
        assert N % 3 == 0
        gaps = []
        slot_first = []
        later = []
        for n in range(N):
            nb, nu = ubs[(n + 1) % N]
            cb, cu = ubs[n]
            pb, pu = ubs[(n - 1) % N]
            mf = []
            for t in range(2):
                for j in range(4):
                    mf.append(self.qk_mfma(nu, (n + 1) % 3, nb % 2, t, j))
            for dt in range(8):
                mf.append(self.pv_mfma(pu, PB[(n - 1) % N], pb % 2, dt))
            if cfg.sm:
                ua, ub_, uc, ud, ue = cfg.order
                if pu == 5:
                    mf.append(self.ones_mfma(5, PB[(n - 1) % N]))
                elif pu in (ub_, ud):
                    up, lo_b = PB[(n - 2) % N], PB[(n - 1) % N]
                    assert up == lo_b + 1 and PB[n] not in (up, lo_b) and ubs[(n - 2) % N][1] == (ua if pu == ub_ else uc)
                    mf.append(self.sm_mfma(vDab if pu == ub_ else vDcd, lo_b))
            elif cfg.x_sm and pu in cfg.x_sm[1]:
                lo_b = vP + 4 * min((n - 2) % 3, (n - 1) % 3) if abs((n - 2) % 3 - (n - 1) % 3) == 1 else vP
                acc = aL + 4 * (cfg.x_sm[1].index(pu))
                mf.append(f"v_smfmac_f32_16x16x64_bf16 a[{acc}:{acc + 3}], {self.ar(aOnes)}, v[{lo_b}:{lo_b + 7}], v{vT + 9}")
            elif cfg.x_sm and pu in cfg.x_sm[0]:
                pass
            elif pu in self.ones:
                mf.append(self.ones_mfma(pu, (n - 1) % 3))
            slot_first.append(len(gaps))
            sb = vS + 8 * (n % 3)
            pbuf = vP + 4 * PB[n]
            adds = cu not in self.ones
            if cfg.sm:
                adds = (cu == cfg.order[4])
            if cfg.x_sm and (cu in cfg.x_sm[0] or cu in cfg.x_sm[1]):
                adds = False
            for i, m in enumerate(mf):
                g = dict(mfma=m, shadow=[], mem=[], valu=[], slot=n, pos=i, pre=[])
                if i < 16:
                    k = i // 2
                    if i % 2 == 0:
                        g['valu'].append(('E', f"v_exp_f32 v{sb + k}, v{sb + k}"))
                    else:
                        if k % 2 == 1:
                            g['valu'].append(('C', f"v_cvt_pk_bf16_f32 v{pbuf + k // 2}, v{sb + k - 1}, v{sb + k}"))
                        if adds and not cfg.dot2:
                            g['valu'].append(('A', f"v_add_f32 v{vL + cu}, v{vL + cu}, v{sb + k}"))
                        if adds and cfg.dot2 and k % 2 == 1:
                            later.append((len(gaps) + (2 if k < 7 else len(mf) - i + 1), ('A', f"v_dot2c_f32_bf16 v{vL + cu}, 0x3f803f80, v{pbuf + k // 2}")))
                gaps.append(g)
        slot_first.append(len(gaps))
        G = len(gaps)
        for gi, it in later:
            gaps[gi % G]['valu'].append(it)

        def used(g):
            if g.get('resv'):
                return 2
            c = 0
            for k, _ in g['valu']:
                c += 2 if k == 'E' else 1
            for k, _ in g['mem']:
                c += 2 if k == 'D' else 1
            c += len(g['pre'])
            return c

        def place(items, lo, hi, cost, key='mem', grp=None):
            free = []
            for gi in range(lo, hi):
                f = 2 - used(gaps[gi % G])
                if cost == 2:
                    if f >= 2:
                        free.append(gi)
                else:
                    free.extend([gi] * max(f, 0))
            n = len(items)
            if cost == 1 and cfg.single_first:
                uniq = []
                for gi in free:
                    if gi not in uniq and not gaps[gi % G]['mem']:
                        uniq.append(gi)
                if len(uniq) >= n:
                    free = uniq
            seed = cfg.jit.get((cls,) + grp) if grp else None
            if len(free) >= n and seed is not None:
                import random
                rnd = random.Random(seed)
                for _try in range(200):
                    if seed % 2:
                        sel = sorted(rnd.sample(free, n))
                    else:
                        sel = [free[rnd.randrange((i * len(free)) // n, max(((i + 1) * len(free)) // n, (i * len(free)) // n + 1))] for i in range(n)]
                    if cost == 1 or all(sel[i] + 3 <= sel[i + 1] for i in range(n - 1)):
                        break
                else:
                    raise ValueError("no placement")
            elif len(free) >= n:
                sel = [free[(i * len(free)) // n] for i in range(n)]
            else:
                sel = list(free)
                cand = [gi for gi in range(lo, hi) if not any(k == 'E' for k, _ in gaps[gi % G]['valu']) and not gaps[gi % G].get('resv')]
                cnt = {gi: used(gaps[gi % G]) + sel.count(gi) * cost for gi in cand}
                while len(sel) < n:
                    gi = min(cand, key=lambda x: (cnt[x], abs(x - (lo + hi) // 2)))
                    sel.append(gi)
                    cnt[gi] += cost
                sel.sort()
            for it, gi in zip(items, sel):
                gaps[gi % G][key].append(it)
            return sel

        bfirst = {}
        blast = {}
        for n, (b, u) in enumerate(ubs):
            bfirst.setdefault(b, n)
            blast[b] = n
        sh = cfg.bar_shift
        barpos = {}
        first = (cls == 1)
        for bb, sign in ((1, -1 if first else 1), (3, 1 if first else -1)):
            barpos[bb] = slot_first[bfirst[bb]] + sign * sh
        if cfg.barg:
            barpos = {1: cfg.barg[cls][0] + 1, 3: cfg.barg[cls][1] + 1}
        lg = " lgkmcnt(0)" if cfg.bar_lgkm else ""
        for bb in (1, 3):
            gi = barpos[bb] - 1
            if cfg.barg and cfg.bar_clear:
                g = gaps[gi]
                assert not any(k == 'E' for k, _ in g['valu']), (cls, bb, gi)
                mv = g['valu']
                g['valu'] = []
                gj = gi + 1
                while mv:
                    gj += 1
                    h = gaps[gj]
                    if any(k == 'E' for k, _ in h['valu']):
                        continue
                    if used(h) < 2:
                        h['valu'].insert(0, mv.pop(0))
                g['resv'] = True
                gaps[gi - 1]['shadow'].append(('BW', bb))
                g['shadow'].append(('B', "s_barrier"))
            else:
                gaps[gi - cfg.bar_wearly]['shadow'].append(('BW', bb))
                gaps[gi]['shadow'].append(('B', "s_barrier"))

        if cfg.br_gap:
            gi = cfg.br_gap[cls]
            g = gaps[gi]
            assert not any(k == 'E' for k, _ in g['valu']), (cls, gi)
            mv = g['valu']
            g['valu'] = []
            gj = gi + 1
            while mv:
                gj += 1
                h = gaps[gj]
                if any(k == 'E' for k, _ in h['valu']):
                    continue
                if used(h) < 2:
                    h['valu'].insert(0, mv.pop(0))
            g['resv'] = True
            g['norm_s'] = True
            gaps[gi - 1]['norm_s'] = True
            gaps[gi - 1]['shadow'].append(('L', f"s_sub_u32 s{sLoop}, s{sLoop}, 1"))
            gaps[gi - 1]['shadow'].append(('L', f"s_cmp_lg_u32 s{sLoop}, 0"))
            g['shadow'].append(('BR', f"s_cbranch_scc1 L_loop{cls}"))

        def dma_group(which, lo, hi, tag):
            base = LDS_K if which == 'K' else LDS_V
            items = [('D', self.dma(which)) for m in range(4)]
            sel = place(items, lo, hi, 2, grp=('D',) + tag)
            assert all(sel[i] + 3 <= sel[i + 1] for i in range(3)), sel
            prev = None
            for m, gi in enumerate(sel):
                gaps[gi - 1]['shadow'].append(('S', f"s_add_u32 m0, s{sSlot}, {base + m * 4096}"))
                gaps[gi - 2]['shadow'].append(('S', f"s_add_u32 s{sSoff}, s{sGoff}, {m * 4096}"))
                gaps[gi].setdefault('dtag', []).append(tag)
            return sel

        for bb in (1, 3):
            nxt = (bb + 1) % 4
            lo = max(barpos[bb] + 3, slot_first[bfirst[bb]] + 3)
            selk = dma_group('K', lo, slot_first[blast[bb] + 1], ('K', bb))
            lo2 = slot_first[bfirst[nxt]] + 3
            nb_bar = barpos[(nxt + 1) % 4]
            hi2 = min(slot_first[blast[nxt] + 1] - (sh + 2), nb_bar - 3)
            selv = dma_group('V', lo2, hi2, ('V', bb))
            gi = selv[-1] + 1
            adv = self.advance_tile()
            for i, x in enumerate(adv):
                for y in (x if isinstance(x, list) else [x]):
                    gaps[gi + i]['shadow'].append(('S', y))

        if cfg.spreadx:
            pass
        need_wait = {}
        xitems = {}
        for beta in range(4):
            nb = (beta + 1) % 4
            L = nb % 2
            slotpar = (nb // 2) if nb != 0 else 0
            lo = slot_first[bfirst[beta]]
            hi = slot_first[blast[beta] + 1]
            crosses = (beta % 2 == 1)
            loK = lo
            vl = cfg.vlate if beta != 3 else 0
            if crosses:
                lo = max(lo, barpos[beta])
                loK = lo
                hiK = slot_first[blast[beta]] - 4
                hiV = hi + vl
            else:
                hiK = slot_first[blast[beta]] - 4
                if beta != 0:
                    loK = lo - cfg.kearly
                if cfg.bar_lgkm and cfg.pf:
                    hiV = min(hi + vl, barpos[nb] - cfg.bar_wearly - 8)
                elif cfg.bar_lgkm:
                    endb = min(hi, barpos[nb])
                    hiV = endb - 8
                else:
                    hiV = hi + vl
            if beta == 3 and not cfg.spreadx:
                tog = [('X', f"v_xor_b32 v{r}, 0x8000, v{r}") for r in (vKA, vVA, vVA + 1)]
                for i, it in enumerate(tog):
                    gaps[lo - 0 + 0]['pre'].append(it)
                tog2 = [('X', f"v_xor_b32 v{r}, 0x8000, v{r}") for r in (vKA + 1, vVA + 2, vVA + 3)]
                for it in tog2:
                    gaps[lo]['pre'].append(it)
                lo += 1
                loK = lo
            kitems = [('R', self.k_read(nb % 2, L, slotpar, t, j), ('K', nb)) for t in range(2) for j in range(4)]
            kitems = [(k, txt) for k, txt, tag in kitems]
            selK = place(kitems, loK, hiK, 1, grp=('K', beta))
            loV = max(lo, slot_first[bfirst[beta] + 1] - cfg.vearly)
            vitems = [('T', self.v_read(nb % 2, L, slotpar, t, dt)) for dt in range(8) for t in range(2)]
            selV = place(vitems, loV, hiV, 1, grp=('V', beta))
            if cfg.vearly:
                s0 = slot_first[bfirst[beta]]
                for i, gi in enumerate(selV):
                    assert gi >= s0 + 8 + i // 2, (beta, i, gi, s0)
            xitems[beta] = (min(selK + selV), max(selK + selV))
            need_wait[slot_first[blast[beta]]] = ('K', nb % 2)
            sl = (bfirst[nb] + 1) % N
            need_wait[slot_first[sl] + 8] = ('V', nb % 2)
        if cfg.spreadx:
            w0 = (xitems[1][1] + 1, xitems[3][0])
            w1 = (xitems[2][1] + 1, min(G, G + xitems[0][0]))
            place([('X', f"v_xor_b32 v{r}, 0x8000, v{r}") for r in (vKA, vVA, vVA + 1)], w0[0], w0[1], 1, key='valu', grp=('X', 0))
            place([('X', f"v_xor_b32 v{r}, 0x8000, v{r}") for r in (vKA + 1, vVA + 2, vVA + 3)], w1[0], w1[1], 1, key='valu', grp=('X', 1))

        seq = []
        for gi, g in enumerate(gaps):
            if gi in need_wait:
                seq.append(('LW', need_wait[gi]))
            seq.append(('M', g['mfma']))
            if cfg.stamps and cfg.loop_stamps and g['pos'] == 0 and cfg.loop_stamps[0] <= g['slot'] < cfg.loop_stamps[1]:
                i = g['slot'] - cfg.loop_stamps[0]
                seq.append(('S', f"s_memtime s[{sPS + 2 * i}:{sPS + 2 * i + 1}]"))
                if cls == 0:
                    self.stamp_names.append(f"slot{g['slot']}")
            for it in g['shadow']:
                seq.append(it)
            for it in g['pre']:
                seq.append(it)
            for it in g['mem']:
                seq.append(it)
            for it in g['valu']:
                seq.append(it)
        out = []
        for it in seq:
            if it[0] == 'LW':
                idx = max(i for i, x in enumerate(out) if x[0] == 'M') if any(x[0] == 'M' for x in out) else None
                if idx is None:
                    out.append(it)
                else:
                    out.insert(idx + 1, it)
            else:
                out.append(it)
        seq = out
        if cfg.br_gap:
            ib = next(i for i, (k, x) in enumerate(seq) if k == 'BR')
            ic = next(i for i, (k, x) in enumerate(seq) if k == 'L' and x.startswith("s_cmp"))
            assert all(k not in ('S',) for k, x in seq[ic:ib]), seq[ic:ib]
            il = next(i for i, (k, x) in enumerate(seq) if k == 'L')
            assert all(i < il for i, (k, x) in enumerate(seq) if x is not None and isinstance(x, str) and x.startswith("s_cselect")), "tile advance behind the loop counter"
        dts = []
        for gi, g in enumerate(gaps):
            for t in g.get('dtag', []):
                dts.append(t)
        order = []
        di = 0
        for k, x in seq:
            if k == 'D':
                order.append(dts[di]); di += 1
            elif k == 'BW':
                order.append(('BW', x))
        two = order + order + order
        bwn = {}
        for i in range(2 * len(order), len(two)):
            if two[i][0] == 'BW':
                bb = two[i][1]
                vs = [jj for jj in range(i) if two[jj][0] == 'V']
                assert two[vs[-1]] == ('V', 4 - bb) and len([1 for jj in vs[-4:] if two[jj] == ('V', 4 - bb)]) == 4
                j = vs[-1 - 4 * (1 + cfg.pf)]
                bwn[bb] = sum(1 for jj in range(j + 1, i) if two[jj][0] in ('K', 'V'))
                assert bwn[bb] == 8 * (1 + cfg.pf), bwn
        seq = [(('W', f"s_waitcnt vmcnt({bwn[x]}){lg}") if k == 'BW' else (k, x)) for k, x in seq]
        self.bwn = bwn
        issued = 0
        last_write = {}
        res = {}
        for it_no in range(2):
            for i, (k, x) in enumerate(seq):
                if k in ('R', 'T'):
                    issued += 1
                    d = int(x.split('a[')[1].split(':')[0])
                    if aKF <= d < aKF + 64:
                        last_write[('K', (d - aKF) // 32)] = issued
                    else:
                        last_write[('V', (d - aVF) // 32)] = issued
                elif k == 'W':
                    pass
                elif k == 'LW' and it_no == 1:
                    n_out = issued - last_write[x]
                    res[i] = min(n_out, 15)
        final = []
        for i, (k, x) in enumerate(seq):
            if k == 'LW':
                final.append(('W', f"s_waitcnt lgkmcnt({res[i]})"))
            else:
                final.append((k, x))
        rd = [x for k, x in final if k in ('R', 'T')]
        self.last_rd = rd[-1]
        if cfg.x_drop:
            final = [(k, x) for k, x in final if k not in cfg.x_drop]
        lastd = int(rd[-1].split('a[')[1].split(':')[0])
        assert aVF <= lastd < aVF + 32, rd[-1]
        over = sum(max(0, used(g) - 2) for g in gaps)
        self.stats = dict(gaps=G, overflow=over, bwn=bwn, bar=barpos)
        return final

    def main_loop(self, cls):
        A = self.A
        seq = self.build_loop(cls)
        ubs = self.ub_list(cls)
        b0, u0 = ubs[0]
        for t in range(2):
            for j in range(4):
                A(self.qk_mfma(u0, 0, 0, t, j))
        A("s_nop 7")
        A(f"s_mov_b32 s{sLoop}, 15")
        if self.cfg.stamps:
            A(f"s_memtime s[{sStamp + 4}:{sStamp + 5}]")
        A("s_waitcnt lgkmcnt(0)") if self.cfg.stamps else None
        if self.cfg.stamps and self.cfg.iter_stamps:
            A(f"v_mov_b32 v{self.vst}, 0")
            if self.cfg.iter_rt:
                A(f"s_memrealtime s[{sPS + 32}:{sPS + 33}]")
                A("s_waitcnt lgkmcnt(0)")
            else:
                A(f"s_mov_b32 s{sPS + 32}, s{sStamp + 4}")
        if self.cfg.br_gap:
            ib = next(i for i, (k, x) in enumerate(seq) if k == 'BR')
            part1, part2 = seq[:ib + 1], seq[ib + 1:]

            def emit2():
                for k, x in part2:
                    A(x)
                if self.cfg.stamps and self.cfg.iter_stamps:
                    A(f"s_add_u32 m0, s{sLoop}, 1")
                    A("s_nop 0")
                    A(f"v_writelane_b32 v{self.vst}, s{sPS + 32}, m0")
                    A(f"{'s_memrealtime' if self.cfg.iter_rt else 's_memtime'} s[{sPS + 32}:{sPS + 33}]")
            A(f"s_branch L_mid{cls}")
            A(".p2align 6")
            self.label(f"L_loop{cls}")
            emit2()
            self.label(f"L_mid{cls}")
            for k, x in part1:
                A(x)
            emit2()
            if self.cfg.stamps:
                A(f"s_memtime s[{sStamp + 6}:{sStamp + 7}]")
            self.tail(cls, ubs)
            return
        A(".p2align 6")
        self.label(f"L_loop{cls}")
        for k, x in seq:
            A(x)
        if self.cfg.stamps and self.cfg.iter_stamps:
            A(f"s_mov_b32 m0, s{sLoop}")
            A("s_nop 0")
            A(f"v_writelane_b32 v{self.vst}, s{sPS + 32}, m0")
            A(f"s_memtime s[{sPS + 32}:{sPS + 33}]")
        A(f"s_sub_u32 s{sLoop}, s{sLoop}, 1")
        A(f"s_cmp_lg_u32 s{sLoop}, 0")
        A(f"s_cbranch_scc1 L_loop{cls}")
        if self.cfg.stamps:
            A(f"s_memtime s[{sStamp + 6}:{sStamp + 7}]")
        self.tail(cls, ubs)

    vW, vR, vG, vX, vXS = 228, 230, 231, 234, 235
    STG = LDS_V
    vG16, vLmin, vLmax = vT, vT + 1, vT + 2
    KX = LDS_K + 16384
    sRowU = {u: sArg + u for u in range(6)}

    def out_addr_setup(self):
        A = self.A
        ln, t0, t1, r = vS, vS + 1, vS + 2, vS + 3
        A(f"v_mbcnt_lo_u32_b32 v{ln}, -1, 0")
        A(f"s_mul_i32 s{sArg}, s{sWave}, {80 * 256}")
        A(f"v_mbcnt_hi_u32_b32 v{ln}, -1, v{ln}")
        for u in range(1, 5):
            A(f"s_add_u32 s{sArg + u}, s{sArg}, {u * 4096}")
        if not self.cfg.direct:
            A(f"s_mul_i32 s{sT2}, s{sWave}, 4608")
            A(f"s_add_u32 s{sT2}, s{sT2}, {self.STG}")
        if self.cfg.direct:
            A(f"v_and_b32 v{t0}, 15, v{ln}")
            A(f"v_bfe_u32 v{t1}, v{ln}, 4, 1")
            A(f"v_lshlrev_b32 v{r}, 8, v{t0}")
            A(f"v_lshl_add_u32 v{r}, v{t1}, 5, v{r}")
            A(f"v_lshrrev_b32 v{t1}, 5, v{ln}")
            A(f"v_lshl_add_u32 v{r}, v{t1}, 4, v{r}")
            A(f"v_accvgpr_write_b32 a{aAddr + 2}, v{r}")
        elif self.cfg.fullrow:
            A(f"v_and_b32 v{t0}, 15, v{ln}")
            A(f"v_lshrrev_b32 v{t1}, 4, v{ln}")
            A(f"v_lshlrev_b32 v{r}, 8, v{t0}")
            A(f"v_lshl_add_u32 v{r}, v{t1}, 3, v{r}")
            A(f"v_add_u32 v{r}, s{sT2}, v{r}")
            A(f"v_lshrrev_b32 v{ln + 4}, 1, v{t0}")
            A(f"v_lshl_add_u32 v{r}, v{ln + 4}, 4, v{r}")
            A(f"v_accvgpr_write_b32 a{aAddr}, v{r}")
            A(f"v_lshlrev_b32 v{r}, 4, v{ln}")
            A(f"v_add_u32 v{r}, s{sT2}, v{r}")
            A(f"v_lshrrev_b32 v{t1}, 1, v{t1}")
            A(f"v_lshl_add_u32 v{r}, v{t1}, 4, v{r}")
            A(f"v_accvgpr_write_b32 a{aAddr + 1}, v{r}")
        else:
            A(f"v_and_b32 v{t0}, 15, v{ln}")
            A(f"v_lshrrev_b32 v{t1}, 4, v{ln}")
            A(f"v_mul_u32_u24 v{r}, 272, v{t0}")
            A(f"v_lshl_add_u32 v{r}, v{t1}, 3, v{r}")
            A(f"v_add_u32 v{r}, s{sT2}, v{r}")
            A(f"v_accvgpr_write_b32 a{aAddr}, v{r}")
            A(f"v_lshrrev_b32 v{t0}, 3, v{ln}")
            A(f"v_and_b32 v{t1}, 7, v{ln}")
            A(f"v_lshlrev_b32 v{t1}, 4, v{t1}")
            A(f"v_mul_u32_u24 v{r}, 272, v{t0}")
            A(f"v_add3_u32 v{r}, v{r}, v{t1}, s{sT2}")
            A(f"v_accvgpr_write_b32 a{aAddr + 1}, v{r}")
            A(f"v_lshl_add_u32 v{r}, v{t0}, 8, v{t1}")
            A(f"v_accvgpr_write_b32 a{aAddr + 2}, v{r}")
        A(f"v_lshlrev_b32 v{ln}, 4, v{ln}")
        A(f"v_accvgpr_write_b32 a{aAddr + 3}, v{ln}")

    def out_addr_items(self):
        o = [f"v_accvgpr_read_b32 v{self.vW}, a{aAddr}",
             f"v_accvgpr_read_b32 v{self.vR}, a{aAddr + 1}"] if not self.cfg.direct else []
        if not self.cfg.fullrow:
            o += [f"v_accvgpr_read_b32 v{self.vG}, a{aAddr + 2}"]
        o += [f"v_accvgpr_read_b32 v{self.vG16}, a{aAddr + 3}",
             f"s_lshl_b32 s{sT1}, s{sWave}, 10",
             f"v_add_u32 v{self.vX}, s{sT1}, v{self.vG16}",
             f"v_add_u32 v{self.vXS}, {LDS_SP}, v{self.vX}"]
        return o

    vR8, vG8, vW8 = 232, 233, 229

    def half8_addr_items(self):
        return [It(f"v_lshrrev_b32 v{self.vR8}, 7, v{self.vG16}"),
                It(f"v_and_b32 v{self.vG8}, 0x70, v{self.vG16}"),
                It(f"v_lshl_add_u32 v{self.vG8}, v{self.vR8}, 8, v{self.vG8}"),
                It(f"v_lshrrev_b32 v{self.vR8}, 1, v{self.vR8}"),
                It(f"s_lshl_b32 s{sT1}, s{sWave}, 14"),
                It(f"v_lshl_add_u32 v{self.vR8}, v{self.vR8}, 4, v{self.vG8}"),
                It(f"s_add_u32 s{sT1}, s{sT1}, {LDS_SP}"),
                It(f"s_mul_i32 s{sT2}, s{sWave}, 4608"),
                It(f"v_add_u32 v{self.vR8}, s{sT1}, v{self.vR8}"),
                It(f"s_sub_u32 s{sT1}, s{sT1}, s{sT2}"),
                It(f"s_sub_u32 s{sT1}, s{sT1}, {self.STG}"),
                It(f"v_add_u32 v{self.vW8}, s{sT1}, v{self.vW}")]

    def H_items(self, base, rinv, tag, stg_half, half8=False):
        o = []
        pk = self.cfg.pkmul
        if self.cfg.direct:
            for jj in range(2):
                x0 = base + 8 * jj
                for x in (x0, x0 + 4):
                    if pk:
                        for r in (0, 2):
                            o.append(It(f"v_pk_mul_f32 v[{x + r}:{x + r + 1}], v[{x + r}:{x + r + 1}], v[{rinv & ~1}:{(rinv & ~1) + 1}] op_sel:[0,{rinv & 1}] op_sel_hi:[1,{rinv & 1}]"))
                    else:
                        for r in range(4):
                            o.append(It(f"v_mul_f32 v{x + r}, v{x + r}, v{rinv}"))
            for jj in range(2):
                x0 = base + 8 * jj
                for i in range(4):
                    o.append(It(f"v_cvt_pk_bf16_f32 v{x0 + i}, v{x0 + 2 * i}, v{x0 + 2 * i + 1}"))
            for jj in range(2):
                x0 = base + 8 * jj
                o.append(It(f"v_permlane16_swap_b32 v{x0}, v{x0 + 2}"))
                o.append(It(f"v_permlane16_swap_b32 v{x0 + 1}, v{x0 + 3}"))
            if self.cfg.x_nomul:
                o = [x for x in o if "mul_f32" not in x.txt]
            return o
        for jj in range(2):
            for j in (2 * jj, 2 * jj + 1):
                x = base + 4 * j
                if pk:
                    for r in (0, 2):
                        o.append(It(f"v_pk_mul_f32 v[{x + r}:{x + r + 1}], v[{x + r}:{x + r + 1}], v[{rinv & ~1}:{(rinv & ~1) + 1}] op_sel:[0,{rinv & 1}] op_sel_hi:[1,{rinv & 1}]"))
                else:
                    for r in range(4):
                        o.append(It(f"v_mul_f32 v{x + r}, v{x + r}, v{rinv}"))
            for j in (2 * jj, 2 * jj + 1):
                x = base + 4 * j
                o.append(It(f"v_cvt_pk_bf16_f32 v{x}, v{x}, v{x + 1}"))
                o.append(It(f"v_cvt_pk_bf16_f32 v{x + 1}, v{x + 2}, v{x + 3}"))
            x = base + 8 * jj
            d0 = 16 * stg_half + 8 * jj
            wreg = self.vW8 if (self.cfg.fullrow and half8) else self.vW
            o.append(It(f"ds_write2_b64 v{wreg}, v[{x}:{x + 1}], v[{x + 4}:{x + 5}] offset0:{d0} offset1:{d0 + 4}", ds=True))
        if self.cfg.fullrow and half8:
            for i in range(2):
                o.append(It(f"ds_read_b128 v[{base + 4 * i}:{base + 4 * i + 3}], v{self.vR8} offset:{i * (2048 + 64) + stg_half * 128}", ds=(tag, i)))
        elif self.cfg.fullrow:
            if stg_half == 1:
                ob = base - 16
                for i in range(4):
                    o.append(It(f"ds_read_b128 v[{ob + 4 * i}:{ob + 4 * i + 3}], v{self.vR} offset:{i * (1024 + 32)}", ds=(tag, i)))
        else:
            for i in range(2):
                o.append(It(f"ds_read_b128 v[{base + 4 * i}:{base + 4 * i + 3}], v{self.vR} offset:{i * 8 * 272 + stg_half * 128}", ds=(tag, i)))
        if self.cfg.x_nomul:
            o = [x for x in o if "mul_f32" not in x.txt]
        if self.cfg.x_nods:
            o = [x for x in o if not x.txt.startswith("ds_write")]
        return o

    def S_items(self, base, tag, srow, h, half8=False):
        o = []
        nt = self.cfg.st_mod
        if self.cfg.fullrow:
            if half8:
                for i in range(2):
                    r = base + 4 * i
                    o.append(It(f"buffer_store_dwordx4 v[{r}:{r + 3}], v{self.vG8}, s[{sO}:{sO + 3}], s{srow} offen offset:{i * 2048 + h * 128}{nt}", needs=[(tag, i)]))
            elif h == 1:
                for i in range(4):
                    r = base - 16 + 4 * i
                    o.append(It(f"buffer_store_dwordx4 v[{r}:{r + 3}], v{self.vG16}, s[{sO}:{sO + 3}], s{srow} offen offset:{i * 1024}{nt}", needs=[(tag, i)]))
            if self.cfg.x_nostore:
                o = [It("s_nop 0", needs=x.needs) for x in o]
            return o
        if self.cfg.direct:
            for i in range(2):
                r = base + 8 * i
                o.append(It(f"buffer_store_dwordx4 v[{r}:{r + 3}], v{self.vG}, s[{sO}:{sO + 3}], s{srow} offen offset:{h * 128 + i * 64}{nt}"))
            if self.cfg.x_nostore:
                o = [It("s_nop 0") for x in o]
            return o
        for i in range(2):
            r = base + 4 * i
            o.append(It(f"buffer_store_dwordx4 v[{r}:{r + 3}], v{self.vG}, s[{sO}:{sO + 3}], s{srow} offen offset:{i * 2048 + h * 128}{nt}", needs=[(tag, i)]))
        if self.cfg.x_nostore:
            o = [It("s_nop 0", needs=x.needs) for x in o]
        return o

    def lim_items(self, r):
        if not self.lim_started:
            self.lim_started = True
            return [It(f"v_mov_b32 v{self.vLmin}, v{r}"), It(f"v_mov_b32 v{self.vLmax}, v{r}")]
        return [It(f"v_min_f32 v{self.vLmin}, v{self.vLmin}, v{r}"), It(f"v_max_f32 v{self.vLmax}, v{self.vLmax}, v{r}")]

    def F1_items(self, u):
        r = vL + u
        tt = vT + 5
        o = []
        if self.cfg.x_tna:
            o.append(It(f"v_accvgpr_read_b32 v{vT + 4}, a{self.aLidx[0]}"))
            o.append(It(f"v_add_f32 v{r}, v{r}, v{vT + 4}"))
        elif u in self.ones and self.cfg.sm and not self.in_fb:
            o.append(It(f"v_accvgpr_read_b32 v{vT + 4}, a{self.aLidx[u]}"))
            o.append(It(f"v_add_f32 v{r}, v{r}, v{vT + 4}"))
        elif u in self.ones:
            o.append(It(f"v_accvgpr_read_b32 v{r}, a{self.aLidx[u]}"))
        else:
            o += [It(f"v_mov_b32 v{tt}, v{r}"), None, None,
                  It(f"v_permlane16_swap_b32 v{r}, v{tt}"), None,
                  It(f"v_add_f32 v{r}, v{r}, v{tt}"),
                  It(f"v_mov_b32 v{tt}, v{r}"), None, None,
                  It(f"v_permlane32_swap_b32 v{r}, v{tt}"), None,
                  It(f"v_add_f32 v{r}, v{r}, v{tt}")]
        o += self.lim_items(r)
        o += [It(f"v_rcp_f32 v{r}, v{r}"), It("s_nop 0") if self.cfg.direct else None]
        return o

    @staticmethod
    def weave(prim, fill):
        fill = list(fill)
        out = []
        for x in prim:
            if x is None:
                out.append(fill.pop(0) if fill else It("s_nop 0"))
            else:
                out.append(x)
        return out + fill

    def t_emit(self, items):
        for it in items:
            if isinstance(it, str):
                it = It(it)
            for tag in it.needs:
                idx = self.ds_tag[tag]
                if idx > self.ds_done:
                    n = min(self.ds_issued - idx, 15)
                    self.A(f"s_waitcnt lgkmcnt({n})")
                    self.ds_done = self.ds_issued - n
            for x in (it.txt if isinstance(it.txt, list) else [it.txt]):
                self.A(x)
            if it.ds is not None:
                self.ds_issued += 1
                if it.ds is not True:
                    self.ds_tag[it.ds] = self.ds_issued
            if it.txt == "s_waitcnt lgkmcnt(0)":
                self.ds_done = self.ds_issued

    def t_slot(self, qk=None, pv=None, sm=None, bg=(), pv_first=False, need_qk=(), need_pv=(), bg_lo=0, bg_hi=None, late=()):
        mq, mp = [], []
        if qk:
            u, sbuf, kbuf = qk
            mq = [It(self.qk_mfma(u, sbuf, kbuf, t, j)) for t in range(2) for j in range(4)]
            mq[0].needs = list(need_qk)
        if pv:
            u, pbuf, vbuf = pv
            mp = [It(self.pv_mfma(u, pbuf, vbuf, dt)) for dt in range(8)]
            mp[0].needs = list(need_pv)
            if u in self.ones:
                mp.append(It(self.ones_mfma(u, pbuf)))
        mf = mp + mq if pv_first else mq + mp
        n = len(mf)
        fill = [[] for _ in range(n + 1)]
        if sm:
            E, C, Ad = self.sm_items(*sm)
            if n >= 16:
                for k in range(8):
                    fill[2 * k].append(E[k])
                    if k in C:
                        fill[2 * k + 1].append(C[k])
                    if k in Ad:
                        fill[2 * k + 1].append(Ad[k])
            else:
                assert n >= 8
                for k in range(8):
                    fill[k].append(E[k])
                    nx = k + 1 if k + 1 < 8 else n
                    if k in C:
                        fill[nx].append(C[k])
                    if k in Ad:
                        fill[nx].append(Ad[k])
                if n == 8:
                    fill[8].insert(0, "s_nop 0")
        bg = list(bg)
        bgat = [[] for _ in range(n + 1)]
        hi = n if bg_hi is None else bg_hi
        for i, m in enumerate(bg):
            bgat[bg_lo + (i * (hi - bg_lo)) // len(bg)].append(m)
        bg = None
        for pos, its in late:
            bgat[pos] += its
        seq = []
        for i, m in enumerate(mf):
            seq.append(m)
            seq += fill[i]
            seq += bgat[i]
        seq += fill[n] + bgat[n]
        self.t_emit(seq)

    def tail(self, cls, ubs):
        A = self.A
        cfg = self.cfg
        N = len(ubs)
        self.in_tail = True
        assert cfg.delta == 5
        assert slot_of(31) == 2 and slot_of(30) == 1
        vX, vXS, vG16 = self.vX, self.vXS, self.vG16
        KX = self.KX
        sRowU = self.sRowU
        a = ubs[0][1]
        rest = [u for u in (0, 1, 2, 3, 4) if u != a]
        rest = [u for u in rest if u in self.ones] + [u for u in rest if u not in self.ones]
        b, c, d, e = rest
        assert e not in self.ones
        own = [a, b, c, d, e]
        self.own = own
        tl = [(u, L) for u in own for L in range(2)]
        if cls == 1:
            tl.insert(1, (5, 0))
        M = len(tl)
        idx = {ub: i for i, ub in enumerate(tl)}
        self.lim_started = False
        self.ds_issued, self.ds_done, self.ds_tag = 0, -1, {'V0': 0}

        bg = {i: [] for i in range(M + 2)}
        late = {i: [] for i in range(M + 2)}
        Hu = lambda u, h: self.H_items(vO + 32 * u + 16 * h, vL + u, (u, h), h)
        Su = lambda u, h: self.S_items(vO + 32 * u + 16 * h, (u, h), sRowU[u], h)

        kl1 = [It(self.k_read(1, 1, 0, t, j), ds=True) for t in range(2) for j in range(4)]
        kl1[-1].ds = 'K1'
        vl1 = [It(self.v_read(1, 1, 0, t, dt), ds=True) for dt in range(8) for t in range(2)]
        vl1[-1].ds = 'V1'
        self.t_emit(kl1)
        addr = [It(x) for x in self.out_addr_items()]
        O5 = vO + 160

        def shared_out():
            o = [It(f"ds_write_b128 v{vXS}, v[{O5 + 4 * i}:{O5 + 4 * i + 3}] offset:{i * 4096}", ds=True) for i in range(8)]
            o.insert(4, It(f"v_accvgpr_read_b32 v{vT + 6}, a{self.aLidx[5]}"))
            o.append(It(f"ds_write_b32 v{vX}, v{vT + 6} offset:{KX}", ds=True))
            return o
        bar = [It("s_waitcnt lgkmcnt(0)"), It("s_barrier")]

        for u in own:
            f = idx[(u, 1)] + 1
            f1 = self.F1_items(u)
            if u in self.ones:
                bg[f + 1].append(('F1', [x if x is not None else It("s_nop 0") for x in f1]))
            else:
                bg[f].append(('F', f1))
            ru = cfg.rush if own.index(u) < cfg.rush_units else 0
            if u != e and ru:
                g0 = f if ru == 3 else f + 1
                if ru == 3 and u in self.ones:
                    x = bg[f + 1].pop()
                    assert x[0] == 'F1'
                    bg[f].append(('F1', [It("s_nop 7")] + x[1]))
                bg[g0].append(('H', Hu(u, 0)))
                bg[g0].append(('H', Hu(u, 1)))
                if ru == 1:
                    bg[f + 2].append(('S', Su(u, 0) + Su(u, 1)))
                else:
                    bg[g0].append(('S2', Su(u, 0) + Su(u, 1)))
            elif u != e:
                bg[f + 1].append(('H', Hu(u, 0)))
                bg[f + 2].append(('H', Hu(u, 1)))
                bg[f + 2].append(('S', Su(u, 0)))
                if f + 3 <= M:
                    bg[f + 3].append(('S', Su(u, 1)))
        fd = idx[(d, 1)] + 1
        assert fd + 2 == M

        def assemble(lst):
            F = [x for k, l in lst if k == 'F' for x in l]
            Hs = [x for k, l in lst if k == 'F1' for x in l] + [x for k, l in lst if k == 'H' for x in l]
            S_ = [x for k, l in lst if k == 'S' for x in l]
            X = [x for k, l in lst if k == 'X' for x in l]
            X0 = [x for k, l in lst if k == 'X0' for x in l]
            S2 = [x for k, l in lst if k == 'S2' for x in l]
            if S2:
                X = X + S2
            return F, Hs, S_, X, X0

        if cfg.sm:
            ua, ub_, uc, ud, ue = cfg.order
            assert ua in self.ones and ub_ in self.ones and uc not in self.ones and ud not in self.ones
            mg = [It(f"v_add_f32 v{vL + ub_}, v{vDab}, v{vDab + 1}"),
                  It(f"v_add_f32 v{vL + ua}, v{vDab + 2}, v{vDab + 3}"),
                  It(f"v_add_f32 v{vDcd}, v{vDcd}, v{vDcd + 1}"),
                  It(f"v_add_f32 v{vDcd + 2}, v{vDcd + 2}, v{vDcd + 3}"),
                  It(f"v_fmac_f32 v{vL + ud}, 0x3e800000, v{vDcd}"),
                  It(f"v_fmac_f32 v{vL + uc}, 0x3e800000, v{vDcd + 2}")]
            if cfg.stamps and cfg.iter_stamps:
                mg.append(It(f"v_mov_b32 v245, v{self.vst}"))
            late[0].append(mg)
        if cls == 0:
            bg[1].append(('X', addr))
            bg[2].append(('X', shared_out()))
            barslot, barpos = 3, cfg.barA
            ACC, TMP = O5, O5 + 16
            L5 = [vL + 5, vT + 7, vT + 8, vT + 9]
            vXR = vXS
            rd = lambda s_, dst: [It(f"ds_read_b128 v[{dst + 4 * j}:{dst + 4 * j + 3}], v{vXR} offset:{j * 4096 + s_ * 1024}", ds=('P', s_, j)) for j in range(4)]
            ad = lambda s_: [It(f"v_add_f32 v{ACC + k}, v{ACC + k}, v{TMP + k}", needs=([('P', s_, k // 4)] + ([('P', 0, 3)] if k == 0 else []))) for k in range(16)]
            pre = [It(f"s_lshl_b32 s{sT1}, s{sP}, 14"),
                   It(f"s_add_u32 s{sT1}, s{sT1}, {LDS_SP}"),
                   It(f"v_add_u32 v{vXR}, s{sT1}, v{vG16}"),
                   It(f"s_lshl_b32 s{sRowU[5]}, s{sP}, 7"),
                   It(f"s_add_u32 s{sRowU[5]}, s{sRowU[5]}, {320 * 256}")]
            lrd = [It(f"ds_read_b32 v{L5[ww]}, v{vG16} offset:{KX + ww * 1024}", ds=('L5', ww)) for ww in range(4)]
            bg[4].append(('X0', pre + rd(0, ACC) + rd(1, TMP) + lrd))
            bg[4].append(('X', ad(1)))
            bg[5].append(('X0', rd(2, TMP)))
            lsum = [It(f"v_add_f32 v{L5[0]}, v{L5[0]}, v{L5[1]}", needs=[('L5', 3)]),
                    It(f"v_add_f32 v{L5[2]}, v{L5[2]}, v{L5[3]}"),
                    It(f"v_add_f32 v{L5[0]}, v{L5[0]}, v{L5[2]}")]
            bg[5].append(('X', ad(2) + lsum))
            bg[6].append(('X0', rd(3, TMP)))
            bg[6].append(('X', self.lim_items(L5[0]) + [It(f"v_rcp_f32 v{L5[0]}, v{L5[0]}")] + ad(3)))
            if cfg.fullrow:
                bg[6].append(('X', self.half8_addr_items()))
            bg[7].append(('X', self.H_items(ACC, L5[0], (5, 0), 0, half8=True)))
            bg[8].append(('X', self.S_items(ACC, (5, 0), sRowU[5], 0, half8=True)))
        else:
            bg[1].append(('X', addr))
            bg[3].append(('X0', shared_out()))
            barslot, barpos = 3, cfg.barB

        for n in range(M + 1):
            qk = None
            if n + 1 < M:
                u1, L1 = tl[n + 1]
                qk = (u1, (n + 1) % 3, L1)
            psh = 1 if cfg.sm else 0
            if n == 0:
                pb, pu = ubs[N - 1]
                pv = (pu, self.pbufs(cls)[-1], pb % 2)
                assert pv[1] == (psh - 1) % 3
            else:
                u0, L0 = tl[n - 1]
                pv = (u0, (n - 1 + psh) % 3, L0)
            sm = None
            if n < M:
                u, L = tl[n]
                sm = (u, n % 3, (n + psh) % 3)
            need_qk = ['K1'] if (qk and tl[n + 1] == (a, 1)) else []
            need_pv = []
            if n >= 1 and tl[n - 1] == (a, 0):
                need_pv = ['V0']
            if n >= 1 and tl[n - 1] == (a, 1):
                need_pv = ['V1']
            F, Hs, S_, X, X0 = assemble(bg[n])
            head = self.weave(F, Hs) if F else Hs
            half = len(head) // 2
            lst = X0 + head[:half] + S_ + head[half:] + X
            lt = []
            pvf = False
            if n == 0:
                if cls == 0:
                    pvf = True
                    nm = 8 + (1 if pv[0] in self.ones else 0)
                    lt.append((nm, vl1[:8]))
                    lt.append((nm + 4, vl1[8:]))
                else:
                    nm = 16 + (1 if pv[0] in self.ones else 0)
                    lt.append((nm, vl1))
            for mg in late[n]:
                lt.append((6, mg))
            if n == barslot and not (cfg.block and cls == 0):
                lt.append((barpos, bar))
            if qk is None:
                self.t_emit(["s_nop 1"])
            lo, hi = 0, None
            if any(k == 'F1' for k, l in bg[n]):
                lo = 4
            if cls == 1 and n == barslot:
                hi = 10
            if cfg.block and n >= 3 and not (cls == 1 and n == barslot):
                nm = (8 if qk else 0) + 8 + (1 if pv[0] in self.ones else 0)
                lt.append((0, X0))
                if n == barslot:
                    k = cfg.barA_blk
                    blk = S_ + head + X
                    lt.append((nm, blk[:k] + bar + blk[k:]))
                else:
                    lt.append((nm, S_ + head + X))
                lst = []
            self.t_slot(qk=qk, pv=pv, sm=sm, bg=lst, pv_first=pvf, need_qk=need_qk, need_pv=need_pv, bg_lo=lo, bg_hi=hi, late=lt)
            if cls == cfg.stamp_cls and n in (0, 2, 3, 4, 5, 6, 7, 8, 9, 10): self.stamp(f"T_s{n}")
        self.stamp(f"tpv_{cls}") if cls == cfg.stamp_cls else None
        h0, h1 = Hu(e, 0), Hu(e, 1)
        sd = Su(d, 1)
        if cfg.rush and own.index(d) < cfg.rush_units:
            sd = []
            assert not bg[M + 1]
        self.t_emit(h0[:6] + sd + h0[6:] + h1 + Su(e, 0) + Su(e, 1))
        self.stamp(f"tst_{cls}") if cls == cfg.stamp_cls else None
        self.in_tail = False
        A("s_branch L_epi")

    def rowsum_reduce(self, reg, tmp):
        A = self.A
        A(f"v_mov_b32 v{tmp}, v{reg}")
        A("s_nop 1")
        A(f"v_permlane16_swap_b32 v{reg}, v{tmp}")
        A("s_nop 1")
        A(f"v_add_f32 v{reg}, v{reg}, v{tmp}")
        A(f"v_mov_b32 v{tmp}, v{reg}")
        A("s_nop 1")
        A(f"v_permlane32_swap_b32 v{reg}, v{tmp}")
        A("s_nop 1")
        A(f"v_add_f32 v{reg}, v{reg}, v{tmp}")

    def rowmax_reduce(self, reg, tmp):
        A = self.A
        A(f"v_mov_b32 v{tmp}, v{reg}")
        A("s_nop 1")
        A(f"v_permlane16_swap_b32 v{reg}, v{tmp}")
        A("s_nop 1")
        A(f"v_max_f32 v{reg}, v{reg}, v{tmp}")
        A(f"v_mov_b32 v{tmp}, v{reg}")
        A("s_nop 1")
        A(f"v_permlane32_swap_b32 v{reg}, v{tmp}")
        A("s_nop 1")
        A(f"v_max_f32 v{reg}, v{reg}, v{tmp}")

    def epilogue(self):
        A = self.A
        cfg = self.cfg
        KX, vX, vG16 = self.KX, self.vX, self.vG16
        t0 = vT + 4
        self.label("L_epi")
        A(f"v_cmp_nge_f32 vcc, v{self.vLmin}, s{sThrLo}")
        A(f"s_mov_b64 s[{sBad}:{sBad + 1}], vcc")
        A(f"v_cmp_nle_f32 vcc, v{self.vLmax}, s{sThrHi}")
        A(f"s_or_b64 s[{sBad}:{sBad + 1}], s[{sBad}:{sBad + 1}], vcc")
        if cfg.force_fallback:
            A(f"s_mov_b64 s[{sBad}:{sBad + 1}], -1")
        if cfg.fallback:
            A(f"s_cmp_lg_u64 s[{sBad}:{sBad + 1}], 0")
            A(f"s_cselect_b32 s{sT2}, 1, 0")
            A(f"v_mov_b32 v{t0}, s{sT2}")
            A(f"ds_write_b32 v{vX}, v{t0} offset:{KX + 4096}")
            A("s_waitcnt lgkmcnt(0)")
            A("s_barrier")
            for ww in range(4):
                A(f"ds_read_b32 v{t0 + 1 + ww}, v{vG16} offset:{KX + 4096 + ww * 1024}")
            A("s_waitcnt lgkmcnt(0)")
            A(f"v_or_b32 v{t0 + 1}, v{t0 + 1}, v{t0 + 2}")
            A(f"v_or3_b32 v{t0 + 1}, v{t0 + 1}, v{t0 + 3}, v{t0 + 4}")
            A(f"v_cmp_ne_u32 vcc, 0, v{t0 + 1}")
            A("s_nop 1")
            A("s_cmp_lg_u64 vcc, 0")
            A("s_cbranch_scc1 L_fallback")
        self.finish()

    def finish(self):
        A = self.A
        if self.cfg.stamps:
            A("s_waitcnt vmcnt(0)")
            A(f"s_memrealtime s[{sArg}:{sArg + 1}]")
            A(f"s_memtime s[{sArg + 2}:{sArg + 3}]")
            A("s_waitcnt lgkmcnt(0)")
            A(f"s_sub_u32 s{sArg + 2}, s{sArg + 2}, s{sStamp + 2}")
            A(f"s_sub_u32 s{sArg + 4}, s{sStamp + 4}, s{sStamp + 2}")
            A(f"s_sub_u32 s{sArg + 5}, s{sStamp + 6}, s{sStamp + 4}")
            A(f"v_mov_b32 v64, s{sStamp}")
            A(f"v_mov_b32 v65, s{sArg}")
            A(f"v_mov_b32 v66, s{sArg + 2}")
            A(f"v_mov_b32 v67, s{sArg + 4}")
            A(f"v_mov_b32 v68, s{sArg + 5}")
            A(f"v_mov_b32 v69, s{sWave}")
            A(f"v_mov_b32 v70, 0")
            A(f"v_mov_b32 v71, 0")
            for i in range(len(self.stamp_names)):
                A(f"s_sub_u32 s{sPS + 2 * i}, s{sPS + 2 * i}, s{sStamp + 2}")
                A(f"v_mov_b32 v{76 + i}, s{sPS + 2 * i}")
            for i in range(len(self.stamp_names), 24):
                A(f"v_mov_b32 v{76 + i}, 0")
            if self.cfg.iter_stamps:
                A(f"v_writelane_b32 v245, s{sPS + 32}, 0")
                A(f"v_subrev_u32 v245, s{sStamp + (0 if self.cfg.iter_rt else 2)}, v245")
                A(f"v_mbcnt_lo_u32_b32 v73, -1, 0")
                A(f"v_mbcnt_hi_u32_b32 v73, -1, v73")
                A(f"v_lshlrev_b32 v73, 2, v73")
                A(f"s_lshl_b32 s{sT1}, {self.wg}, 8")
                A(f"s_lshl_b32 s{sT2}, s{sWave}, 16")
                A(f"s_add_u32 s{sT1}, s{sT1}, s{sT2}")
                A(f"s_add_u32 s{sT1}, s{sT1}, 0x40000")
                A(f"buffer_store_dword v245, v73, s[{sW_}:{sW_ + 3}], s{sT1} offen")
            A(f"s_lshl_b32 s{sT1}, {self.wg}, 7")
            A(f"s_lshl_b32 s{sT2}, s{sWave}, 15")
            A(f"s_add_u32 s{sT1}, s{sT1}, s{sT2}")
            A(f"v_mov_b32 v72, s{sT1}")
            A(f"v_mbcnt_lo_u32_b32 v73, -1, 0")
            A(f"v_mbcnt_hi_u32_b32 v73, -1, v73")
            A(f"v_cmp_eq_u32 vcc, 0, v73")
            A(f"s_and_saveexec_b64 s[{sTmp64}:{sTmp64 + 1}], vcc")
            A(f"buffer_store_dwordx4 v[64:67], v72, s[{sW_}:{sW_ + 3}], 0 offen")
            A(f"buffer_store_dwordx4 v[68:71], v72, s[{sW_}:{sW_ + 3}], 0 offen offset:16")
            for i in range(6):
                A(f"buffer_store_dwordx4 v[{76 + 4 * i}:{79 + 4 * i}], v72, s[{sW_}:{sW_ + 3}], 0 offen offset:{32 + 16 * i}")
        A("s_branch L_end")

    def fallback(self):
        A = self.A
        lane = vT + 8
        vM = vS + 8
        self.label("L_fallback")
        A("s_waitcnt vmcnt(0) lgkmcnt(0)")
        A("s_barrier")
        for i in range(8):
            A(f"v_accvgpr_read_b32 v{vKA + i}, a{aStash + i}")
        A(f"v_mbcnt_lo_u32_b32 v{lane}, -1, 0")
        A(f"v_mbcnt_hi_u32_b32 v{lane}, -1, v{lane}")
        A(f"v_and_b32 v{vT}, 15, v{lane}")
        A(f"v_lshrrev_b32 v{vT + 1}, 4, v{lane}")
        A(f"v_lshlrev_b32 v{vT}, 8, v{vT}")
        A(f"v_lshl_add_u32 v{vT}, v{vT + 1}, 4, v{vT}")
        A(f"s_mul_i32 s{sT3}, s{sWave}, {80 * 256}")
        for u in range(6):
            if u < 5:
                A(f"s_add_u32 s{sSoff}, s{sT3}, {u * 4096}")
            else:
                A(f"s_mov_b32 s{sSoff}, {320 * 256}")
            for j in range(4):
                A(f"buffer_load_dwordx4 {self.vr(vO + 4 * j)}, v{vT}, s[{sQ}:{sQ + 3}], s{sSoff} offen offset:{j * 64}")
            A("s_waitcnt vmcnt(0)")
            f, b = self.qloc[u]
            self.q_scale(vO, b, 16, toacc=True)
        for u in range(6):
            A(f"v_mov_b32 v{vM + u}, 0xff800000")
        self.zero_acc()
        for ps in range(2):
            A(f"s_lshl_b32 s{sSlot}, s{sWave}, 10")
            A(f"s_mov_b32 s{sGoff}, 0")
            A(f"s_mov_b32 s{sLoop}, {NTILES}")
            self.label(f"L_fb{ps}")
            A("s_barrier")
            self.dma_tile_simple('K')
            if ps == 1:
                self.dma_tile_simple('V')
            A(f"s_add_u32 s{sGoff}, s{sGoff}, 16384")
            A("s_waitcnt vmcnt(0)")
            A("s_barrier")
            for L in range(2):
                for t in range(2):
                    for j in range(4):
                        A(self.k_read(0, L, 0, t, j))
                if ps == 1:
                    for dt in range(8):
                        for t in range(2):
                            A(self.v_read(0, L, 0, t, dt))
                A("s_waitcnt lgkmcnt(0)")
                for u in range(6):
                    for t in range(2):
                        for j in range(4):
                            A(self.qk_mfma(u, 0, 0, t, j))
                    A("s_nop 7")
                    A("s_nop 3")
                    if ps == 0:
                        for k in range(8):
                            A(f"v_max_f32 v{vM + u}, v{vM + u}, v{vS + k}")
                    else:
                        for k in range(8):
                            A(f"v_sub_f32 v{vS + k}, v{vS + k}, v{vM + u}")
                        for k in range(8):
                            A(f"v_exp_f32 v{vS + k}, v{vS + k}")
                        A("s_nop 0")
                        for k in range(8):
                            A(f"v_add_f32 v{vL + u}, v{vL + u}, v{vS + k}")
                        for k in range(4):
                            A(f"v_cvt_pk_bf16_f32 v{vP + k}, v{vS + 2 * k}, v{vS + 2 * k + 1}")
                        A("s_nop 1")
                        for dt in range(8):
                            A(self.pv_mfma(u, 0, 0, dt))
                    A("s_nop 3")
            A("s_waitcnt lgkmcnt(0)")
            A(f"s_sub_u32 s{sLoop}, s{sLoop}, 1")
            A(f"s_cmp_lg_u32 s{sLoop}, 0")
            A(f"s_cbranch_scc1 L_fb{ps}")
            if ps == 0:
                for u in range(6):
                    self.rowmax_reduce(vM + u, vT + 1)
        A("s_nop 7")
        A("s_nop 7")
        A("s_barrier")
        for u in range(6):
            self.rowsum_reduce(vL + u, vT + 1)
        self.t_emit(self.out_addr_items())
        A(f"s_mov_b32 s{self.sRowU[5]}, {320 * 256}")
        self.ds_issued, self.ds_done, self.ds_tag = 0, 0, {}
        for u in range(6):
            if u == 5:
                A(f"s_cmp_lg_u32 s{sWave}, 0")
                A("s_cbranch_scc1 L_fb_done")
            A(f"v_rcp_f32 v{vL + u}, v{vL + u}")
            A("s_nop 0")
            for h in range(2):
                base = vO + 32 * u + 16 * h
                self.t_emit(self.H_items(base, vL + u, ('fb', u, h), h))
                self.t_emit(self.S_items(base, ('fb', u, h), self.sRowU[u], h))
        self.label("L_fb_done")
        self.finish()

    def generate(self):
        A = self.A
        self.prologue()
        A(f"s_cmp_ge_u32 s{sWave}, 2")
        A("s_cbranch_scc1 L_cls1")
        self.main_loop(0)
        st0 = dict(self.stats)
        A("s_branch L_epi")
        self.label("L_cls1")
        self.main_loop(1)
        st1 = dict(self.stats)
        self.epilogue()
        if self.cfg.fallback:
            self.fallback()
        self.label("L_end")
        A("s_endpgm")
        hdr = open("standalone__gqa_softmax__near_ridge.s.ref").read().split("; Override")[0]
        txt = hdr
        txt += "; Override launch geometry by editing the next line.\n"
        txt += f"; @launch grid=(256,1,1) block=(256,1,1) lds={LDS_TOTAL}\n"
        txt += '.amdgcn_target "amdgcn-amd-amdhsa--gfx950"\n.text\n'
        txt += f".globl {NAME}\n.p2align 8\n.type {NAME},@function\n{NAME}:\n"
        for x in self.L:
            txt += (x if x.endswith(":") else "    " + x) + "\n"
        txt += '.section .rodata,"a"\n.p2align 6\n'
        txt += f""".amdhsa_kernel {NAME}
  .amdhsa_next_free_vgpr 512
  .amdhsa_next_free_sgpr 102
  .amdhsa_accum_offset 256
  .amdhsa_group_segment_fixed_size 0
  .amdhsa_kernarg_size 48
  .amdhsa_user_sgpr_count 2
  .amdhsa_user_sgpr_kernarg_segment_ptr 1
  .amdhsa_system_sgpr_workgroup_id_x 1
.end_amdhsa_kernel
"""
        return txt, st0, st1


if __name__ == "__main__":
    ap = argparse.ArgumentParser()
    ap.add_argument("-o", default="k.s")
    ap.add_argument("--stamps", action="store_true")
    ap.add_argument("--ones", default="0")
    ap.add_argument("--force-fallback", action="store_true")
    ap.add_argument("--set", action="append", default=[])
    ap.add_argument("--cfg", action="append", default=[], help="file holding a dict of settings")
    a = ap.parse_args()
    kw = dict(stamps=a.stamps, force_fallback=a.force_fallback,
              ones_units=tuple(int(x) for x in a.ones.split(",") if x != ""))
    for f in a.cfg:
        kw.update(eval(open(f).read()))
    for s in a.set:
        k, v = s.split("=", 1)
        kw[k] = eval(v)
    g = Gen(Cfg(**kw))
    txt, st0, st1 = g.generate()
    open(a.o, "w").write(txt)
    print("generated", a.o, st0, st1, "lines", txt.count("\n"), "stamps", g.stamp_names, file=sys.stderr)
```
